```python
import torch

def _softmax(x, axis=-1):
    return torch.softmax(x, dim=axis)
def _gelu(x):
    return torch.nn.functional.gelu(x, approximate="tanh")
def _silu(x):
    return torch.nn.functional.silu(x)
def _sigmoid(x):
    return torch.sigmoid(x)
def _layernorm(x, axis=-1, eps=1e-5):
    m = x.mean(dim=axis, keepdim=True)
    v = x.var(dim=axis, keepdim=True, unbiased=False)
    return (x - m) / torch.sqrt(v + eps)
def _scatter_add(tgt, idx, src, axis=0):
    return tgt.clone().index_add_(axis, idx, src)
def _segment_sum(src, seg, n):
    out = torch.zeros((n,) + src.shape[1:], dtype=src.dtype)
    return out.index_add_(0, seg, src)
def _pad(x, pw):
    flat = tuple(v for pair in reversed(pw) for v in pair)
    return torch.nn.functional.pad(x, flat)

kernel_name = 'standalone__gqa_softmax__sampling'

def setup_inputs():

    _w = (lambda a: (lambda t: t.to(torch.bfloat16) if t.is_floating_point() else t)(torch.as_tensor(a)))
    B, Hq, Hkv, Sq, Sk, D = 16, 32, 16, 4, 4096, 128
    return {
        "q": _w((lambda *s: torch.randn(*s, dtype=torch.bfloat16) * 0.8)(B, Hq, Sq, D)),
        "k": _w((lambda *s: torch.randn(*s, dtype=torch.bfloat16) * 0.8)(B, Hkv, Sk, D)),
        "v": _w((lambda *s: torch.randn(*s, dtype=torch.bfloat16) * 0.05)(B, Hkv, Sk, D)),
    }

def reference(q, k, v):
    B, Hq, Sq, D = q.shape
    Hkv = k.shape[1]
    rep = Hq // Hkv
    k = (lambda x, n, axis: torch.repeat_interleave(x, n, dim=axis))(k, rep, axis=1)
    v = (lambda x, n, axis: torch.repeat_interleave(x, n, dim=axis))(v, rep, axis=1)
    scale = D ** -0.5
    scores = torch.einsum("bhqd,bhkd->bhqk", q, k) * scale
    p = _softmax(scores, axis=-1)
    return torch.einsum("bhqk,bhkd->bhqd", p, v)
```

```python
import re

TRANS = ('v_exp_f32', 'v_log_f32', 'v_rcp_f32', 'v_rsq_f32', 'v_sqrt_f32', 'v_sin_f32', 'v_cos_f32')
MFMA_PASSES = {
    'v_mfma_f32_16x16x32_bf16': 4,
    'v_mfma_f32_32x32x16_bf16': 8,
    'v_mfma_f32_16x16x16_bf16': 4,
    'v_mfma_f32_4x4x4_16b_bf16': 2,
}
D_TO_VALU = {2: 5, 4: 8, 8: 12, 16: 20}
D_TO_AB = {2: 5, 4: 8, 8: 12, 16: 20}
D_TO_C_PART = {2: 4, 4: 6, 8: 10, 16: 18}
D_TO_C_SAME = {2: 2, 4: 0, 8: 0, 16: 0}
C_WAR = {2: 1, 4: 3, 8: 7, 16: 15}

REG_RE = re.compile(r'^(-?)(abs\()?([vas])(\d+|\[(\d+):(\d+)\])\)?$')


def regs_of(op):
    op = op.strip()
    if op in ('vcc', 'vcc_lo', 'vcc_hi'):
        return {('s', 'vcc')}
    if op in ('exec', 'exec_lo', 'exec_hi'):
        return {('s', 'exec')}
    if op == 'm0':
        return {('s', 'm0')}
    m = REG_RE.match(op)
    if not m:
        return set()
    k = m.group(3)
    if m.group(5) is not None:
        return {(k, i) for i in range(int(m.group(5)), int(m.group(6)) + 1)}
    return {(k, int(m.group(4)))}


class Ins:
    def __init__(self, text):
        self.text = text
        body = text.split(';')[0].strip()
        parts = body.split(None, 1)
        self.op = parts[0]
        rest = parts[1] if len(parts) > 1 else ''
        ops = [o.strip() for o in rest.split(',')] if rest else []
        mods = ''
        if ops:
            last = ops[-1].split(None, 1)
            ops[-1] = last[0]
            if len(last) > 1:
                mods = last[1]
        self.ops = ops
        self.mods = mods
        op = self.op
        self.base = re.sub(r'_(e32|e64|dpp|sdwa)$', '', op)
        self.is_mfma = op.startswith('v_mfma')
        self.is_valu = op.startswith('v_') and not self.is_mfma
        self.is_salu = op.startswith('s_')
        self.is_vmem = op.startswith(('buffer_', 'global_', 'flat_'))
        self.is_ds = op.startswith('ds_')
        self.is_dpp = op.endswith('_dpp') or 'quad_perm' in mods or 'row_' in mods
        self.is_trans = self.base in TRANS
        self.is_permlane = op.startswith('v_permlane')
        self.is_readlane = op.startswith(('v_readlane', 'v_readfirstlane'))
        self.lds_dma = self.is_vmem and (' lds' in (' ' + mods) or '_lds_' in op)
        R = [regs_of(o) for o in ops]
        self.defs, self.uses = set(), set()
        self.nstates = 1
        if op == 's_nop':
            self.nstates = int(ops[0], 0) + 1
        elif self.is_mfma:
            self.passes = MFMA_PASSES[op]
            self.D, self.A, self.B, self.C = R[0], R[1], R[2], R[3]
            self.defs = set(R[0])
            self.uses = R[1] | R[2] | R[3]
        elif self.is_valu:
            if self.is_permlane and 'swap' in op:
                self.defs = R[0] | R[1]
                self.uses = R[0] | R[1]
            elif self.base.startswith('v_cmp'):
                self.defs = set(R[0])
                if self.base.startswith('v_cmpx'):
                    self.defs |= {('s', 'exec')}
                for r in R[1:]:
                    self.uses |= r
            elif '_co_' in self.base:
                self.defs = R[0] | R[1]
                for r in R[2:]:
                    self.uses |= r
            else:
                self.defs = set(R[0])
                for r in R[1:]:
                    self.uses |= r
                if self.base in ('v_fmac_f32', 'v_pk_fmac_f16', 'v_dot2c_f32_bf16') or self.is_dpp:
                    self.uses |= R[0]
                if self.base == 'v_cndmask_b32' and len(ops) == 3:
                    self.uses |= {('s', 'vcc')}
        elif self.is_vmem:
            load = '_load' in op
            ret_atomic = '_atomic' in op and 'sc0' in mods.split()
            if self.lds_dma:
                for r in R:
                    self.uses |= r
                self.uses |= {('s', 'm0')}
            elif load:
                self.defs = set(R[0])
                for r in R[1:]:
                    self.uses |= r
            else:
                for r in R:
                    self.uses |= r
                if ret_atomic:
                    self.defs = set(R[0])
            self.wide_store = (not load) and ('x4' in op or 'x3' in op)
            self.sdata = set()
            if self.wide_store:
                self.sdata = R[0] if op.startswith('buffer_') else R[1]
        elif self.is_ds:
            if op.startswith(('ds_read', 'ds_bpermute', 'ds_permute', 'ds_swizzle')):
                self.defs = set(R[0])
                for r in R[1:]:
                    self.uses |= r
            else:
                for r in R:
                    self.uses |= r
        elif self.is_salu:
            nodef = op.startswith(('s_cmp', 's_waitcnt', 's_barrier', 's_cbranch', 's_branch', 's_endpgm',
                                   's_setprio', 's_sleep', 's_bitcmp'))
            if nodef:
                for r in R:
                    self.uses |= r
            else:
                if R:
                    self.defs = set(R[0])
                for r in R[1:]:
                    self.uses |= r
                if op.startswith('s_atomic'):
                    self.uses |= R[0]
                if 'saveexec' in op:
                    self.defs |= {('s', 'exec')}


def vec(rs):
    return {r for r in rs if r[0] in 'va'}


def sca(rs):
    return {r for r in rs if r[0] == 's'}


def required(prev, cur):
    need = 0
    if prev.is_valu:
        pv, ps = vec(prev.defs), sca(prev.defs)
        if cur.is_mfma and pv & cur.uses:
            need = max(need, 2)
        if cur.is_valu and cur.is_dpp and pv & cur.uses:
            need = max(need, 2)
        if cur.is_permlane and pv & cur.uses:
            need = max(need, 2)
        if cur.is_readlane and pv & cur.uses:
            need = max(need, 1)
        if prev.is_trans and cur.is_valu and not cur.is_trans and pv & cur.uses:
            need = max(need, 1)
        if prev.is_trans and cur.is_mfma and pv & cur.uses:
            need = max(need, 2)
        if ('op_sel' in prev.mods or prev.op.endswith('sdwa')) and cur.is_valu and pv & (cur.uses | cur.defs):
            need = max(need, 1)
        if ps:
            if cur.is_valu and ps & cur.uses:
                need = max(need, 4 if cur.is_readlane else 2)
            if cur.is_vmem and ps & cur.uses:
                need = max(need, 5)
            if cur.is_salu and ps & cur.uses:
                need = max(need, 1)
            if ('s', 'exec') in ps:
                if cur.is_dpp:
                    need = max(need, 5)
                if cur.is_mfma or cur.is_permlane or cur.is_readlane:
                    need = max(need, 4)
    if prev.is_mfma:
        p = prev.passes
        if cur.is_mfma:
            if prev.D & (cur.A | cur.B):
                need = max(need, D_TO_AB[p])
            if prev.D & cur.C:
                same = prev.D == cur.C and prev.passes == cur.passes
                need = max(need, D_TO_C_SAME[p] if same else D_TO_C_PART[p])
            elif prev.D & cur.D:
                need = max(need, D_TO_C_PART[p])
        elif cur.is_valu:
            if prev.D & (cur.uses | cur.defs):
                need = max(need, D_TO_VALU[p])
            if prev.C & cur.defs:
                need = max(need, C_WAR[p])
        elif cur.is_vmem or cur.is_ds:
            if prev.D & (cur.uses | cur.defs):
                need = max(need, D_TO_VALU[p])
            if prev.C & cur.defs:
                need = max(need, C_WAR[p])
    if prev.is_vmem and getattr(prev, 'wide_store', False):
        if prev.sdata & cur.defs:
            need = max(need, 2)
    if prev.is_salu and ('s', 'm0') in prev.defs:
        if cur.is_vmem and cur.lds_dma:
            need = max(need, 1)
    return need


WINDOW = 24


class Prog:
    def __init__(self):
        self.items = []

    def __call__(self, text):
        for line in text.strip().split('\n'):
            line = line.strip()
            if not line or line.startswith(';'):
                if line:
                    self.items.append(('raw', '    ' + line))
                continue
            if line.endswith(':'):
                self.items.append(('label', line[:-1]))
            elif line.startswith('.'):
                self.items.append(('raw', line))
            else:
                self.items.append(('ins', Ins(line)))

    def label(self, n):
        self.items.append(('label', n))

    def _succ_paths_pad(self):
        items = self.items
        labels = {it[1]: i for i, it in enumerate(items) if it[0] == 'label'}
        preds = {}
        for i, it in enumerate(items):
            if it[0] == 'ins' and it[1].op.startswith(('s_cbranch', 's_branch')):
                preds.setdefault(labels[it[1].ops[0]], []).append(i)

        def walk_back(start, dist, cur, via_branch, seen):
            miss = 0
            j = start
            while j >= 0 and dist < WINDOW:
                it = items[j]
                if it[0] == 'label':
                    for pj in preds.get(j, []):
                        key = (pj, dist)
                        if key in seen:
                            continue
                        seen.add(key)
                        miss = max(miss, walk_back(pj, dist, cur, True, seen))
                elif it[0] == 'ins':
                    ins = it[1]
                    if ins.op in ('s_branch', 's_endpgm') and not (via_branch and j == start):
                        return miss
                    miss = max(miss, required(ins, cur) - dist)
                    dist += ins.nstates
                j -= 1
            return miss

        for i, it in enumerate(items):
            if it[0] != 'ins':
                continue
            m = walk_back(i - 1, 0, it[1], False, set())
            if m > 0:
                while m > 0:
                    k = min(m, 16)
                    items.insert(i, ('ins', Ins('s_nop %d' % (k - 1))))
                    m -= k
                return True
        return False

    def fix_hazards(self):
        n = 0
        while self._succ_paths_pad():
            n += 1
        return n

    def text(self):
        out = []
        for it in self.items:
            if it[0] == 'label':
                out.append(it[1] + ':')
            elif it[0] == 'raw':
                out.append(it[1])
            else:
                out.append('    ' + it[1].text)
        return '\n'.join(out) + '\n'

    def max_regs(self):
        mv = ma = ms = -1
        for it in self.items:
            if it[0] == 'ins':
                for k, r in it[1].defs | it[1].uses:
                    if isinstance(r, int):
                        if k == 'v':
                            mv = max(mv, r)
                        elif k == 'a':
                            ma = max(ma, r)
                        else:
                            ms = max(ms, r)
        return mv, ma, ms
```

```python
import math
import struct
import sys
sys.path.insert(0, 'work')
from asmlib import Prog

KNAME = 'standalone__gqa_softmax__sampling_kernel'
HEADER = """; Kernarg layout for this problem (48 bytes, ptrs only, base s[0:1]):
"""


def f32bits(x):
    return struct.unpack('<I', struct.pack('<f', x))[0]


def gen(W=8, R=1, pol='nt', order='inter', stagger=0, compute=True, kpat='quad', stamp=False,
        polk=None, polv=None, vgpr_force=None, lds_force=None):
    polk = pol if polk is None else polk
    polv = pol if polv is None else polv
    NT = 128 // W
    p = Prog()
    vKoff, vVoff, vT0, vT1, vM, vL, vAl, vMn = 1, 2, 3, 4, 5, 6, 7, 8
    vP = 12
    vQ = 16
    vS = 24
    vD = 32
    vO = 48
    vVt = 80
    vK = 112
    vV = vK + 32 * R
    vEnd = vV + 32 * R
    sK, sV, sQ, sO = 8, 12, 16, 20
    sOffA, sOffB, sCnt, sW, sC, sSelLo, sSelHi, sTmp, sStep = 24, 25, 26, 27, 28, 29, 30, 31, 32
    sH = 34

    def r4(b):
        return 'v[%d:%d]' % (b, b + 3)

    def fl(x):
        return (' ' + x) if x else ''

    def loadK(slot, j):
        so = sOffA if j < 4 else sOffB
        p('buffer_load_dwordx4 %s, v%d, s[%d:%d], s%d offen offset:%d%s' %
          (r4(vK + 32 * slot + 4 * j), vKoff, sK, sK + 3, so, (j & 3) * 1024, fl(polk)))

    def loadV(slot, j):
        so = sOffA if j < 4 else sOffB
        p('buffer_load_dwordx4 %s, v%d, s[%d:%d], s%d offen offset:%d%s' %
          (r4(vV + 32 * slot + 4 * j), vVoff, sV, sV + 3, so, (j & 3) * 1024, fl(polv)))

    def advance():
        p('s_add_u32 s%d, s%d, s%d' % (sOffA, sOffA, sStep))
        p('s_and_b32 s%d, s%d, 0xfffff' % (sOffA, sOffA))
        p('s_add_u32 s%d, s%d, 0x1000' % (sOffB, sOffA))
        p('s_and_b32 s%d, s%d, 0xfffff' % (sOffB, sOffB))

    p('s_cmp_ge_u32 s2, 256')
    p('s_cbranch_scc1 L_end')
    p('s_load_dwordx4 s[4:7], s[0:1], 0')
    p('s_load_dwordx4 s[36:39], s[0:1], 16')
    if stamp:
        p('s_load_dwordx2 s[44:45], s[0:1], 40')
        p('s_memrealtime s[40:41]')
    p('v_lshrrev_b32 v%d, 6, v0' % vT0)
    p('v_and_b32 v0, 63, v0')
    p('v_readfirstlane_b32 s%d, v%d' % (sW, vT0))
    p('v_lshlrev_b32 v%d, 4, v0' % vVoff)
    if kpat == 'quad':
        p('v_lshrrev_b32 v%d, 4, v0' % vT0)
        p('v_lshlrev_b32 v%d, 6, v%d' % (vT0, vT0))
        p('v_bfe_u32 v%d, v0, 2, 2' % vT1)
        p('v_lshl_add_u32 v%d, v%d, 8, v%d' % (vT0, vT1, vT0))
        p('v_and_b32 v%d, 3, v0' % vT1)
        p('v_lshl_add_u32 v%d, v%d, 4, v%d' % (vKoff, vT1, vT0))
    elif kpat == 'lin':
        p('v_lshlrev_b32 v%d, 4, v0' % vKoff)
    p('v_and_b32 v%d, 7, v0' % vT0)
    p('v_lshlrev_b32 v%d, 8, v%d' % (vT0, vT0))
    p('v_lshrrev_b32 v%d, 4, v0' % vT1)
    p('v_lshl_add_u32 v%d, v%d, 6, v%d' % (vT0, vT1, vT0))
    p('v_bfe_u32 v%d, v0, 3, 1' % vT1)
    p('v_lshl_add_u32 v%d, v%d, 4, v%d' % (vT0, vT1, vT0))
    p('v_cmp_ne_u32 s[%d:%d], 0, v%d' % (sH, sH + 1, vT1))
    if order == 'inter':
        p('s_lshl_b32 s%d, s%d, 13' % (sOffA, sW))
        p('s_mov_b32 s%d, %d' % (sStep, W * 8192))
    else:
        p('s_mul_i32 s%d, s%d, %d' % (sOffA, sW, NT * 8192))
        p('s_mov_b32 s%d, 8192' % sStep)
    if stagger:
        p('s_mul_i32 s%d, s2, %d' % (sTmp, stagger))
        p('s_add_u32 s%d, s%d, s%d' % (sOffA, sOffA, sTmp))
        p('s_and_b32 s%d, s%d, 0xfffff' % (sOffA, sOffA))
    p('s_add_u32 s%d, s%d, 0x1000' % (sOffB, sOffA))
    p('s_and_b32 s%d, s%d, 0xfffff' % (sOffB, sOffB))
    p('s_lshl_b32 s%d, s2, 20' % sTmp)
    p('s_lshl_b32 s3, s2, 11')
    p('s_mov_b32 s%d, 0x100000' % (sK + 2))
    p('s_mov_b32 s%d, 0x20000' % (sK + 3))
    p('s_mov_b32 s%d, 0x100000' % (sV + 2))
    p('s_mov_b32 s%d, 0x20000' % (sV + 3))
    p('s_mov_b32 s%d, 2048' % (sQ + 2))
    p('s_mov_b32 s%d, 0x20000' % (sQ + 3))
    p('s_mov_b32 s%d, 2048' % (sO + 2))
    p('s_mov_b32 s%d, 0x20000' % (sO + 3))
    p('s_waitcnt lgkmcnt(0)')
    p('s_add_u32 s%d, s6, s%d' % (sK, sTmp))
    p('s_addc_u32 s%d, s7, 0' % (sK + 1))
    p('s_add_u32 s%d, s4, s3' % sQ)
    p('s_addc_u32 s%d, s5, 0' % (sQ + 1))
    p('s_add_u32 s%d, s36, s%d' % (sV, sTmp))
    p('s_addc_u32 s%d, s37, 0' % (sV + 1))
    p('buffer_load_dwordx4 %s, v%d, s[%d:%d], 0 offen' % (r4(vQ), vT0, sQ, sQ + 3))
    p('buffer_load_dwordx4 %s, v%d, s[%d:%d], 0 offen offset:32' % (r4(vQ + 4), vT0, sQ, sQ + 3))
    for sl in range(R):
        for j in range(8):
            loadK(sl, j)
        for j in range(8):
            loadV(sl, j)
        advance()
    p('s_add_u32 s%d, s38, s3' % sO)
    p('s_addc_u32 s%d, s39, 0' % (sO + 1))
    c = math.log2(math.e) / math.sqrt(128.0)
    p('s_mov_b32 s%d, 0x%08x' % (sC, f32bits(c)))
    p('s_mov_b32 s%d, 0x05040100' % sSelLo)
    p('s_mov_b32 s%d, 0x07060302' % sSelHi)
    p('v_mov_b32 v%d, 0xff800000' % vM)
    p('v_mov_b32 v%d, 0' % vL)
    for i in range(32):
        p('v_mov_b32 v%d, 0' % (vO + i))

    def fixup(j):
        d = vD + 8 * (j & 1)
        p('v_add_f32 v%d, v%d, v%d' % (vT0, d + 0, d + 6))
        p('v_add_f32 v%d, v%d, v%d' % (vT1, d + 1, d + 7))
        p('v_cndmask_b32 v%d, v%d, v%d, s[%d:%d]' % (vS + j, vT0, vT1, sH, sH + 1))

    def fixup2(j):
        p('v_add_f32_dpp v%d, v%d, v%d row_ror:8 row_mask:0xf bank_mask:0xf' % (vS + j, vS + j, vS + j))

    def tile(slot, pref, rem):
        for j in range(8):
            n = (16 * R - 1) if pref else (16 * rem + 8 + 7 - j)
            p('s_waitcnt vmcnt(%d)' % n)
            if compute:
                d = vD + 8 * (j & 1)
                p('v_mfma_f32_16x16x32_bf16 %s, %s, %s, 0' % (r4(d), r4(vK + 32 * slot + 4 * j), r4(vQ)))
                p('v_mfma_f32_16x16x32_bf16 %s, %s, %s, 0' % (r4(d + 4), r4(vK + 32 * slot + 4 * j), r4(vQ + 4)))
            if pref:
                loadK(slot, j)
            if compute:
                if j >= 2:
                    fixup2(j - 2)
                if j >= 1:
                    fixup(j - 1)
        if compute:
            fixup2(6)
            fixup(7)
            p('v_max3_f32 v%d, v%d, v%d, v%d' % (vT0, vS, vS + 1, vS + 2))
            p('v_max3_f32 v%d, v%d, v%d, v%d' % (vT0, vT0, vS + 3, vS + 4))
            fixup2(7)
            p('v_max3_f32 v%d, v%d, v%d, v%d' % (vT0, vT0, vS + 5, vS + 6))
            p('v_max_f32 v%d, v%d, v%d' % (vT0, vT0, vS + 7))
            p('v_mov_b32 v%d, v%d' % (vT1, vT0))
            p('v_permlane32_swap_b32 v%d, v%d' % (vT0, vT1))
            p('v_max_f32 v%d, v%d, v%d' % (vT0, vT0, vT1))
            p('v_mov_b32 v%d, v%d' % (vT1, vT0))
            p('v_permlane16_swap_b32 v%d, v%d' % (vT0, vT1))
            p('v_max_f32 v%d, v%d, v%d' % (vT0, vT0, vT1))
            p('v_mul_f32 v%d, s%d, v%d' % (vT0, sC, vT0))
            p('v_max_f32 v%d, v%d, v%d' % (vMn, vM, vT0))
            p('v_sub_f32 v%d, v%d, v%d' % (vAl, vM, vMn))
            p('v_mov_b32 v%d, v%d' % (vM, vMn))
            p('v_exp_f32 v%d, v%d' % (vAl, vAl))
            for j in range(8):
                p('v_fma_f32 v%d, v%d, s%d, -v%d' % (vS + j, vS + j, sC, vMn))
            for j in range(8):
                p('v_exp_f32 v%d, v%d' % (vS + j, vS + j))
            p('v_mul_f32 v%d, v%d, v%d' % (vL, vL, vAl))
            for i in range(32):
                p('v_mul_f32 v%d, v%d, v%d' % (vO + i, vO + i, vAl))
            for w in range(4):
                p('v_cvt_pk_bf16_f32 v%d, v%d, v%d' % (vP + w, vS + 2 * w, vS + 2 * w + 1))
            p('v_add_f32 v%d, v%d, v%d' % (vT0, vS, vS + 1))
            p('v_add_f32 v%d, v%d, v%d' % (vT1, vS + 2, vS + 3))
            p('v_add_f32 v%d, v%d, v%d' % (vT0, vT0, vS + 4))
            p('v_add_f32 v%d, v%d, v%d' % (vT1, vT1, vS + 5))
            p('v_add_f32 v%d, v%d, v%d' % (vT0, vT0, vS + 6))
            p('v_add_f32 v%d, v%d, v%d' % (vT1, vT1, vS + 7))
            p('v_add_f32 v%d, v%d, v%d' % (vL, vL, vT0))
            p('v_add_f32 v%d, v%d, v%d' % (vL, vL, vT1))
        for w in range(4):
            n = (16 * R - 2) if pref else (16 * rem + 6 - 2 * w)
            p('s_waitcnt vmcnt(%d)' % n)
            if compute:
                a = vV + 32 * slot + 8 * w
                for u in range(4):
                    p('v_perm_b32 v%d, v%d, v%d, s%d' % (vVt + 8 * u + w, a + 4 + u, a + u, sSelLo))
                    p('v_perm_b32 v%d, v%d, v%d, s%d' % (vVt + 8 * u + 4 + w, a + 4 + u, a + u, sSelHi))
            if pref:
                loadV(slot, 2 * w)
                loadV(slot, 2 * w + 1)
        if pref:
            advance()
        if compute:
            for m in range(8):
                p('v_mfma_f32_16x16x32_bf16 %s, %s, %s, %s' % (r4(vO + 4 * m), r4(vVt + 4 * m), r4(vP), r4(vO + 4 * m)))

    assert (NT - R) % R == 0
    iters = (NT - R) // R
    p('s_mov_b32 s%d, %d' % (sCnt, iters))
    p('.p2align 3')
    p.label('L_loop')
    for sl in range(R):
        tile(sl, True, 0)
    p('s_sub_u32 s%d, s%d, 1' % (sCnt, sCnt))
    p('s_cmp_lg_u32 s%d, 0' % sCnt)
    p('s_cbranch_scc1 L_loop')
    for sl in range(R):
        tile(sl, False, R - 1 - sl)

    QS, MS, WS = 656, 80, 8 * 656
    ML = W * WS
    lds = ML + 8 * W * 8
    if compute:
        p('v_mov_b32 v%d, v%d' % (vT1, vL))
        p('v_permlane32_swap_b32 v%d, v%d' % (vL, vT1))
        p('v_add_f32 v%d, v%d, v%d' % (vL, vL, vT1))
        p('v_mov_b32 v%d, v%d' % (vT1, vL))
        p('v_permlane16_swap_b32 v%d, v%d' % (vL, vT1))
        p('v_add_f32 v%d, v%d, v%d' % (vMn + 1, vL, vT1))
        p('v_mov_b32 v%d, v%d' % (vMn, vM))
        p('v_and_b32 v%d, 7, v0' % vT0)
        p('s_mul_i32 s%d, s%d, %d' % (sTmp, sW, WS))
        p('v_mul_u32_u24 v%d, %d, v%d' % (vAl, QS, vT0))
        p('v_lshrrev_b32 v%d, 4, v0' % vT1)
        p('v_lshl_add_u32 v%d, v%d, 4, v%d' % (vAl, vT1, vAl))
        p('v_add_u32 v%d, s%d, v%d' % (vAl, sTmp, vAl))
        p('s_lshl_b32 s%d, s%d, 3' % (sTmp, sW))
        p('s_add_u32 s%d, s%d, %d' % (sTmp, sTmp, ML))
        p('v_mul_u32_u24 v%d, %d, v%d' % (vT0, W * 8, vT0))
        p('v_add_u32 v%d, s%d, v%d' % (vT0, sTmp, vT0))
        p('s_andn2_b64 exec, exec, s[%d:%d]' % (sH, sH + 1))
        for m in range(8):
            p('ds_write_b128 v%d, %s offset:%d' % (vAl, r4(vO + 4 * m), m * MS))
        p('ds_write_b64 v%d, v[%d:%d]' % (vT0, vMn, vMn + 1))
        p('s_mov_b64 exec, -1')
        p('s_waitcnt lgkmcnt(0)')
        p('s_barrier')
        rows = max(1, 8 // W)
        if W > 8:
            p('s_cmp_ge_u32 s%d, 8' % sW)
            p('s_cbranch_scc1 L_fin')
        vA = vVt
        vR = vK
        for rr in range(rows):
            p('s_mul_i32 s%d, s%d, %d' % (sCnt, sW, rows))
            if rr:
                p('s_add_u32 s%d, s%d, %d' % (sCnt, sCnt, rr))
            p('s_mul_i32 s%d, s%d, %d' % (sTmp, sCnt, W * 8))
            p('s_add_u32 s%d, s%d, %d' % (sTmp, sTmp, ML))
            p('v_mov_b32 v%d, s%d' % (vT0, sTmp))
            for i in range(W // 2):
                p('ds_read_b128 %s, v%d offset:%d' % (r4(vA + 4 * i), vT0, 16 * i))
            p('s_mul_i32 s%d, s%d, %d' % (sTmp, sCnt, QS))
            p('v_and_b32 v%d, 3, v0' % vT0)
            p('v_mul_u32_u24 v%d, %d, v%d' % (vT0, 2 * MS, vT0))
            p('v_lshrrev_b32 v%d, 2, v0' % vT1)
            p('v_lshl_add_u32 v%d, v%d, 2, v%d' % (vT0, vT1, vT0))
            p('v_add_u32 v%d, s%d, v%d' % (vT0, sTmp, vT0))
            for w in range(W):
                if w:
                    p('v_add_u32 v%d, %d, v%d' % (vT0, WS, vT0))
                p('ds_read2_b32 v[%d:%d], v%d offset0:0 offset1:%d' % (vR + 2 * w, vR + 2 * w + 1, vT0, MS // 4))
            p('s_waitcnt lgkmcnt(%d)' % min(W, 15))
            p('v_max_f32 v%d, v%d, v%d' % (vT1, vA, vA + 2))
            for w in range(2, W):
                p('v_max_f32 v%d, v%d, v%d' % (vT1, vT1, vA + 2 * w))
            for w in range(W):
                p('v_sub_f32 v%d, v%d, v%d' % (vA + 2 * w, vA + 2 * w, vT1))
            for w in range(W):
                p('v_exp_f32 v%d, v%d' % (vA + 2 * w, vA + 2 * w))
            p('v_mul_f32 v%d, v%d, v%d' % (vL, vA, vA + 1))
            for w in range(1, W):
                p('v_fmac_f32 v%d, v%d, v%d' % (vL, vA + 2 * w, vA + 2 * w + 1))
            p('v_rcp_f32 v%d, v%d' % (vL, vL))
            p('s_waitcnt lgkmcnt(0)')
            p('v_mul_f32 v%d, v%d, v%d' % (vM, vA, vR))
            p('v_mul_f32 v%d, v%d, v%d' % (vAl, vA, vR + 1))
            for w in range(1, W):
                p('v_fmac_f32 v%d, v%d, v%d' % (vM, vA + 2 * w, vR + 2 * w))
                p('v_fmac_f32 v%d, v%d, v%d' % (vAl, vA + 2 * w, vR + 2 * w + 1))
            p('v_mul_f32 v%d, v%d, v%d' % (vM, vM, vL))
            p('v_mul_f32 v%d, v%d, v%d' % (vAl, vAl, vL))
            p('v_cvt_pk_bf16_f32 v%d, v%d, v%d' % (vM, vM, vAl))
            p('s_lshl_b32 s%d, s%d, 8' % (sTmp, sCnt))
            p('v_lshlrev_b32 v%d, 2, v0' % vT0)
            p('buffer_store_dword v%d, v%d, s[%d:%d], s%d offen' % (vM, vT0, sO, sO + 3, sTmp))
        p.label('L_fin')
    if stamp:
        p('s_memrealtime s[42:43]')
        p('s_getreg_b32 s46, hwreg(HW_REG_XCC_ID)')
        p('s_getreg_b32 s47, hwreg(HW_REG_HW_ID)')
        p('s_waitcnt lgkmcnt(0)')
        p('s_mul_i32 s%d, s2, %d' % (sTmp, W))
        p('s_add_u32 s%d, s%d, s%d' % (sTmp, sTmp, sW))
        p('s_lshl_b32 s%d, s%d, 5' % (sTmp, sTmp))
        p('v_mov_b32 v%d, s%d' % (vT0, sTmp))
        for i, s in enumerate((40, 41, 42, 43)):
            p('v_mov_b32 v%d, s%d' % (vVt + i, s))
        p('v_mov_b32 v%d, s46' % (vVt + 4))
        p('v_mov_b32 v%d, s47' % (vVt + 5))
        p('s_mov_b64 exec, 1')
        p('global_store_dwordx4 v%d, %s, s[44:45]' % (vT0, r4(vVt)))
        p('global_store_dwordx2 v%d, v[%d:%d], s[44:45] offset:16' % (vT0, vVt + 4, vVt + 5))
    p.label('L_end')
    p('s_endpgm')
    p.fix_hazards()
    mv, ma, ms = p.max_regs()
    nv = vgpr_force or (mv + 1)
    acc = min(256, (nv + 3) // 4 * 4)
    if lds_force:
        lds = max(lds, lds_force)
    txt = HEADER + '; @launch grid=(256,1,1) block=(%d,1,1) lds=%d\n' % (64 * W, lds)
    txt += '.amdgcn_target "amdgcn-amd-amdhsa--gfx950"\n.text\n.globl %s\n.p2align 8\n.type %s,@function\n%s:\n' % (
        KNAME, KNAME, KNAME)
    txt += p.text()
    txt += """.section .rodata,"a"
.p2align 6
.amdhsa_kernel %s
  .amdhsa_next_free_vgpr %d
  .amdhsa_next_free_sgpr %d
  .amdhsa_accum_offset %d
  .amdhsa_group_segment_fixed_size 0
  .amdhsa_kernarg_size 48
  .amdhsa_user_sgpr_count 2
  .amdhsa_user_sgpr_kernarg_segment_ptr 1
  .amdhsa_system_sgpr_workgroup_id_x 1
.end_amdhsa_kernel
""" % (KNAME, nv, ms + 1, acc)
    return txt


if __name__ == '__main__':
    kw = {}
    out = sys.argv[1]
    for a in sys.argv[2:]:
        k, v = a.split('=')
        try:
            v = int(v, 0)
        except ValueError:
            pass
        kw[k] = v
    open(out, 'w').write(gen(**kw))
```

```python
import math
import struct
import sys
sys.path.insert(0, 'work')
from asmlib import Prog

KNAME = 'standalone__gqa_softmax__sampling_kernel'
HEADER = """; Kernarg layout for this problem (48 bytes, ptrs only, base s[0:1]):
"""


def f32bits(x):
    return struct.unpack('<I', struct.pack('<f', x))[0]


def gen(W=8, R=1, pol='nt', order='inter', stagger=0, compute=True, kpat='quad', stamp=False,
        polk=None, polv=None, vgpr_force=None, lds_force=None, diag_hold=0):
    polk = pol if polk is None else polk
    polv = pol if polv is None else polv
    NT = 128 // W
    p = Prog()
    vKoff, vVoff, vT0, vT1, vM, vL, vAl, vMn = 1, 2, 3, 4, 5, 6, 7, 8
    vP = 12
    vQ = 16
    vS = 24
    vD = 32
    vO = 48
    vVt = 80
    vK = 112
    vV = vK + 32 * R
    vEnd = vV + 32 * R
    sK, sV, sQ, sO = 8, 12, 16, 20
    sOffA, sOffB, sCnt, sW, sC, sSelLo, sSelHi, sTmp, sStep = 24, 25, 26, 27, 28, 29, 30, 31, 32
    sH = 34

    def r4(b):
        return 'v[%d:%d]' % (b, b + 3)

    def fl(x):
        return (' ' + x) if x else ''

    def loadK(slot, j):
        so = sOffA if j < 4 else sOffB
        p('buffer_load_dwordx4 %s, v%d, s[%d:%d], s%d offen offset:%d%s' %
          (r4(vK + 32 * slot + 4 * j), vKoff, sK, sK + 3, so, (j & 3) * 1024, fl(polk)))

    def loadV(slot, j):
        so = sOffA if j < 4 else sOffB
        p('buffer_load_dwordx4 %s, v%d, s[%d:%d], s%d offen offset:%d%s' %
          (r4(vV + 32 * slot + 4 * j), vVoff, sV, sV + 3, so, (j & 3) * 1024, fl(polv)))

    def advance():
        p('s_add_u32 s%d, s%d, s%d' % (sOffA, sOffA, sStep))
        p('s_and_b32 s%d, s%d, 0xfffff' % (sOffA, sOffA))
        p('s_add_u32 s%d, s%d, 0x1000' % (sOffB, sOffA))
        p('s_and_b32 s%d, s%d, 0xfffff' % (sOffB, sOffB))

    p('s_cmp_ge_u32 s2, 256')
    p('s_cbranch_scc1 L_end')
    p('s_load_dwordx4 s[4:7], s[0:1], 0')
    p('s_load_dwordx4 s[36:39], s[0:1], 16')
    if stamp:
        p('s_load_dwordx2 s[44:45], s[0:1], 40')
    if stamp or diag_hold:
        p('s_memrealtime s[40:41]')
    p('v_lshrrev_b32 v%d, 6, v0' % vT0)
    p('v_and_b32 v0, 63, v0')
    p('v_readfirstlane_b32 s%d, v%d' % (sW, vT0))
    p('v_lshlrev_b32 v%d, 4, v0' % vVoff)
    if kpat == 'quad':
        p('v_lshrrev_b32 v%d, 4, v0' % vT0)
        p('v_lshlrev_b32 v%d, 6, v%d' % (vT0, vT0))
        p('v_bfe_u32 v%d, v0, 2, 2' % vT1)
        p('v_lshl_add_u32 v%d, v%d, 8, v%d' % (vT0, vT1, vT0))
        p('v_and_b32 v%d, 3, v0' % vT1)
        p('v_lshl_add_u32 v%d, v%d, 4, v%d' % (vKoff, vT1, vT0))
    elif kpat == 'lin':
        p('v_lshlrev_b32 v%d, 4, v0' % vKoff)
    p('v_and_b32 v%d, 7, v0' % vT0)
    p('v_lshlrev_b32 v%d, 8, v%d' % (vT0, vT0))
    p('v_lshrrev_b32 v%d, 4, v0' % vT1)
    p('v_lshl_add_u32 v%d, v%d, 6, v%d' % (vT0, vT1, vT0))
    p('v_bfe_u32 v%d, v0, 3, 1' % vT1)
    p('v_lshl_add_u32 v%d, v%d, 4, v%d' % (vT0, vT1, vT0))
    p('v_cmp_ne_u32 s[%d:%d], 0, v%d' % (sH, sH + 1, vT1))
    if order == 'inter':
        p('s_lshl_b32 s%d, s%d, 13' % (sOffA, sW))
        p('s_mov_b32 s%d, %d' % (sStep, W * 8192))
    else:
        p('s_mul_i32 s%d, s%d, %d' % (sOffA, sW, NT * 8192))
        p('s_mov_b32 s%d, 8192' % sStep)
    if stagger:
        p('s_mul_i32 s%d, s2, %d' % (sTmp, stagger))
        p('s_add_u32 s%d, s%d, s%d' % (sOffA, sOffA, sTmp))
        p('s_and_b32 s%d, s%d, 0xfffff' % (sOffA, sOffA))
    p('s_add_u32 s%d, s%d, 0x1000' % (sOffB, sOffA))
    p('s_and_b32 s%d, s%d, 0xfffff' % (sOffB, sOffB))
    p('s_lshl_b32 s%d, s2, 20' % sTmp)
    p('s_lshl_b32 s3, s2, 11')
    p('s_mov_b32 s%d, 0x100000' % (sK + 2))
    p('s_mov_b32 s%d, 0x20000' % (sK + 3))
    p('s_mov_b32 s%d, 0x100000' % (sV + 2))
    p('s_mov_b32 s%d, 0x20000' % (sV + 3))
    p('s_mov_b32 s%d, 2048' % (sQ + 2))
    p('s_mov_b32 s%d, 0x20000' % (sQ + 3))
    p('s_mov_b32 s%d, 2048' % (sO + 2))
    p('s_mov_b32 s%d, 0x20000' % (sO + 3))
    p('s_waitcnt lgkmcnt(0)')
    p('s_add_u32 s%d, s6, s%d' % (sK, sTmp))
    p('s_addc_u32 s%d, s7, 0' % (sK + 1))
    p('s_add_u32 s%d, s4, s3' % sQ)
    p('s_addc_u32 s%d, s5, 0' % (sQ + 1))
    p('s_add_u32 s%d, s36, s%d' % (sV, sTmp))
    p('s_addc_u32 s%d, s37, 0' % (sV + 1))
    p('buffer_load_dwordx4 %s, v%d, s[%d:%d], 0 offen' % (r4(vQ), vT0, sQ, sQ + 3))
    p('buffer_load_dwordx4 %s, v%d, s[%d:%d], 0 offen offset:32' % (r4(vQ + 4), vT0, sQ, sQ + 3))
    for sl in range(R):
        for j in range(8):
            loadK(sl, j)
        for j in range(8):
            loadV(sl, j)
        advance()
    p('s_add_u32 s%d, s38, s3' % sO)
    p('s_addc_u32 s%d, s39, 0' % (sO + 1))
    c = math.log2(math.e) / math.sqrt(128.0)
    p('s_mov_b32 s%d, 0x%08x' % (sC, f32bits(c)))
    p('s_mov_b32 s%d, 0x05040100' % sSelLo)
    p('s_mov_b32 s%d, 0x07060302' % sSelHi)
    p('v_mov_b32 v%d, 0xff800000' % vM)
    p('v_mov_b32 v%d, 0' % vL)
    for i in range(32):
        p('v_mov_b32 v%d, 0' % (vO + i))

    def fixup(j):
        d = vD + 8 * (j & 1)
        p('v_add_f32 v%d, v%d, v%d' % (vT0, d + 0, d + 6))
        p('v_add_f32 v%d, v%d, v%d' % (vT1, d + 1, d + 7))
        p('v_cndmask_b32 v%d, v%d, v%d, s[%d:%d]' % (vS + j, vT0, vT1, sH, sH + 1))

    def fixup2(j):
        p('v_add_f32_dpp v%d, v%d, v%d row_ror:8 row_mask:0xf bank_mask:0xf' % (vS + j, vS + j, vS + j))

    def tile(slot, pref, rem):
        for j in range(8):
            n = (16 * R - 1) if pref else (16 * rem + 8 + 7 - j)
            p('s_waitcnt vmcnt(%d)' % n)
            if compute:
                d = vD + 8 * (j & 1)
                p('v_mfma_f32_16x16x32_bf16 %s, %s, %s, 0' % (r4(d), r4(vK + 32 * slot + 4 * j), r4(vQ)))
                p('v_mfma_f32_16x16x32_bf16 %s, %s, %s, 0' % (r4(d + 4), r4(vK + 32 * slot + 4 * j), r4(vQ + 4)))
            if pref:
                loadK(slot, j)
            if compute:
                if j >= 2:
                    fixup2(j - 2)
                if j >= 1:
                    fixup(j - 1)
        if compute:
            fixup2(6)
            fixup(7)
            p('v_max3_f32 v%d, v%d, v%d, v%d' % (vT0, vS, vS + 1, vS + 2))
            p('v_max3_f32 v%d, v%d, v%d, v%d' % (vT0, vT0, vS + 3, vS + 4))
            fixup2(7)
            p('v_max3_f32 v%d, v%d, v%d, v%d' % (vT0, vT0, vS + 5, vS + 6))
            p('v_max_f32 v%d, v%d, v%d' % (vT0, vT0, vS + 7))
            p('v_mov_b32 v%d, v%d' % (vT1, vT0))
            p('v_permlane32_swap_b32 v%d, v%d' % (vT0, vT1))
            p('v_max_f32 v%d, v%d, v%d' % (vT0, vT0, vT1))
            p('v_mov_b32 v%d, v%d' % (vT1, vT0))
            p('v_permlane16_swap_b32 v%d, v%d' % (vT0, vT1))
            p('v_max_f32 v%d, v%d, v%d' % (vT0, vT0, vT1))
            p('v_mul_f32 v%d, s%d, v%d' % (vT0, sC, vT0))
            p('v_max_f32 v%d, v%d, v%d' % (vMn, vM, vT0))
            p('v_sub_f32 v%d, v%d, v%d' % (vAl, vM, vMn))
            p('v_mov_b32 v%d, v%d' % (vM, vMn))
            p('v_exp_f32 v%d, v%d' % (vAl, vAl))
            for j in range(8):
                p('v_fma_f32 v%d, v%d, s%d, -v%d' % (vS + j, vS + j, sC, vMn))
            for j in range(8):
                p('v_exp_f32 v%d, v%d' % (vS + j, vS + j))
            p('v_mul_f32 v%d, v%d, v%d' % (vL, vL, vAl))
            for i in range(32):
                p('v_mul_f32 v%d, v%d, v%d' % (vO + i, vO + i, vAl))
            for w in range(4):
                p('v_cvt_pk_bf16_f32 v%d, v%d, v%d' % (vP + w, vS + 2 * w, vS + 2 * w + 1))
            p('v_add_f32 v%d, v%d, v%d' % (vT0, vS, vS + 1))
            p('v_add_f32 v%d, v%d, v%d' % (vT1, vS + 2, vS + 3))
            p('v_add_f32 v%d, v%d, v%d' % (vT0, vT0, vS + 4))
            p('v_add_f32 v%d, v%d, v%d' % (vT1, vT1, vS + 5))
            p('v_add_f32 v%d, v%d, v%d' % (vT0, vT0, vS + 6))
            p('v_add_f32 v%d, v%d, v%d' % (vT1, vT1, vS + 7))
            p('v_add_f32 v%d, v%d, v%d' % (vL, vL, vT0))
            p('v_add_f32 v%d, v%d, v%d' % (vL, vL, vT1))
        for w in range(4):
            n = (16 * R - 2) if pref else (16 * rem + 6 - 2 * w)
            p('s_waitcnt vmcnt(%d)' % n)
            if compute:
                a = vV + 32 * slot + 8 * w
                for u in range(4):
                    p('v_perm_b32 v%d, v%d, v%d, s%d' % (vVt + 8 * u + w, a + 4 + u, a + u, sSelLo))
                    p('v_perm_b32 v%d, v%d, v%d, s%d' % (vVt + 8 * u + 4 + w, a + 4 + u, a + u, sSelHi))
            if pref:
                loadV(slot, 2 * w)
                loadV(slot, 2 * w + 1)
        if pref:
            advance()
        if compute:
            for m in range(8):
                p('v_mfma_f32_16x16x32_bf16 %s, %s, %s, %s' % (r4(vO + 4 * m), r4(vVt + 4 * m), r4(vP), r4(vO + 4 * m)))

    assert (NT - R) % R == 0
    iters = (NT - R) // R
    p('s_mov_b32 s%d, %d' % (sCnt, iters))
    p('.p2align 3')
    p.label('L_loop')
    for sl in range(R):
        tile(sl, True, 0)
    p('s_sub_u32 s%d, s%d, 1' % (sCnt, sCnt))
    p('s_cmp_lg_u32 s%d, 0' % sCnt)
    p('s_cbranch_scc1 L_loop')
    for sl in range(R):
        tile(sl, False, R - 1 - sl)

    QS, MS, WS = 656, 80, 8 * 656
    ML = W * WS
    lds = ML + 8 * W * 8
    if compute:
        p('v_mov_b32 v%d, v%d' % (vT1, vL))
        p('v_permlane32_swap_b32 v%d, v%d' % (vL, vT1))
        p('v_add_f32 v%d, v%d, v%d' % (vL, vL, vT1))
        p('v_mov_b32 v%d, v%d' % (vT1, vL))
        p('v_permlane16_swap_b32 v%d, v%d' % (vL, vT1))
        p('v_add_f32 v%d, v%d, v%d' % (vMn + 1, vL, vT1))
        p('v_mov_b32 v%d, v%d' % (vMn, vM))
        p('v_and_b32 v%d, 7, v0' % vT0)
        p('s_mul_i32 s%d, s%d, %d' % (sTmp, sW, WS))
        p('v_mul_u32_u24 v%d, %d, v%d' % (vAl, QS, vT0))
        p('v_lshrrev_b32 v%d, 4, v0' % vT1)
        p('v_lshl_add_u32 v%d, v%d, 4, v%d' % (vAl, vT1, vAl))
        p('v_add_u32 v%d, s%d, v%d' % (vAl, sTmp, vAl))
        p('s_lshl_b32 s%d, s%d, 3' % (sTmp, sW))
        p('s_add_u32 s%d, s%d, %d' % (sTmp, sTmp, ML))
        p('v_mul_u32_u24 v%d, %d, v%d' % (vT0, W * 8, vT0))
        p('v_add_u32 v%d, s%d, v%d' % (vT0, sTmp, vT0))
        p('s_andn2_b64 exec, exec, s[%d:%d]' % (sH, sH + 1))
        for m in range(8):
            p('ds_write_b128 v%d, %s offset:%d' % (vAl, r4(vO + 4 * m), m * MS))
        p('ds_write_b64 v%d, v[%d:%d]' % (vT0, vMn, vMn + 1))
        p('s_mov_b64 exec, -1')
        p('s_waitcnt lgkmcnt(0)')
        p('s_barrier')
        rows = max(1, 8 // W)
        if W > 8:
            p('s_cmp_ge_u32 s%d, 8' % sW)
            p('s_cbranch_scc1 L_fin')
        vA = vVt
        vR = vK
        for rr in range(rows):
            p('s_mul_i32 s%d, s%d, %d' % (sCnt, sW, rows))
            if rr:
                p('s_add_u32 s%d, s%d, %d' % (sCnt, sCnt, rr))
            p('s_mul_i32 s%d, s%d, %d' % (sTmp, sCnt, W * 8))
            p('s_add_u32 s%d, s%d, %d' % (sTmp, sTmp, ML))
            p('v_mov_b32 v%d, s%d' % (vT0, sTmp))
            for i in range(W // 2):
                p('ds_read_b128 %s, v%d offset:%d' % (r4(vA + 4 * i), vT0, 16 * i))
            p('s_mul_i32 s%d, s%d, %d' % (sTmp, sCnt, QS))
            p('v_and_b32 v%d, 3, v0' % vT0)
            p('v_mul_u32_u24 v%d, %d, v%d' % (vT0, 2 * MS, vT0))
            p('v_lshrrev_b32 v%d, 2, v0' % vT1)
            p('v_lshl_add_u32 v%d, v%d, 2, v%d' % (vT0, vT1, vT0))
            p('v_add_u32 v%d, s%d, v%d' % (vT0, sTmp, vT0))
            for w in range(W):
                if w:
                    p('v_add_u32 v%d, %d, v%d' % (vT0, WS, vT0))
                p('ds_read2_b32 v[%d:%d], v%d offset0:0 offset1:%d' % (vR + 2 * w, vR + 2 * w + 1, vT0, MS // 4))
            p('s_waitcnt lgkmcnt(%d)' % min(W, 15))
            p('v_max_f32 v%d, v%d, v%d' % (vT1, vA, vA + 2))
            for w in range(2, W):
                p('v_max_f32 v%d, v%d, v%d' % (vT1, vT1, vA + 2 * w))
            for w in range(W):
                p('v_sub_f32 v%d, v%d, v%d' % (vA + 2 * w, vA + 2 * w, vT1))
            for w in range(W):
                p('v_exp_f32 v%d, v%d' % (vA + 2 * w, vA + 2 * w))
            p('v_mul_f32 v%d, v%d, v%d' % (vL, vA, vA + 1))
            for w in range(1, W):
                p('v_fmac_f32 v%d, v%d, v%d' % (vL, vA + 2 * w, vA + 2 * w + 1))
            p('v_rcp_f32 v%d, v%d' % (vL, vL))
            p('s_waitcnt lgkmcnt(0)')
            p('v_mul_f32 v%d, v%d, v%d' % (vM, vA, vR))
            p('v_mul_f32 v%d, v%d, v%d' % (vAl, vA, vR + 1))
            for w in range(1, W):
                p('v_fmac_f32 v%d, v%d, v%d' % (vM, vA + 2 * w, vR + 2 * w))
                p('v_fmac_f32 v%d, v%d, v%d' % (vAl, vA + 2 * w, vR + 2 * w + 1))
            p('v_mul_f32 v%d, v%d, v%d' % (vM, vM, vL))
            p('v_mul_f32 v%d, v%d, v%d' % (vAl, vAl, vL))
            p('v_cvt_pk_bf16_f32 v%d, v%d, v%d' % (vM, vM, vAl))
            p('s_lshl_b32 s%d, s%d, 8' % (sTmp, sCnt))
            p('v_lshlrev_b32 v%d, 2, v0' % vT0)
            p('buffer_store_dword v%d, v%d, s[%d:%d], s%d offen' % (vM, vT0, sO, sO + 3, sTmp))
        p.label('L_fin')
    if diag_hold:
        p.label('L_hold')
        p('s_sleep 1')
        p('s_memrealtime s[42:43]')
        p('s_waitcnt lgkmcnt(0)')
        p('s_sub_u32 s42, s42, s40')
        p('s_cmp_lt_u32 s42, %d' % (diag_hold * 100))
        p('s_cbranch_scc1 L_hold')
    if stamp:
        p('s_memrealtime s[42:43]')
        p('s_getreg_b32 s46, hwreg(HW_REG_XCC_ID)')
        p('s_getreg_b32 s47, hwreg(HW_REG_HW_ID)')
        p('s_waitcnt lgkmcnt(0)')
        p('s_mul_i32 s%d, s2, %d' % (sTmp, W))
        p('s_add_u32 s%d, s%d, s%d' % (sTmp, sTmp, sW))
        p('s_lshl_b32 s%d, s%d, 5' % (sTmp, sTmp))
        p('v_mov_b32 v%d, s%d' % (vT0, sTmp))
        for i, s in enumerate((40, 41, 42, 43)):
            p('v_mov_b32 v%d, s%d' % (vVt + i, s))
        p('v_mov_b32 v%d, s46' % (vVt + 4))
        p('v_mov_b32 v%d, s47' % (vVt + 5))
        p('s_mov_b64 exec, 1')
        p('global_store_dwordx4 v%d, %s, s[44:45]' % (vT0, r4(vVt)))
        p('global_store_dwordx2 v%d, v[%d:%d], s[44:45] offset:16' % (vT0, vVt + 4, vVt + 5))
    p.label('L_end')
    p('s_endpgm')
    p.fix_hazards()
    mv, ma, ms = p.max_regs()
    nv = vgpr_force or (mv + 1)
    acc = min(256, (nv + 3) // 4 * 4)
    if lds_force:
        lds = max(lds, lds_force)
    txt = HEADER + '; @launch grid=(256,1,1) block=(%d,1,1) lds=%d\n' % (64 * W, lds)
    txt += '.amdgcn_target "amdgcn-amd-amdhsa--gfx950"\n.text\n.globl %s\n.p2align 8\n.type %s,@function\n%s:\n' % (
        KNAME, KNAME, KNAME)
    txt += p.text()
    txt += """.section .rodata,"a"
.p2align 6
.amdhsa_kernel %s
  .amdhsa_next_free_vgpr %d
  .amdhsa_next_free_sgpr %d
  .amdhsa_accum_offset %d
  .amdhsa_group_segment_fixed_size 0
  .amdhsa_kernarg_size 48
  .amdhsa_user_sgpr_count 2
  .amdhsa_user_sgpr_kernarg_segment_ptr 1
  .amdhsa_system_sgpr_workgroup_id_x 1
.end_amdhsa_kernel
""" % (KNAME, nv, ms + 1, acc)
    return txt


if __name__ == '__main__':
    kw = {}
    out = sys.argv[1]
    for a in sys.argv[2:]:
        k, v = a.split('=')
        try:
            v = int(v, 0)
        except ValueError:
            pass
        kw[k] = v
    open(out, 'w').write(gen(**kw))
```

```python
import math
import sys
sys.path.insert(0, 'work')
from asmlib import Prog
from gen_attn import HEADER, KNAME, f32bits


def gen(W=2, N=10, nlo=None, nhi=None, pol='nt', grp=4, stamp=0, opol='', diag_hold=0, stagger=0,
        ctl=0, I=4, G=64, umax=3, first=2, tailn=0, tailb=0, n0=0, n0b=1, step=1, lastgap=4, probe='', altk=0, altv=0, NV=0, polv=None, pat='', chk='', loc='dbg', gst=1, act=1, R=12, sat=1, rot=0, NH=0, wsoff=0x400000):
    NV = NV or N
    nlo = min(N, NV) if nlo is None else nlo
    nhi = max(N, NV) if nhi is None else nhi
    nhi = max(nhi, tailn, n0, N + (1 if altk else 0), NV + (1 if altv else 0))
    dyn = nhi > nlo
    helper = bool(ctl or probe or chk)
    static = dyn and not helper
    L = 1024 // W
    IT = L // 16
    NW = W + (1 if helper else 0)
    PATS = {
        'B': '100 200 400 800 1000 2000 4000 8000 10000 20000 40000 80000 0 0 0 0 0 0 0 0',
        'C2': '100 200 800 8000 1000 2000 4000 10000 20000 40000 80000 400 0 0 0 0 0 0 0 0',
        'S1': '2000 100 400 8100 1000 200 800 10200 80000 20000 40800 4000 0 0 0 0 0 0 0 0',
        'S2': '2000 4000 8100 200 1000 100 800 10000 80000 20000 400 40800 0 0 0 0 0 0 0 0',
        'F2': 'a00 1b000 8b00 72b00 12000 1e000 8800 11300 c9200 4b000 94100 43f00 70000 18800 ac000 6800 95800 48000 b000 69000',
        'F': '8800 a00 1ba00 8b00 72b00 12000 1e000 11300 c9200 4b000 9c900 43f00 70000 1c800 be000 6800 9d800 48000 b000 79800',
    }
    rt = pat == 'rt'
    if pat:
        pm = [int(x, 16) for x in PATS.get('B' if rt else pat, pat.replace('_', ' ')).split()]
        lw, lj = int(math.log2(W)), int(math.log2(grp))
        mL, mW, mS = pm[0:2], pm[2 + lj:2 + lj + lw], pm[12:20]
        seq = pm[2:2 + lj] + pm[2 + lj + lw:12]
        mJ, mT = seq[:4], seq[4:]
        assert 1 << len(mT) == IT

        def dep(x, ms):
            r = 0
            for k, m in enumerate(ms):
                if x >> k & 1:
                    r ^= m
            return r
    p = Prog()
    vBase, vAd = 182, 183
    sFix, sNx, sBi = 60, 61, 62
    vKoff, vVoff, vT0, vT1, vM, vL, vSa = 1, 2, 3, 4, 5, 6, 7
    vAB = 8
    vP = 12
    vQ = 16
    vS = 24
    vD = 32
    vVt = 48
    vO = 80
    vR = 112
    vMA, vMB, vCtl, vCnt, vTg = 176, 177, 178, 179, 180
    sX, sQ, sO = 8, 16, 20
    sOff, sOff0, sCnt, sW, sC, sSelLo, sSelHi, sTmp, sTgt = 24, 25, 26, 27, 28, 29, 30, 31, 32
    sVb = 12
    sH = 34
    fl = (' ' + pol.replace('+', ' ')) if pol else ''
    ofl = (' ' + opol.replace('+', ' ')) if opol else ''
    QS, MS = 656, 80
    HS = 8 * QS
    WS = 131072 // W
    ML = 131072 + 2048
    CT = ML + 64 * W
    lds = CT + 16

    def r4(b):
        return 'v[%d:%d]' % (b, b + 3)

    def mark(k):
        if stamp > 1:
            p('s_memrealtime s[%d:%d]' % (50 + 2 * k, 51 + 2 * k))

    def issue(j):
        if pat:
            c = dep(j % 16, mJ)
            va = vBase
            if rt:
                va = vAd + (j & 1)
                p('v_xor_b32 v%d, s%d, v%d' % (va, 64 + j % 16, vBase))
            elif c:
                va = vAd + (j & 1)
                p('v_xor_b32 v%d, 0x%x, v%d' % (va, c, vBase))
            p('buffer_load_dwordx4 %s, v%d, s[%d:%d], 0 offen%s' % (r4(vR + 4 * (j % 16)), va, sX, sX + 3, fl))
            return
        p('buffer_load_dwordx4 %s, v%d, s[%d:%d], s%d offen offset:%d%s' %
          (r4(vR + 4 * (j % 16)), vKoff, sX, sX + 3, sOff, (j % grp) * 1024, fl))
        if j % grp == grp - 1:
            p('s_add_u32 s%d, s%d, %d' % (sOff, sOff, W * grp * 1024))
            if stagger:
                p('s_and_b32 s%d, s%d, 0xfffff' % (sOff, sOff))

    p('s_cmp_ge_u32 s2, 256')
    p('s_cbranch_scc1 L_end')
    p('s_load_dwordx4 s[4:7], s[0:1], 0')
    p('s_load_dwordx4 s[36:39], s[0:1], 16')
    if helper:
        p('s_load_dwordx2 s[48:49], s[0:1], 32')
    if stamp:
        p('s_load_dwordx2 s[44:45], s[0:1], 40')
    if stamp or diag_hold:
        p('s_memrealtime s[40:41]')
    p('v_lshrrev_b32 v%d, 6, v0' % vT0)
    p('v_and_b32 v0, 63, v0')
    p('v_readfirstlane_b32 s%d, v%d' % (sW, vT0))
    p('v_lshlrev_b32 v%d, 4, v0' % vVoff)
    p('v_mov_b32 v%d, v%d' % (vSa, vVoff))
    if helper:
        p('v_mov_b32 v%d, %d' % (vCtl, CT))
        p('s_cmp_eq_u32 s%d, %d' % (sW, W))
        p('s_cbranch_scc1 L_helper')
    p('v_lshrrev_b32 v%d, 4, v0' % vT0)
    p('v_lshlrev_b32 v%d, 6, v%d' % (vT0, vT0))
    if pat:
        p('v_and_b32 v%d, 0xf0, v%d' % (vVoff, vVoff))
        p('v_mov_b32 v%d, v%d' % (vKoff, vT0))
        for k in range(2):
            p('v_bfe_i32 v%d, v0, %d, 1' % (vT1, 2 + k))
            p('v_and_b32 v%d, 0x%x, v%d' % (vT1, mL[k], vT1))
            p('v_xor_b32 v%d, v%d, v%d' % (vKoff, vKoff, vT1))
            p('v_bfe_i32 v%d, v0, %d, 1' % (vT1, 4 + k))
            p('v_and_b32 v%d, 0x%x, v%d' % (vT1, mL[k], vT1))
            p('v_xor_b32 v%d, v%d, v%d' % (vVoff, vVoff, vT1))
    else:
        p('v_bfe_u32 v%d, v0, 2, 2' % vT1)
        p('v_lshl_add_u32 v%d, v%d, 8, v%d' % (vKoff, vT1, vT0))
    p('v_and_b32 v%d, 3, v0' % vT1)
    p('v_lshl_add_u32 v%d, v%d, 4, v%d' % (vKoff, vT1, vKoff))
    p('v_and_b32 v%d, 7, v0' % vT1)
    p('v_lshl_add_u32 v%d, v%d, 8, v%d' % (vT0, vT1, vT0))
    p('v_bfe_u32 v%d, v0, 3, 1' % vT1)
    p('v_lshl_add_u32 v%d, v%d, 4, v%d' % (vT0, vT1, vT0))
    p('v_cmp_ne_u32 s[%d:%d], 0, v%d' % (sH, sH + 1, vT1))
    p('s_mul_i32 s%d, s%d, %d' % (sOff0, sW, grp * 1024))
    if stagger:
        p('s_mul_i32 s3, s2, %d' % stagger)
        p('s_add_u32 s%d, s%d, s3' % (sOff0, sOff0))
        p('s_and_b32 s%d, s%d, 0xfffff' % (sOff0, sOff0))
    p('s_mov_b32 s%d, s%d' % (sOff, sOff0))
    if pat:
        p('s_mov_b32 s%d, 0' % sFix)
        for src, ms in ((sW, mW), (2, mS)):
            for k, m in enumerate(ms):
                if m:
                    p('s_bitcmp1_b32 s%d, %d' % (src, k))
                    p('s_cselect_b32 s3, 0x%x, 0' % m)
                    p('s_xor_b32 s%d, s%d, s3' % (sFix, sFix))
        p('s_mov_b32 s%d, 0' % sBi)
        p('v_xor_b32 v%d, s%d, v%d' % (vBase, sFix, vKoff))
    p('s_lshl_b32 s%d, s2, 20' % sTmp)
    p('s_lshl_b32 s3, s2, 11')
    for s, n in ((sX, 0x100000), (sQ, 2048), (sO, 2048)):
        p('s_mov_b32 s%d, 0x%x' % (s + 2, n))
        p('s_mov_b32 s%d, 0x20000' % (s + 3))
    p('s_waitcnt lgkmcnt(0)')
    mark(0)
    if rt:
        p('s_add_u32 s46, s44, 0x200000')
        p('s_addc_u32 s47, s45, 0')
        p('s_mul_i32 s63, s2, %d' % W)
        p('s_add_u32 s63, s63, s%d' % sW)
        p('s_lshl_b32 s63, s63, 2')
        p('s_load_dword s%d, s[46:47], s63' % sFix)
        p('s_load_dwordx16 s[64:79], s[46:47], 0x1000')
        p('s_load_dword s80, s[46:47], 0x1104')
        p('v_lshlrev_b32 v%d, 2, v0' % vT1)
        p('v_add_u32 v%d, 0x1800, v%d' % (vT1, vT1))
        p('global_load_dword v%d, v%d, s[46:47]' % (vVoff, vT1))
        p('global_load_dword v%d, v%d, s[46:47] offset:256' % (vKoff, vT1))
        p('s_waitcnt vmcnt(0) lgkmcnt(0)')
        p('s_memrealtime s[40:41]')
        p('v_xor_b32 v%d, s%d, v%d' % (vBase, sFix, vKoff))
    p('s_add_u32 s%d, s6, s%d' % (sX, sTmp))
    p('s_addc_u32 s%d, s7, 0' % (sX + 1))
    p('s_add_u32 s%d, s4, s3' % sQ)
    p('s_addc_u32 s%d, s5, 0' % (sQ + 1))
    p('buffer_load_dwordx4 %s, v%d, s[%d:%d], 0 offen' % (r4(vQ), vT0, sQ, sQ + 3))
    p('buffer_load_dwordx4 %s, v%d, s[%d:%d], 0 offen offset:32' % (r4(vQ + 4), vT0, sQ, sQ + 3))
    NS = n0 or N
    for j in range(NS):
        issue(j)
    p('s_add_u32 s%d, s36, s%d' % (sVb, sTmp))
    p('s_addc_u32 s%d, s37, 0' % (sVb + 1))
    p('s_add_u32 s%d, s38, s3' % sO)
    p('s_addc_u32 s%d, s39, 0' % (sO + 1))
    c = math.log2(math.e) / math.sqrt(128.0)
    p('s_mov_b32 s%d, 0x%08x' % (sC, f32bits(c)))
    p('s_mov_b32 s%d, 0x05040100' % sSelLo)
    p('s_mov_b32 s%d, 0x07060302' % sSelHi)
    p('s_mul_i32 s%d, s%d, %d' % (sTmp, sW, WS))
    p('v_add_u32 v%d, s%d, v%d' % (vSa, sTmp, vSa))
    p('v_mov_b32 v%d, 0xff800000' % vM)
    p('v_mov_b32 v%d, 0' % vL)
    p('v_cndmask_b32 v%d, -1, 0, s[%d:%d]' % (vMA, sH, sH + 1))
    p('v_cndmask_b32 v%d, 0, -1, s[%d:%d]' % (vMB, sH, sH + 1))
    for i in range(32):
        p('v_mov_b32 v%d, 0' % (vO + i))
    if helper:
        p('v_mov_b32 v%d, 0' % vCnt)
        p('s_lshl_b32 s%d, s%d, 2' % (sTmp, sW))
        p('v_add_u32 v%d, s%d, v%d' % (vTg + 1, sTmp, vCtl))
        p('s_barrier')
    if stamp > 1:
        p('s_waitcnt vmcnt(%d)' % (NS - 1))
        mark(1)
        p('s_waitcnt lgkmcnt(0)')
    p('s_mov_b32 s%d, %d' % (sCnt, IT))
    p('s_branch L_K%d' % NS)

    def ab(i):
        d, t = vD + 8 * (i & 1), vAB + 2 * (i & 1)
        p('v_add_f32 v%d, v%d, v%d' % (t, d + 0, d + 6))
        p('v_add_f32 v%d, v%d, v%d' % (t + 1, d + 1, d + 7))

    def dpp(i):
        t = vAB + 2 * (i & 1)
        if i < 8:
            p('v_add_f32_dpp v%d, v%d, v%d row_ror:8 row_mask:0xf bank_mask:0x3' % (vS + i, t + 1, t))
        else:
            p('v_add_f32_dpp v%d, v%d, v%d row_ror:8 row_mask:0xf bank_mask:0xc' % (vS + i - 8, t, t + 1))

    def head(ph, n, i):
        p('s_waitcnt vmcnt(%d)' % (n - 1))
        if i + n == 16:
            p('s_cmp_eq_u32 s%d, 1' % sCnt)
            if ph == 'K':
                p('s_cselect_b32 s%d, s%d, s%d' % (sX, sVb, sX))
                p('s_cselect_b32 s%d, s%d, s%d' % (sX + 1, sVb + 1, sX + 1))
                if not pat:
                    p('s_cselect_b32 s%d, s%d, s%d' % (sOff, sOff0, sOff))
                p('s_cselect_b64 vcc, -1, 0')
                p('v_cndmask_b32 v%d, v%d, v%d, vcc' % (vKoff, vKoff, vVoff))
            else:
                p('s_cselect_b32 s%d, 0, s%d' % (sX + 2, sX + 2))
            if pat:
                p('v_xor_b32 v%d, s%d, v%d' % (vBase, sNx, vKoff))
        issue(i + n)
        if i == 0:
            p.label('L_%s%d_a' % (ph, n))
            if pat:
                p('s_add_u32 s%d, s%d, 1' % (sBi, sBi))
                if rt:
                    p('s_xor_b32 s%d, s%d, s80' % (sNx, sFix))
                    p('s_lshl_b32 s3, s%d, 2' % sBi)
                    p('s_add_u32 s3, s3, 0x1104')
                    p('s_load_dword s80, s[46:47], s3')
                else:
                    p('s_mov_b32 s%d, s%d' % (sNx, sFix))
                for k, m in enumerate([] if rt else mT):
                    p('s_bitcmp1_b32 s%d, %d' % (sBi, k))
                    p('s_cselect_b32 s3, 0x%x, 0' % m)
                    p('s_xor_b32 s%d, s%d, s3' % (sNx, sNx))

    def ctl_read():
        if helper:
            p('ds_read_b32 v%d, v%d' % (vTg, vCtl))

    def ctl_take():
        if helper:
            p('v_readfirstlane_b32 s%d, v%d' % (sTgt, vTg))

    def tail(ph, n, exit_label):
        if helper:
            p('v_add_u32 v%d, 1, v%d' % (vCnt, vCnt))
            p('ds_write_b32 v%d, v%d offset:4' % (vTg + 1, vCnt))
        p('s_sub_u32 s%d, s%d, 1' % (sCnt, sCnt))
        if static:
            nb, alt = (N, altk) if ph == 'K' else (NV, altv)
            if alt:
                p('s_mov_b32 s%d, 0x%x' % (sTmp, alt))
                p('s_bitcmp1_b32 s%d, s%d' % (sTmp, sCnt))
                p('s_cselect_b32 s%d, %d, %d' % (sTgt, nb + 1, nb))
            else:
                p('s_mov_b32 s%d, %d' % (sTgt, nb))
            if ph == 'V' and tailn:
                p('s_cmp_le_u32 s%d, %d' % (sCnt, tailb))
                p('s_cselect_b32 s%d, %d, s%d' % (sTgt, tailn, sTgt))
        if not dyn:
            p('s_cmp_lg_u32 s%d, 0' % sCnt)
            p('s_cbranch_scc1 L_%s%d' % (ph, n))
            p('s_branch %s' % exit_label)
            return
        p('s_cmp_eq_u32 s%d, 0' % sCnt)
        p('s_cbranch_scc1 %s' % exit_label)
        if n < nhi:
            p('s_cmp_gt_u32 s%d, %d' % (sTgt, n))
            p('s_cbranch_scc1 L_%s%d_up' % (ph, n))
        if n > nlo:
            p('s_cmp_ge_u32 s%d, %d' % (sTgt, n))
            p('s_cbranch_scc1 L_%s%d' % (ph, n))
            p('s_waitcnt vmcnt(%d)' % (n - 1))
            p('s_branch L_%s%d_a' % (ph, n - 1))
        else:
            p('s_branch L_%s%d' % (ph, n))
        if n < nhi:
            p.label('L_%s%d_up' % (ph, n))
            issue(n)
            p('s_branch L_%s%d' % (ph, n + 1))

    def kbody(n):
        p('.p2align 3')
        p.label('L_K%d' % n)
        for i in range(16):
            head('K', n, i)
            d = vD + 8 * (i & 1)
            p('v_mfma_f32_16x16x32_bf16 %s, %s, %s, 0' % (r4(d), r4(vR + 4 * i), r4(vQ)))
            p('v_mfma_f32_16x16x32_bf16 %s, %s, %s, 0' % (r4(d + 4), r4(vR + 4 * i), r4(vQ + 4)))
            if i >= 2:
                dpp(i - 2)
            if i >= 1:
                ab(i - 1)
            if i == 12:
                ctl_read()
            if i == 14 and (helper or rt):
                p('s_waitcnt lgkmcnt(0)')
                ctl_take()
        dpp(14)
        ab(15)
        p('v_max3_f32 v%d, v%d, v%d, v%d' % (vM, vM, vS, vS + 1))
        p('v_max3_f32 v%d, v%d, v%d, v%d' % (vM, vM, vS + 2, vS + 3))
        dpp(15)
        p('ds_write_b128 v%d, %s' % (vSa, r4(vS)))
        p('v_max3_f32 v%d, v%d, v%d, v%d' % (vM, vM, vS + 4, vS + 5))
        p('v_max3_f32 v%d, v%d, v%d, v%d' % (vM, vM, vS + 6, vS + 7))
        p('ds_write_b128 v%d, %s offset:1024' % (vSa, r4(vS + 4)))
        p('v_add_u32 v%d, 2048, v%d' % (vSa, vSa))
        tail('K', n, 'L_T%d' % n)

    def trans(n):
        p.label('L_T%d' % n)
        p('v_subrev_u32 v%d, %d, v%d' % (vSa, IT * 2048, vSa))
        mark(2)
        p('s_waitcnt lgkmcnt(0)')
        p('ds_read_b128 %s, v%d' % (r4(vS), vSa))
        p('ds_read_b128 %s, v%d offset:1024' % (r4(vS + 4), vSa))
        p('v_max_f32_dpp v%d, v%d, v%d row_ror:8 row_mask:0xf bank_mask:0xf' % (vM, vM, vM))
        p('s_mov_b32 s%d, %d' % (sCnt, IT))
        p('v_mov_b32 v%d, v%d' % (vT1, vM))
        p('v_permlane32_swap_b32 v%d, v%d' % (vM, vT1))
        p('v_max_f32 v%d, v%d, v%d' % (vM, vM, vT1))
        p('v_mov_b32 v%d, v%d' % (vT1, vM))
        p('v_permlane16_swap_b32 v%d, v%d' % (vM, vT1))
        p('v_max_f32 v%d, v%d, v%d' % (vM, vM, vT1))
        p('v_mul_f32 v%d, s%d, v%d' % (vM, sC, vM))
        p('s_waitcnt lgkmcnt(0)')

    def vbody(n):
        extra = {i: [] for i in range(16)}
        extra[0] += ['v_fma_f32 v%d, v%d, s%d, -v%d' % (vS + e, vS + e, sC, vM) for e in range(8)]
        extra[0] += ['v_exp_f32 v%d, v%d' % (vS + e, vS + e) for e in range(4)]
        extra[2] += ['v_exp_f32 v%d, v%d' % (vS + e, vS + e) for e in range(4, 8)]
        extra[2] += ['v_add_f32 v%d, v%d, v%d' % (vT0, vS, vS + 1), 'v_add_f32 v%d, v%d, v%d' % (vT1, vS + 2, vS + 3)]
        extra[4] += ['v_cvt_pk_bf16_f32 v%d, v%d, v%d' % (vP + w, vS + 2 * w, vS + 2 * w + 1) for w in range(4)]
        extra[4] += ['v_add_f32 v%d, v%d, v%d' % (vT0, vT0, vS + 4), 'v_add_f32 v%d, v%d, v%d' % (vT1, vT1, vS + 5),
                     'v_add_f32 v%d, v%d, v%d' % (vT0, vT0, vS + 6), 'v_add_f32 v%d, v%d, v%d' % (vT1, vT1, vS + 7),
                     'v_add_f32 v%d, v%d, v%d' % (vL, vL, vT0), 'v_add_f32 v%d, v%d, v%d' % (vL, vL, vT1)]
        extra[6] += ['v_add_u32 v%d, 2048, v%d' % (vSa, vSa),
                     'ds_read_b128 %s, v%d' % (r4(vS), vSa),
                     'ds_read_b128 %s, v%d offset:1024' % (r4(vS + 4), vSa)]
        extra[6] += ['v_and_b32 v%d, v%d, v%d' % (vQ + w, vMA, vP + w) for w in range(4)]
        extra[10] += ['v_and_b32 v%d, v%d, v%d' % (vQ + 4 + w, vMB, vP + w) for w in range(4)]

        def mf(pb, ms):
            return ['v_mfma_f32_16x16x32_bf16 %s, %s, %s, %s' % (r4(vO + 4 * m), r4(vVt + 4 * m), r4(pb), r4(vO + 4 * m))
                    for m in ms]
        extra[7] += mf(vQ, range(0, 4))
        extra[8] += mf(vQ, range(4, 8))
        extra[15] += mf(vQ + 4, range(0, 8))
        p('.p2align 3')
        p.label('L_V%d' % n)
        for i in range(16):
            head('V', n, i)
            if i & 1:
                w = (i & 7) >> 1
                a = vR + 4 * (i - 1)
                for u in range(4):
                    p('v_perm_b32 v%d, v%d, v%d, s%d' % (vVt + 8 * u + w, a + 4 + u, a + u, sSelLo))
                    p('v_perm_b32 v%d, v%d, v%d, s%d' % (vVt + 8 * u + 4 + w, a + 4 + u, a + u, sSelHi))
            for x in extra[i]:
                p(x)
            if i == 12:
                ctl_read()
            if i == 14:
                p('s_waitcnt lgkmcnt(0)')
                ctl_take()
        tail('V', n, 'L_epi')

    assert nhi <= 14
    order = [N] + [n for n in range(nlo, nhi + 1) if n != N]
    for n in order:
        kbody(n)
    for n in order[::-1]:
        trans(n)
        vbody(n)

    p.label('L_epi')
    mark(3)
    p('v_add_f32_dpp v%d, v%d, v%d row_ror:8 row_mask:0xf bank_mask:0xf' % (vL, vL, vL))
    p('v_and_b32 v%d, 15, v0' % vT0)
    p('s_mul_i32 s%d, s%d, %d' % (sTmp, sW, WS))
    p('v_mul_u32_u24 v%d, %d, v%d' % (vSa, QS, vT0))
    p('v_lshrrev_b32 v%d, 4, v0' % vT1)
    p('v_lshl_add_u32 v%d, v%d, 4, v%d' % (vSa, vT1, vSa))
    p('v_add_u32 v%d, s%d, v%d' % (vSa, sTmp, vSa))
    p('v_mov_b32 v%d, v%d' % (vT1, vL))
    p('v_permlane32_swap_b32 v%d, v%d' % (vL, vT1))
    for m in range(4):
        p('ds_write_b128 v%d, %s offset:%d' % (vSa, r4(vO + 4 * m), m * MS))
    p('v_add_f32 v%d, v%d, v%d' % (vL, vL, vT1))
    p('v_and_b32 v%d, 7, v0' % vT0)
    p('s_lshl_b32 s%d, s%d, 3' % (sTmp, sW))
    p('v_mov_b32 v%d, v%d' % (vT1, vL))
    p('s_add_u32 s%d, s%d, %d' % (sTmp, sTmp, ML))
    p('v_mul_u32_u24 v%d, %d, v%d' % (vT0, W * 8, vT0))
    p('v_permlane16_swap_b32 v%d, v%d' % (vL, vT1))
    for m in range(4, 8):
        p('ds_write_b128 v%d, %s offset:%d' % (vSa, r4(vO + 4 * m), m * MS))
    p('v_add_f32 v%d, v%d, v%d' % (vAB + 1, vL, vT1))
    p('v_mov_b32 v%d, v%d' % (vAB, vM))
    p('v_add_u32 v%d, s%d, v%d' % (vT0, sTmp, vT0))
    p('ds_write_b64 v%d, v[%d:%d]' % (vT0, vAB, vAB + 1))
    rows = 8 // W
    lpr = 8 * W
    nv = 16 // W
    sh = int(math.log2(lpr))
    vRow, vTt, vA = vKoff, vVoff, vVt
    p('v_lshrrev_b32 v%d, %d, v0' % (vRow, sh))
    p('s_mul_i32 s%d, s%d, %d' % (sTmp, sW, rows))
    p('v_add_u32 v%d, s%d, v%d' % (vRow, sTmp, vRow))
    p('v_and_b32 v%d, %d, v0' % (vTt, lpr - 1))
    p('v_mul_u32_u24 v%d, %d, v%d' % (vT0, W * 8, vRow))
    p('v_add_u32 v%d, %d, v%d' % (vT0, ML, vT0))
    hw = W // 2
    p('v_lshrrev_b32 v%d, %d, v%d' % (vT1, int(math.log2(hw)), vTt))
    p('v_lshlrev_b32 v%d, 2, v%d' % (vT1, vT1))
    p('v_mul_u32_u24 v%d, %d, v%d' % (vSa, QS, vRow))
    p('v_add_u32 v%d, v%d, v%d' % (vSa, vSa, vT1))
    if hw > 1:
        p('v_and_b32 v%d, %d, v%d' % (vT1, hw - 1, vTt))
        p('v_mul_u32_u24 v%d, %d, v%d' % (vT1, nv * MS, vT1))
        p('v_add_u32 v%d, v%d, v%d' % (vSa, vSa, vT1))
    for w in range(1, W):
        p('v_add_u32 v%d, %d, v%d' % (vD + 2 * w, w * WS, vSa))
        p('v_add_u32 v%d, %d, v%d' % (vD + 2 * w + 1, w * WS + HS, vSa))
    p('v_add_u32 v%d, %d, v%d' % (vD + 1, HS, vSa))
    p('v_mov_b32 v%d, v%d' % (vD, vSa))
    p('v_lshlrev_b32 v%d, 8, v%d' % (vRow, vRow))
    p('v_lshl_add_u32 v%d, v%d, %d, v%d' % (vRow, vTt, int(math.log2(2 * nv)), vRow))
    p('s_waitcnt lgkmcnt(0)')
    p('s_barrier')
    mark(4)
    vRd = vO
    for i in range(W // 2):
        p('ds_read_b128 %s, v%d offset:%d' % (r4(vA + 4 * i), vT0, 16 * i))
    for pp in range(2 * W):
        for k in range(nv // 2):
            dst = vRd + pp * nv + 2 * k
            p('ds_read2_b32 v[%d:%d], v%d offset0:%d offset1:%d' %
              (dst, dst + 1, vD + pp, 2 * k * MS // 4, (2 * k + 1) * MS // 4))
    p('s_waitcnt lgkmcnt(%d)' % min(15, 2 * W * nv // 2))
    p('v_max_f32 v%d, v%d, v%d' % (vT1, vA, vA + 2))
    for w in range(2, W):
        p('v_max_f32 v%d, v%d, v%d' % (vT1, vT1, vA + 2 * w))
    for w in range(W):
        p('v_sub_f32 v%d, v%d, v%d' % (vA + 2 * w, vA + 2 * w, vT1))
    for w in range(W):
        p('v_exp_f32 v%d, v%d' % (vA + 2 * w, vA + 2 * w))
    p('v_mul_f32 v%d, v%d, v%d' % (vL, vA, vA + 1))
    for w in range(1, W):
        p('v_fmac_f32 v%d, v%d, v%d' % (vL, vA + 2 * w, vA + 2 * w + 1))
    p('v_rcp_f32 v%d, v%d' % (vL, vL))
    for w in range(W):
        p('v_mul_f32 v%d, v%d, v%d' % (vA + 2 * w, vA + 2 * w, vL))
    p('s_waitcnt lgkmcnt(0)')
    for w in range(W):
        for k in range(nv):
            a, b = vRd + (2 * w) * nv + k, vRd + (2 * w + 1) * nv + k
            p('v_add_f32 v%d, v%d, v%d' % (a, a, b))
    for k in range(nv):
        p('v_mul_f32 v%d, v%d, v%d' % (vS + k, vA, vRd + k))
    for w in range(1, W):
        for k in range(nv):
            p('v_fmac_f32 v%d, v%d, v%d' % (vS + k, vA + 2 * w, vRd + 2 * w * nv + k))
    for k in range(nv // 2):
        p('v_cvt_pk_bf16_f32 v%d, v%d, v%d' % (vP + k, vS + 2 * k, vS + 2 * k + 1))
    st = {2: 'dword v%d' % vP, 4: 'dwordx2 v[%d:%d]' % (vP, vP + 1), 8: 'dwordx4 v[%d:%d]' % (vP, vP + 3)}[nv]
    p('buffer_store_%s, v%d, s[%d:%d], 0 offen%s' % (st, vRow, sO, sO + 3, ofl))
    if diag_hold:
        p.label('L_hold')
        p('s_sleep 1')
        p('s_memrealtime s[42:43]')
        p('s_waitcnt lgkmcnt(0)')
        p('s_sub_u32 s42, s42, s40')
        p('s_cmp_lt_u32 s42, %d' % (diag_hold * 100))
        p('s_cbranch_scc1 L_hold')

    def stamps():
        p('s_memrealtime s[42:43]')
        p('s_waitcnt lgkmcnt(0)')
        p('s_getreg_b32 s46, hwreg(HW_REG_XCC_ID)')
        p('s_mul_i32 s%d, s2, %d' % (sTmp, NW))
        p('s_add_u32 s%d, s%d, s%d' % (sTmp, sTmp, sW))
        p('s_lshl_b32 s%d, s%d, 5' % (sTmp, sTmp))
        p('v_mov_b32 v%d, s%d' % (vT0, sTmp))
        for i, s in enumerate((40, 41, 42, 43)):
            p('v_mov_b32 v%d, s%d' % (vVt + i, s))
        p('v_mov_b32 v%d, s46' % (vVt + 4))
        p('v_mov_b32 v%d, %d' % (vVt + 5, W))
        p('s_mov_b64 exec, 1')
        p('global_store_dwordx4 v%d, %s, s[44:45]' % (vT0, r4(vVt)))
        p('global_store_dwordx2 v%d, v[%d:%d], s[44:45] offset:16' % (vT0, vVt + 4, vVt + 5))
        if stamp > 1:
            p('v_lshlrev_b32 v%d, 2, v%d' % (vT0, vT0))
            p('v_add_u32 v%d, 0x100000, v%d' % (vT0, vT0))
            for k in range(5):
                p('v_mov_b32 v%d, s%d' % (vD + k, 50 + 2 * k))
            p('global_store_dwordx4 v%d, %s, s[44:45]' % (vT0, r4(vD)))
            p('global_store_dword v%d, v%d, s[44:45] offset:16' % (vT0, vD + 4))
    if stamp:
        stamps()
    p.label('L_end')
    p('s_endpgm')

    if helper:
        sNext, sWord, sCur, sTill, sR = 50, 51, 52, 53, 54
        vA0, vOne, vRk, vPr = 8, 9, 10, 12
        TB = 2 * IT
        p.label('L_helper')
        p('v_mov_b32 v%d, %d' % (vT0, NS))
        p('v_mov_b32 v%d, 0' % vT1)
        p('ds_write_b32 v%d, v%d' % (vCtl, vT0))
        for w in range(W):
            p('ds_write_b32 v%d, v%d offset:%d' % (vCtl, vT1, 4 + 4 * w))
        p('v_mov_b32 v%d, 1' % vOne)
        ng = 256 // G
        p('s_lshr_b32 s%d, s2, 3' % sTmp)
        p('s_and_b32 s%d, s%d, %d' % (sTmp, sTmp, ng - 1))
        p('s_lshl_b32 s%d, s%d, 2' % (sWord, sTmp))
        p('s_mul_i32 s%d, s%d, %d' % (sNext, sTmp, I))
        p('s_lshr_b32 s%d, s%d, %d' % (sNext, sNext, int(math.log2(ng))))
        p('s_add_u32 s%d, s%d, %d' % (sNext, sNext, first))
        p('s_waitcnt lgkmcnt(0)')
        p('s_barrier')
        p('s_mov_b64 exec, 1')

        def wait_progress(tag, sreg):
            p.label('L_w' + tag)
            p('s_sleep 2')
            p('ds_read_b32 v%d, v%d offset:4' % (vPr, vCtl))
            p('s_waitcnt lgkmcnt(0)')
            p('v_readfirstlane_b32 s%d, v%d' % (sCur, vPr))
            p('s_cmp_lt_u32 s%d, s%d' % (sCur, sreg))
            p('s_cbranch_scc1 L_w' + tag)

        def set_depth_imm(n):
            p('v_mov_b32 v%d, %d' % (vT0, n))
            p('ds_write_b32 v%d, v%d' % (vCtl, vT0))

        if n0:
            p('s_mov_b32 s%d, %d' % (sTill, n0b - 1))
            wait_progress('0', sTill)
            set_depth_imm(N)
        last = TB - (tailb if tailn else 0) - lastgap
        if ctl:
            p.label('L_hloop')
            wait_progress('1', sNext)
            p('v_mov_b32 v%d, s%d' % (vA0, sWord))
            p('global_atomic_add v%d, v%d, v%d, s[48:49] sc0' % (vRk, vA0, vOne))
            p('s_waitcnt vmcnt(0)')
            p('v_readfirstlane_b32 s%d, v%d' % (sR, vRk))
            p('s_lshl_b32 s%d, s%d, 1' % (sR, sR))
            p('s_sub_i32 s%d, s%d, %d' % (sR, sR, G - 1))
            p('s_mul_i32 s%d, s%d, %d' % (sR, sR, umax))
            p('s_add_i32 s%d, s%d, %d' % (sR, sR, G // 2))
            p('s_ashr_i32 s%d, s%d, %d' % (sR, sR, int(math.log2(G))))
            p('s_cmp_eq_i32 s%d, 0' % sR)
            p('s_cbranch_scc1 L_hnext')
            p('s_cmp_gt_i32 s%d, 0' % sR)
            p('s_cselect_b32 s%d, %d, %d' % (sTmp, N + step, N - step))
            p('v_mov_b32 v%d, s%d' % (vT0, sTmp))
            p('ds_write_b32 v%d, v%d' % (vCtl, vT0))
            p('ds_read_b32 v%d, v%d offset:4' % (vPr, vCtl))
            p('s_abs_i32 s%d, s%d' % (sR, sR))
            p('s_waitcnt lgkmcnt(0)')
            p('v_readfirstlane_b32 s%d, v%d' % (sCur, vPr))
            p('s_add_u32 s%d, s%d, s%d' % (sTill, sCur, sR))
            p('s_min_u32 s%d, s%d, %d' % (sTill, sTill, TB - 1 - (tailb if tailn else 0)))
            wait_progress('2', sTill)
            set_depth_imm(N)
            p.label('L_hnext')
            p('s_add_u32 s%d, s%d, %d' % (sWord, sWord, 4 * ng))
            p('s_add_u32 s%d, s%d, %d' % (sNext, sNext, I))
            p('s_cmp_le_u32 s%d, %d' % (sNext, last))
            p('s_cbranch_scc1 L_hloop')
            nchk = (last - first) // I + 1
            assert nchk * ng <= 64, nchk * ng
        if chk:
            cps = [tuple(int(v) for v in e.split(':')) for e in chk.split(',')]
            assert len(cps) <= 16
            sG, sBs, sX1, sX3, sU = 55, 58, 59, 60, 61
            p('s_lshr_b32 s%d, s2, 3' % sG)
            p('s_and_b32 s%d, s%d, %d' % (sG, sG, ng - 1))
            if loc == 'ws':
                p('s_load_dwordx2 s[48:49], s[0:1], 40')
                lg = int(math.log2(ng))
                for ci in range(len(cps)):
                    bits = [3, 4, 5, 6, 7]
                    if rot:
                        r0 = (ci * rot) % 5
                        bits = bits[r0:] + bits[:r0]
                    p('s_mov_b32 s%d, 0' % sWord)
                    for k, b in enumerate(bits[:lg]):
                        p('s_bfe_u32 s%d, s2, 0x%x' % (sTmp, 0x10000 | b))
                        p('s_lshl_b32 s%d, s%d, %d' % (sTmp, sTmp, k))
                        p('s_or_b32 s%d, s%d, s%d' % (sWord, sWord, sTmp))
                    p('s_lshl_b32 s%d, s%d, 8' % (sWord, sWord))
                    p('s_add_u32 s%d, s%d, 0x%x' % (66 + 2 * ci, sWord, wsoff + ci * ng * 256))
                p('s_waitcnt lgkmcnt(0)')
                for ci in range(len(cps)):
                    p('s_load_dword s%d, s[48:49], s%d glc' % (67 + 2 * ci, 66 + 2 * ci))
                p('s_waitcnt lgkmcnt(0)')
            else:
                assert ng * len(cps) <= 32
                p('s_and_b32 s%d, s%d, 1' % (sWord, sG))
                p('s_lshl_b32 s%d, s%d, 7' % (sWord, sWord))
                p('s_lshr_b32 s%d, s%d, 1' % (sTmp, sG))
                p('s_lshl_b32 s%d, s%d, 2' % (sTmp, sTmp))
                p('s_add_u32 s%d, s%d, s%d' % (sWord, sWord, sTmp))
            for ci, (kb, sc) in enumerate(cps):
                end = (cps[ci + 1][0] if ci + 1 < len(cps) else TB - (tailb if tailn else 0)) - 1
                p('s_and_b32 s%d, s%d, 3' % (sNext, sG))
                p('s_mul_i32 s%d, s%d, %d' % (sNext, sNext, gst))
                p('s_add_u32 s%d, s%d, %d' % (sNext, sNext, kb))
                wait_progress('c%d' % ci, sNext)
                step_w = 0x40400 if loc == 'ws' else 4 * max(1, ng // 2)
                if loc == 'ws':
                    p('s_mov_b32 s%d, s%d' % (sTmp, 66 + 2 * ci))
                else:
                    p('s_add_u32 s%d, s%d, 0x%x' % (sTmp, sWord, ci * step_w))
                if sat:
                    p('s_mov_b32 s%d, 1' % sR)
                    p('s_atomic_add s%d, s[48:49], s%d glc' % (sR, sTmp))
                    p('s_waitcnt lgkmcnt(0)')
                    if loc == 'ws':
                        p('s_sub_u32 s%d, s%d, s%d' % (sR, sR, 67 + 2 * ci))
                else:
                    p('v_mov_b32 v%d, s%d' % (vA0, sTmp))
                    p('global_atomic_add v%d, v%d, v%d, s[48:49] sc0' % (vRk, vA0, vOne))
                    p('s_waitcnt vmcnt(0)')
                    if loc == 'ws':
                        p('v_sub_u32 v%d, v%d, v%d' % (vRk, vRk, 16 + ci))
                    p('v_readfirstlane_b32 s%d, v%d' % (sR, vRk))
                p('s_min_u32 s%d, s%d, %d' % (sR, sR, G - 1))
                p('s_lshl_b32 s%d, s%d, 1' % (sR, sR))
                p('s_sub_i32 s%d, s%d, %d' % (sR, sR, G - 1))
                p('s_mul_i32 s%d, s%d, %d' % (sX1, sR, 256 // G))
                p('s_mul_i32 s%d, s%d, s%d' % (sX3, sX1, sX1))
                p('s_lshr_b32 s%d, s%d, 8' % (sX3, sX3))
                p('s_mul_i32 s%d, s%d, s%d' % (sX3, sX3, sX3))
                p('s_lshr_b32 s%d, s%d, 8' % (sX3, sX3))
                p('s_mul_i32 s%d, s%d, 5' % (sX3, sX3))
                p('s_lshr_b32 s%d, s%d, 2' % (sX3, sX3))
                p('s_add_u32 s%d, s%d, 333' % (sX3, sX3))
                p('s_abs_i32 s%d, s%d' % (sU, sX1))
                p('s_mul_i32 s%d, s%d, s%d' % (sU, sU, sX3))
                p('s_mul_i32 s%d, s%d, %d' % (sU, sU, sc))
                p('s_add_u32 s%d, s%d, 0x8000' % (sU, sU))
                p('s_lshr_b32 s%d, s%d, 16' % (sU, sU))
                p('s_cmp_eq_u32 s%d, 0' % sU)
                p('s_cbranch_scc1 L_cn%d' % ci)
                p('s_cmp_gt_u32 s%d, %d' % (sU, R))
                p('s_cselect_b32 s%d, 1, 0' % sTmp)
                p('s_lshr_b32 s%d, s%d, s%d' % (sU, sU, sTmp))
                p('s_add_u32 s%d, s%d, 1' % (sTmp, sTmp))
                p('s_mul_i32 s%d, s%d, %d' % (sTmp, sTmp, act))
                p('s_sub_u32 s%d, 0, s%d' % (sBs, sTmp))
                p('s_cmp_gt_i32 s%d, 0' % sX1)
                p('s_cselect_b32 s%d, s%d, s%d' % (sTmp, sTmp, sBs))
                p('s_add_u32 s%d, s%d, %d' % (sTmp, sTmp, N))
                p('v_mov_b32 v%d, s%d' % (vT0, sTmp))
                p('ds_write_b32 v%d, v%d' % (vCtl, vT0))
                p('ds_read_b32 v%d, v%d offset:4' % (vPr, vCtl))
                p('s_waitcnt lgkmcnt(0)')
                p('v_readfirstlane_b32 s%d, v%d' % (sCur, vPr))
                p('s_add_u32 s%d, s%d, s%d' % (sTill, sCur, sU))
                p('s_min_u32 s%d, s%d, %d' % (sTill, sTill, end))
                wait_progress('d%d' % ci, sTill)
                set_depth_imm(N)
                p.label('L_cn%d' % ci)
        if probe:
            p('s_load_dwordx2 s[56:57], s[0:1], 40')
            p('s_waitcnt lgkmcnt(0)')
            p('s_mov_b32 s%d, %d' % (sNext, first))
            p('s_lshr_b32 s58, s2, 3')
            p('s_mul_i32 s58, s58, 0x11100')
            p('s_add_u32 s58, s58, 0x400000')
            p.label('L_ploop')
            wait_progress('p', sNext)
            if 's' in probe:
                p('s_and_b32 s%d, s2, 0x18' % sTmp)
                p('s_cmp_lg_u32 s%d, 0' % sTmp)
                p('s_cbranch_scc1 L_pns')
                p('s_lshr_b32 s%d, s2, 5' % sTmp)
                p('s_lshl_b32 s%d, s%d, 3' % (sTmp, sTmp))
                p('s_and_b32 s3, s2, 7')
                p('s_or_b32 s%d, s%d, s3' % (sTmp, sTmp))
                p('s_lshl_b32 s%d, s%d, 2' % (sTmp, sTmp))
                p('v_mov_b32 v%d, s%d' % (vA0, sTmp))
                p('v_mov_b32 v%d, s%d' % (vRk, sNext))
                p('global_store_dword v%d, v%d, s[48:49] sc1' % (vA0, vRk))
                p.label('L_pns')
            if 'l' in probe:
                p('s_mov_b64 exec, -1')
                p('v_lshlrev_b32 v%d, 2, v0' % vA0)
                p('global_load_dword v%d, v%d, s[48:49] sc1' % (vRk, vA0))
                p('s_mov_b64 exec, 1')
            if 'a' in probe:
                p('v_mov_b32 v%d, s58' % vA0)
                p('global_atomic_add v%d, v%d, v%d, s[56:57] sc0' % (vRk, vA0, vOne))
                p('s_add_u32 s58, s58, 0x1100')
            p('s_waitcnt vmcnt(0)')
            p('s_add_u32 s%d, s%d, %d' % (sNext, sNext, I))
            p('s_cmp_le_u32 s%d, %d' % (sNext, last))
            p('s_cbranch_scc1 L_ploop')
        if tailn:
            p('s_mov_b32 s%d, %d' % (sTill, TB - tailb - 1))
            wait_progress('3', sTill)
            set_depth_imm(tailn)
        p('s_waitcnt lgkmcnt(0)')
        if stamp:
            p('s_mov_b32 s42, s40')
            p('s_mov_b32 s43, s41')
            for k in range(5):
                p('s_mov_b32 s%d, s40' % (50 + 2 * k))
            p('s_mov_b64 exec, -1')
            p('s_memrealtime s[42:43]')
            p('s_waitcnt lgkmcnt(0)')
            p('s_mul_i32 s%d, s2, %d' % (sTmp, NW))
            p('s_add_u32 s%d, s%d, s%d' % (sTmp, sTmp, sW))
            p('s_lshl_b32 s%d, s%d, 5' % (sTmp, sTmp))
            p('v_mov_b32 v%d, s%d' % (vT0, sTmp))
            for i in range(6):
                p('v_mov_b32 v%d, -1' % (vVt + i))
            p('s_mov_b64 exec, 1')
            p('global_store_dwordx4 v%d, %s, s[44:45]' % (vT0, r4(vVt)))
            p('global_store_dwordx2 v%d, v[%d:%d], s[44:45] offset:16' % (vT0, vVt + 4, vVt + 5))
        p('s_endpgm')
    p.fix_hazards()
    mv, ma, ms = p.max_regs()
    nvg = mv + 1
    acc = min(256, (nvg + 3) // 4 * 4)
    txt = HEADER + '; @launch grid=(256,1,1) block=(%d,1,1) lds=%d\n' % (64 * NW, lds)
    txt += '.amdgcn_target "amdgcn-amd-amdhsa--gfx950"\n.text\n.globl %s\n.p2align 8\n.type %s,@function\n%s:\n' % (
        KNAME, KNAME, KNAME)
    txt += p.text()
    txt += """.section .rodata,"a"
.p2align 6
.amdhsa_kernel %s
  .amdhsa_next_free_vgpr %d
  .amdhsa_next_free_sgpr %d
  .amdhsa_accum_offset %d
  .amdhsa_group_segment_fixed_size 0
  .amdhsa_kernarg_size 48
  .amdhsa_user_sgpr_count 2
  .amdhsa_user_sgpr_kernarg_segment_ptr 1
  .amdhsa_system_sgpr_workgroup_id_x 1
.end_amdhsa_kernel
""" % (KNAME, nvg, ms + 1, acc)
    return txt


if __name__ == '__main__':
    kw = {}
    for a in sys.argv[2:]:
        k, v = a.split('=')
        try:
            v = int(v, 0)
        except ValueError:
            pass
        kw[k] = v
    open(sys.argv[1], 'w').write(gen(**kw))
```

```python
import math
import sys
sys.path.insert(0, 'work')
from asmlib import Prog
from gen_attn import HEADER, KNAME, f32bits


def gen(W=2, N=10, nlo=None, nhi=None, pol='nt', grp=4, stamp=0, opol='', diag_hold=0, stagger=0,
        ctl=0, I=4, G=64, umax=3, first=2, tailn=0, tailb=0, n0=0, n0b=1, step=1, lastgap=4, probe='', altk=0, altv=0, NV=0, polv=None, pat='', chk='', loc='dbg', gst=1, act=1, R=12, sat=1, rot=0, NH=0, wsoff=0x400000, dn=4, warm=''):
    NV = NV or N
    nlo = min(N, NV) if nlo is None else nlo
    nhi = max(N, NV) if nhi is None else nhi
    nhi = max(nhi, tailn, n0, N + (1 if altk else 0), NV + (1 if altv else 0))
    dyn = nhi > nlo
    helper = bool(ctl or probe or chk)
    static = dyn and not helper
    L = 1024 // W
    IT = L // 16
    NW = W + (1 if helper else 0)
    PATS = {
        'B': '100 200 400 800 1000 2000 4000 8000 10000 20000 40000 80000 0 0 0 0 0 0 0 0',
        'C2': '100 200 800 8000 1000 2000 4000 10000 20000 40000 80000 400 0 0 0 0 0 0 0 0',
        'S1': '2000 100 400 8100 1000 200 800 10200 80000 20000 40800 4000 0 0 0 0 0 0 0 0',
        'S2': '2000 4000 8100 200 1000 100 800 10000 80000 20000 400 40800 0 0 0 0 0 0 0 0',
        'F2': 'a00 1b000 8b00 72b00 12000 1e000 8800 11300 c9200 4b000 94100 43f00 70000 18800 ac000 6800 95800 48000 b000 69000',
        'F': '8800 a00 1ba00 8b00 72b00 12000 1e000 11300 c9200 4b000 9c900 43f00 70000 1c800 be000 6800 9d800 48000 b000 79800',
    }
    rt = pat == 'rt'
    if pat:
        pm = [int(x, 16) for x in PATS.get('B' if rt else pat, pat.replace('_', ' ')).split()]
        lw, lj = int(math.log2(W)), int(math.log2(grp))
        mL, mW, mS = pm[0:2], pm[2 + lj:2 + lj + lw], pm[12:20]
        seq = pm[2:2 + lj] + pm[2 + lj + lw:12]
        mJ, mT = seq[:4], seq[4:]
        assert 1 << len(mT) == IT

        def dep(x, ms):
            r = 0
            for k, m in enumerate(ms):
                if x >> k & 1:
                    r ^= m
            return r
    p = Prog()
    vBase, vAd = 182, 183
    sFix, sNx, sBi = 60, 61, 62
    vKoff, vVoff, vT0, vT1, vM, vL, vSa = 1, 2, 3, 4, 5, 6, 7
    vAB = 8
    vP = 12
    vQ = 16
    vS = 24
    vD = 32
    vVt = 48
    vO = 80
    vR = 112
    vMA, vMB, vCtl, vCnt, vTg = 176, 177, 178, 179, 180
    sX, sQ, sO = 8, 16, 20
    sOff, sOff0, sCnt, sW, sC, sSelLo, sSelHi, sTmp, sTgt = 24, 25, 26, 27, 28, 29, 30, 31, 32
    sVb = 12
    sH = 34
    fl = (' ' + pol.replace('+', ' ')) if pol else ''
    ofl = (' ' + opol.replace('+', ' ')) if opol else ''
    QS, MS = 656, 80
    HS = 8 * QS
    WS = 131072 // W
    ML = 131072 + 2048
    CT = ML + 64 * W
    lds = CT + 16

    def r4(b):
        return 'v[%d:%d]' % (b, b + 3)

    def mark(k):
        if stamp > 1:
            p('s_memrealtime s[%d:%d]' % (50 + 2 * k, 51 + 2 * k))

    def issue(j):
        if pat:
            c = dep(j % 16, mJ)
            va = vBase
            if rt:
                va = vAd + (j & 1)
                p('v_xor_b32 v%d, s%d, v%d' % (va, 64 + j % 16, vBase))
            elif c:
                va = vAd + (j & 1)
                p('v_xor_b32 v%d, 0x%x, v%d' % (va, c, vBase))
            p('buffer_load_dwordx4 %s, v%d, s[%d:%d], 0 offen%s' % (r4(vR + 4 * (j % 16)), va, sX, sX + 3, fl))
            return
        p('buffer_load_dwordx4 %s, v%d, s[%d:%d], s%d offen offset:%d%s' %
          (r4(vR + 4 * (j % 16)), vKoff, sX, sX + 3, sOff, (j % grp) * 1024, fl))
        if j % grp == grp - 1:
            p('s_add_u32 s%d, s%d, %d' % (sOff, sOff, W * grp * 1024))
            if stagger:
                p('s_and_b32 s%d, s%d, 0xfffff' % (sOff, sOff))

    p('s_cmp_ge_u32 s2, 256')
    p('s_cbranch_scc1 L_end')
    p('s_load_dwordx4 s[4:7], s[0:1], 0')
    p('s_load_dwordx4 s[36:39], s[0:1], 16')
    if helper:
        p('s_load_dwordx2 s[48:49], s[0:1], 32')
    if stamp:
        p('s_load_dwordx2 s[44:45], s[0:1], 40')
    if stamp or diag_hold:
        p('s_memrealtime s[40:41]')
    p('v_lshrrev_b32 v%d, 6, v0' % vT0)
    p('v_and_b32 v0, 63, v0')
    p('v_readfirstlane_b32 s%d, v%d' % (sW, vT0))
    p('v_lshlrev_b32 v%d, 4, v0' % vVoff)
    p('v_mov_b32 v%d, v%d' % (vSa, vVoff))
    if helper:
        p('v_mov_b32 v%d, %d' % (vCtl, CT))
        p('s_cmp_eq_u32 s%d, %d' % (sW, W))
        p('s_cbranch_scc1 L_helper')
    p('v_lshrrev_b32 v%d, 4, v0' % vT0)
    p('v_lshlrev_b32 v%d, 6, v%d' % (vT0, vT0))
    if pat:
        p('v_and_b32 v%d, 0xf0, v%d' % (vVoff, vVoff))
        p('v_mov_b32 v%d, v%d' % (vKoff, vT0))
        for k in range(2):
            p('v_bfe_i32 v%d, v0, %d, 1' % (vT1, 2 + k))
            p('v_and_b32 v%d, 0x%x, v%d' % (vT1, mL[k], vT1))
            p('v_xor_b32 v%d, v%d, v%d' % (vKoff, vKoff, vT1))
            p('v_bfe_i32 v%d, v0, %d, 1' % (vT1, 4 + k))
            p('v_and_b32 v%d, 0x%x, v%d' % (vT1, mL[k], vT1))
            p('v_xor_b32 v%d, v%d, v%d' % (vVoff, vVoff, vT1))
    else:
        p('v_bfe_u32 v%d, v0, 2, 2' % vT1)
        p('v_lshl_add_u32 v%d, v%d, 8, v%d' % (vKoff, vT1, vT0))
    p('v_and_b32 v%d, 3, v0' % vT1)
    p('v_lshl_add_u32 v%d, v%d, 4, v%d' % (vKoff, vT1, vKoff))
    p('v_and_b32 v%d, 7, v0' % vT1)
    p('v_lshl_add_u32 v%d, v%d, 8, v%d' % (vT0, vT1, vT0))
    p('v_bfe_u32 v%d, v0, 3, 1' % vT1)
    p('v_lshl_add_u32 v%d, v%d, 4, v%d' % (vT0, vT1, vT0))
    p('v_cmp_ne_u32 s[%d:%d], 0, v%d' % (sH, sH + 1, vT1))
    p('s_mul_i32 s%d, s%d, %d' % (sOff0, sW, grp * 1024))
    if stagger:
        p('s_mul_i32 s3, s2, %d' % stagger)
        p('s_add_u32 s%d, s%d, s3' % (sOff0, sOff0))
        p('s_and_b32 s%d, s%d, 0xfffff' % (sOff0, sOff0))
    p('s_mov_b32 s%d, s%d' % (sOff, sOff0))
    if pat:
        p('s_mov_b32 s%d, 0' % sFix)
        for src, ms in ((sW, mW), (2, mS)):
            for k, m in enumerate(ms):
                if m:
                    p('s_bitcmp1_b32 s%d, %d' % (src, k))
                    p('s_cselect_b32 s3, 0x%x, 0' % m)
                    p('s_xor_b32 s%d, s%d, s3' % (sFix, sFix))
        p('s_mov_b32 s%d, 0' % sBi)
        p('v_xor_b32 v%d, s%d, v%d' % (vBase, sFix, vKoff))
    p('s_lshl_b32 s%d, s2, 20' % sTmp)
    p('s_lshl_b32 s3, s2, 11')
    for s, n in ((sX, 0x100000), (sQ, 2048), (sO, 2048)):
        p('s_mov_b32 s%d, 0x%x' % (s + 2, n))
        p('s_mov_b32 s%d, 0x20000' % (s + 3))
    p('s_waitcnt lgkmcnt(0)')
    mark(0)
    if rt:
        p('s_add_u32 s46, s44, 0x200000')
        p('s_addc_u32 s47, s45, 0')
        p('s_mul_i32 s63, s2, %d' % W)
        p('s_add_u32 s63, s63, s%d' % sW)
        p('s_lshl_b32 s63, s63, 2')
        p('s_load_dword s%d, s[46:47], s63' % sFix)
        p('s_load_dwordx16 s[64:79], s[46:47], 0x1000')
        p('s_load_dword s80, s[46:47], 0x1104')
        p('v_lshlrev_b32 v%d, 2, v0' % vT1)
        p('v_add_u32 v%d, 0x1800, v%d' % (vT1, vT1))
        p('global_load_dword v%d, v%d, s[46:47]' % (vVoff, vT1))
        p('global_load_dword v%d, v%d, s[46:47] offset:256' % (vKoff, vT1))
        p('s_waitcnt vmcnt(0) lgkmcnt(0)')
        p('s_memrealtime s[40:41]')
        p('v_xor_b32 v%d, s%d, v%d' % (vBase, sFix, vKoff))
    p('s_add_u32 s%d, s6, s%d' % (sX, sTmp))
    p('s_addc_u32 s%d, s7, 0' % (sX + 1))
    p('s_add_u32 s%d, s4, s3' % sQ)
    p('s_addc_u32 s%d, s5, 0' % (sQ + 1))
    p('buffer_load_dwordx4 %s, v%d, s[%d:%d], 0 offen' % (r4(vQ), vT0, sQ, sQ + 3))
    p('buffer_load_dwordx4 %s, v%d, s[%d:%d], 0 offen offset:32' % (r4(vQ + 4), vT0, sQ, sQ + 3))
    NS = n0 or N
    for j in range(NS):
        issue(j)
    p('s_add_u32 s%d, s36, s%d' % (sVb, sTmp))
    p('s_addc_u32 s%d, s37, 0' % (sVb + 1))
    p('s_add_u32 s%d, s38, s3' % sO)
    p('s_addc_u32 s%d, s39, 0' % (sO + 1))
    c = math.log2(math.e) / math.sqrt(128.0)
    p('s_mov_b32 s%d, 0x%08x' % (sC, f32bits(c)))
    p('s_mov_b32 s%d, 0x05040100' % sSelLo)
    p('s_mov_b32 s%d, 0x07060302' % sSelHi)
    p('s_mul_i32 s%d, s%d, %d' % (sTmp, sW, WS))
    p('v_add_u32 v%d, s%d, v%d' % (vSa, sTmp, vSa))
    p('v_mov_b32 v%d, 0xff800000' % vM)
    p('v_mov_b32 v%d, 0' % vL)
    p('v_cndmask_b32 v%d, -1, 0, s[%d:%d]' % (vMA, sH, sH + 1))
    p('v_cndmask_b32 v%d, 0, -1, s[%d:%d]' % (vMB, sH, sH + 1))
    for i in range(32):
        p('v_mov_b32 v%d, 0' % (vO + i))
    if helper:
        p('v_mov_b32 v%d, 0' % vCnt)
        p('s_lshl_b32 s%d, s%d, 2' % (sTmp, sW))
        p('v_add_u32 v%d, s%d, v%d' % (vTg + 1, sTmp, vCtl))
        p('s_barrier')
    if stamp > 1:
        p('s_waitcnt vmcnt(%d)' % (NS - 1))
        mark(1)
        p('s_waitcnt lgkmcnt(0)')
    p('s_mov_b32 s%d, %d' % (sCnt, IT))
    p('s_branch L_K%d' % NS)

    def ab(i):
        d, t = vD + 8 * (i & 1), vAB + 2 * (i & 1)
        p('v_add_f32 v%d, v%d, v%d' % (t, d + 0, d + 6))
        p('v_add_f32 v%d, v%d, v%d' % (t + 1, d + 1, d + 7))

    def dpp(i):
        t = vAB + 2 * (i & 1)
        if i < 8:
            p('v_add_f32_dpp v%d, v%d, v%d row_ror:8 row_mask:0xf bank_mask:0x3' % (vS + i, t + 1, t))
        else:
            p('v_add_f32_dpp v%d, v%d, v%d row_ror:8 row_mask:0xf bank_mask:0xc' % (vS + i - 8, t, t + 1))

    def head(ph, n, i):
        p('s_waitcnt vmcnt(%d)' % (n - 1))
        if i + n == 16:
            p('s_cmp_eq_u32 s%d, 1' % sCnt)
            if ph == 'K':
                p('s_cselect_b32 s%d, s%d, s%d' % (sX, sVb, sX))
                p('s_cselect_b32 s%d, s%d, s%d' % (sX + 1, sVb + 1, sX + 1))
                if not pat:
                    p('s_cselect_b32 s%d, s%d, s%d' % (sOff, sOff0, sOff))
                p('s_cselect_b64 vcc, -1, 0')
                p('v_cndmask_b32 v%d, v%d, v%d, vcc' % (vKoff, vKoff, vVoff))
            else:
                p('s_cselect_b32 s%d, 0, s%d' % (sX + 2, sX + 2))
            if pat:
                p('v_xor_b32 v%d, s%d, v%d' % (vBase, sNx, vKoff))
        issue(i + n)
        if i == 0:
            p.label('L_%s%d_a' % (ph, n))
            if pat:
                p('s_add_u32 s%d, s%d, 1' % (sBi, sBi))
                if rt:
                    p('s_xor_b32 s%d, s%d, s80' % (sNx, sFix))
                    p('s_lshl_b32 s3, s%d, 2' % sBi)
                    p('s_add_u32 s3, s3, 0x1104')
                    p('s_load_dword s80, s[46:47], s3')
                else:
                    p('s_mov_b32 s%d, s%d' % (sNx, sFix))
                for k, m in enumerate([] if rt else mT):
                    p('s_bitcmp1_b32 s%d, %d' % (sBi, k))
                    p('s_cselect_b32 s3, 0x%x, 0' % m)
                    p('s_xor_b32 s%d, s%d, s3' % (sNx, sNx))

    def ctl_read():
        if helper:
            p('ds_read_b32 v%d, v%d' % (vTg, vCtl))

    def ctl_take():
        if helper:
            p('v_readfirstlane_b32 s%d, v%d' % (sTgt, vTg))

    def tail(ph, n, exit_label):
        if helper:
            p('v_add_u32 v%d, 1, v%d' % (vCnt, vCnt))
            p('ds_write_b32 v%d, v%d offset:4' % (vTg + 1, vCnt))
        p('s_sub_u32 s%d, s%d, 1' % (sCnt, sCnt))
        if static:
            nb, alt = (N, altk) if ph == 'K' else (NV, altv)
            if alt:
                p('s_mov_b32 s%d, 0x%x' % (sTmp, alt))
                p('s_bitcmp1_b32 s%d, s%d' % (sTmp, sCnt))
                p('s_cselect_b32 s%d, %d, %d' % (sTgt, nb + 1, nb))
            else:
                p('s_mov_b32 s%d, %d' % (sTgt, nb))
            if ph == 'V' and tailn:
                p('s_cmp_le_u32 s%d, %d' % (sCnt, tailb))
                p('s_cselect_b32 s%d, %d, s%d' % (sTgt, tailn, sTgt))
        if not dyn:
            p('s_cmp_lg_u32 s%d, 0' % sCnt)
            p('s_cbranch_scc1 L_%s%d' % (ph, n))
            p('s_branch %s' % exit_label)
            return
        p('s_cmp_eq_u32 s%d, 0' % sCnt)
        p('s_cbranch_scc1 %s' % exit_label)
        if n < nhi:
            p('s_cmp_gt_u32 s%d, %d' % (sTgt, n))
            p('s_cbranch_scc1 L_%s%d_up' % (ph, n))
        if n > nlo:
            p('s_cmp_ge_u32 s%d, %d' % (sTgt, n))
            p('s_cbranch_scc1 L_%s%d' % (ph, n))
            p('s_waitcnt vmcnt(%d)' % (n - 1))
            p('s_branch L_%s%d_a' % (ph, n - 1))
        else:
            p('s_branch L_%s%d' % (ph, n))
        if n < nhi:
            p.label('L_%s%d_up' % (ph, n))
            issue(n)
            p('s_branch L_%s%d' % (ph, n + 1))

    def kbody(n):
        p('.p2align 3')
        p.label('L_K%d' % n)
        for i in range(16):
            head('K', n, i)
            d = vD + 8 * (i & 1)
            p('v_mfma_f32_16x16x32_bf16 %s, %s, %s, 0' % (r4(d), r4(vR + 4 * i), r4(vQ)))
            p('v_mfma_f32_16x16x32_bf16 %s, %s, %s, 0' % (r4(d + 4), r4(vR + 4 * i), r4(vQ + 4)))
            if i >= 2:
                dpp(i - 2)
            if i >= 1:
                ab(i - 1)
            if i == 12:
                ctl_read()
            if i == 14 and (helper or rt):
                p('s_waitcnt lgkmcnt(0)')
                ctl_take()
        dpp(14)
        ab(15)
        p('v_max3_f32 v%d, v%d, v%d, v%d' % (vM, vM, vS, vS + 1))
        p('v_max3_f32 v%d, v%d, v%d, v%d' % (vM, vM, vS + 2, vS + 3))
        dpp(15)
        p('ds_write_b128 v%d, %s' % (vSa, r4(vS)))
        p('v_max3_f32 v%d, v%d, v%d, v%d' % (vM, vM, vS + 4, vS + 5))
        p('v_max3_f32 v%d, v%d, v%d, v%d' % (vM, vM, vS + 6, vS + 7))
        p('ds_write_b128 v%d, %s offset:1024' % (vSa, r4(vS + 4)))
        p('v_add_u32 v%d, 2048, v%d' % (vSa, vSa))
        tail('K', n, 'L_T%d' % n)

    def trans(n):
        p.label('L_T%d' % n)
        p('v_subrev_u32 v%d, %d, v%d' % (vSa, IT * 2048, vSa))
        mark(2)
        p('s_waitcnt lgkmcnt(0)')
        p('ds_read_b128 %s, v%d' % (r4(vS), vSa))
        p('ds_read_b128 %s, v%d offset:1024' % (r4(vS + 4), vSa))
        p('v_max_f32_dpp v%d, v%d, v%d row_ror:8 row_mask:0xf bank_mask:0xf' % (vM, vM, vM))
        p('s_mov_b32 s%d, %d' % (sCnt, IT))
        p('v_mov_b32 v%d, v%d' % (vT1, vM))
        p('v_permlane32_swap_b32 v%d, v%d' % (vM, vT1))
        p('v_max_f32 v%d, v%d, v%d' % (vM, vM, vT1))
        p('v_mov_b32 v%d, v%d' % (vT1, vM))
        p('v_permlane16_swap_b32 v%d, v%d' % (vM, vT1))
        p('v_max_f32 v%d, v%d, v%d' % (vM, vM, vT1))
        p('v_mul_f32 v%d, s%d, v%d' % (vM, sC, vM))
        p('s_waitcnt lgkmcnt(0)')

    def vbody(n):
        extra = {i: [] for i in range(16)}
        extra[0] += ['v_fma_f32 v%d, v%d, s%d, -v%d' % (vS + e, vS + e, sC, vM) for e in range(8)]
        extra[0] += ['v_exp_f32 v%d, v%d' % (vS + e, vS + e) for e in range(4)]
        extra[2] += ['v_exp_f32 v%d, v%d' % (vS + e, vS + e) for e in range(4, 8)]
        extra[2] += ['v_add_f32 v%d, v%d, v%d' % (vT0, vS, vS + 1), 'v_add_f32 v%d, v%d, v%d' % (vT1, vS + 2, vS + 3)]
        extra[4] += ['v_cvt_pk_bf16_f32 v%d, v%d, v%d' % (vP + w, vS + 2 * w, vS + 2 * w + 1) for w in range(4)]
        extra[4] += ['v_add_f32 v%d, v%d, v%d' % (vT0, vT0, vS + 4), 'v_add_f32 v%d, v%d, v%d' % (vT1, vT1, vS + 5),
                     'v_add_f32 v%d, v%d, v%d' % (vT0, vT0, vS + 6), 'v_add_f32 v%d, v%d, v%d' % (vT1, vT1, vS + 7),
                     'v_add_f32 v%d, v%d, v%d' % (vL, vL, vT0), 'v_add_f32 v%d, v%d, v%d' % (vL, vL, vT1)]
        extra[6] += ['v_add_u32 v%d, 2048, v%d' % (vSa, vSa),
                     'ds_read_b128 %s, v%d' % (r4(vS), vSa),
                     'ds_read_b128 %s, v%d offset:1024' % (r4(vS + 4), vSa)]
        extra[6] += ['v_and_b32 v%d, v%d, v%d' % (vQ + w, vMA, vP + w) for w in range(4)]
        extra[10] += ['v_and_b32 v%d, v%d, v%d' % (vQ + 4 + w, vMB, vP + w) for w in range(4)]

        def mf(pb, ms):
            return ['v_mfma_f32_16x16x32_bf16 %s, %s, %s, %s' % (r4(vO + 4 * m), r4(vVt + 4 * m), r4(pb), r4(vO + 4 * m))
                    for m in ms]
        extra[7] += mf(vQ, range(0, 4))
        extra[8] += mf(vQ, range(4, 8))
        extra[15] += mf(vQ + 4, range(0, 8))
        p('.p2align 3')
        p.label('L_V%d' % n)
        for i in range(16):
            head('V', n, i)
            if i & 1:
                w = (i & 7) >> 1
                a = vR + 4 * (i - 1)
                for u in range(4):
                    p('v_perm_b32 v%d, v%d, v%d, s%d' % (vVt + 8 * u + w, a + 4 + u, a + u, sSelLo))
                    p('v_perm_b32 v%d, v%d, v%d, s%d' % (vVt + 8 * u + 4 + w, a + 4 + u, a + u, sSelHi))
            for x in extra[i]:
                p(x)
            if i == 12:
                ctl_read()
            if i == 14:
                p('s_waitcnt lgkmcnt(0)')
                ctl_take()
        tail('V', n, 'L_epi')

    assert nhi <= 14
    order = [N] + [n for n in range(nlo, nhi + 1) if n != N]
    for n in order:
        kbody(n)
    for n in order[::-1]:
        trans(n)
        vbody(n)

    p.label('L_epi')
    mark(3)
    p('v_add_f32_dpp v%d, v%d, v%d row_ror:8 row_mask:0xf bank_mask:0xf' % (vL, vL, vL))
    p('v_and_b32 v%d, 15, v0' % vT0)
    p('s_mul_i32 s%d, s%d, %d' % (sTmp, sW, WS))
    p('v_mul_u32_u24 v%d, %d, v%d' % (vSa, QS, vT0))
    p('v_lshrrev_b32 v%d, 4, v0' % vT1)
    p('v_lshl_add_u32 v%d, v%d, 4, v%d' % (vSa, vT1, vSa))
    p('v_add_u32 v%d, s%d, v%d' % (vSa, sTmp, vSa))
    p('v_mov_b32 v%d, v%d' % (vT1, vL))
    p('v_permlane32_swap_b32 v%d, v%d' % (vL, vT1))
    for m in range(4):
        p('ds_write_b128 v%d, %s offset:%d' % (vSa, r4(vO + 4 * m), m * MS))
    p('v_add_f32 v%d, v%d, v%d' % (vL, vL, vT1))
    p('v_and_b32 v%d, 7, v0' % vT0)
    p('s_lshl_b32 s%d, s%d, 3' % (sTmp, sW))
    p('v_mov_b32 v%d, v%d' % (vT1, vL))
    p('s_add_u32 s%d, s%d, %d' % (sTmp, sTmp, ML))
    p('v_mul_u32_u24 v%d, %d, v%d' % (vT0, W * 8, vT0))
    p('v_permlane16_swap_b32 v%d, v%d' % (vL, vT1))
    for m in range(4, 8):
        p('ds_write_b128 v%d, %s offset:%d' % (vSa, r4(vO + 4 * m), m * MS))
    p('v_add_f32 v%d, v%d, v%d' % (vAB + 1, vL, vT1))
    p('v_mov_b32 v%d, v%d' % (vAB, vM))
    p('v_add_u32 v%d, s%d, v%d' % (vT0, sTmp, vT0))
    p('ds_write_b64 v%d, v[%d:%d]' % (vT0, vAB, vAB + 1))
    rows = 8 // W
    lpr = 8 * W
    nv = 16 // W
    sh = int(math.log2(lpr))
    vRow, vTt, vA = vKoff, vVoff, vVt
    p('v_lshrrev_b32 v%d, %d, v0' % (vRow, sh))
    p('s_mul_i32 s%d, s%d, %d' % (sTmp, sW, rows))
    p('v_add_u32 v%d, s%d, v%d' % (vRow, sTmp, vRow))
    p('v_and_b32 v%d, %d, v0' % (vTt, lpr - 1))
    p('v_mul_u32_u24 v%d, %d, v%d' % (vT0, W * 8, vRow))
    p('v_add_u32 v%d, %d, v%d' % (vT0, ML, vT0))
    hw = W // 2
    p('v_lshrrev_b32 v%d, %d, v%d' % (vT1, int(math.log2(hw)), vTt))
    p('v_lshlrev_b32 v%d, 2, v%d' % (vT1, vT1))
    p('v_mul_u32_u24 v%d, %d, v%d' % (vSa, QS, vRow))
    p('v_add_u32 v%d, v%d, v%d' % (vSa, vSa, vT1))
    if hw > 1:
        p('v_and_b32 v%d, %d, v%d' % (vT1, hw - 1, vTt))
        p('v_mul_u32_u24 v%d, %d, v%d' % (vT1, nv * MS, vT1))
        p('v_add_u32 v%d, v%d, v%d' % (vSa, vSa, vT1))
    for w in range(1, W):
        p('v_add_u32 v%d, %d, v%d' % (vD + 2 * w, w * WS, vSa))
        p('v_add_u32 v%d, %d, v%d' % (vD + 2 * w + 1, w * WS + HS, vSa))
    p('v_add_u32 v%d, %d, v%d' % (vD + 1, HS, vSa))
    p('v_mov_b32 v%d, v%d' % (vD, vSa))
    p('v_lshlrev_b32 v%d, 8, v%d' % (vRow, vRow))
    p('v_lshl_add_u32 v%d, v%d, %d, v%d' % (vRow, vTt, int(math.log2(2 * nv)), vRow))
    p('s_waitcnt lgkmcnt(0)')
    p('s_barrier')
    mark(4)
    vRd = vO
    for i in range(W // 2):
        p('ds_read_b128 %s, v%d offset:%d' % (r4(vA + 4 * i), vT0, 16 * i))
    for pp in range(2 * W):
        for k in range(nv // 2):
            dst = vRd + pp * nv + 2 * k
            p('ds_read2_b32 v[%d:%d], v%d offset0:%d offset1:%d' %
              (dst, dst + 1, vD + pp, 2 * k * MS // 4, (2 * k + 1) * MS // 4))
    p('s_waitcnt lgkmcnt(%d)' % min(15, 2 * W * nv // 2))
    p('v_max_f32 v%d, v%d, v%d' % (vT1, vA, vA + 2))
    for w in range(2, W):
        p('v_max_f32 v%d, v%d, v%d' % (vT1, vT1, vA + 2 * w))
    for w in range(W):
        p('v_sub_f32 v%d, v%d, v%d' % (vA + 2 * w, vA + 2 * w, vT1))
    for w in range(W):
        p('v_exp_f32 v%d, v%d' % (vA + 2 * w, vA + 2 * w))
    p('v_mul_f32 v%d, v%d, v%d' % (vL, vA, vA + 1))
    for w in range(1, W):
        p('v_fmac_f32 v%d, v%d, v%d' % (vL, vA + 2 * w, vA + 2 * w + 1))
    p('v_rcp_f32 v%d, v%d' % (vL, vL))
    for w in range(W):
        p('v_mul_f32 v%d, v%d, v%d' % (vA + 2 * w, vA + 2 * w, vL))
    p('s_waitcnt lgkmcnt(0)')
    for w in range(W):
        for k in range(nv):
            a, b = vRd + (2 * w) * nv + k, vRd + (2 * w + 1) * nv + k
            p('v_add_f32 v%d, v%d, v%d' % (a, a, b))
    for k in range(nv):
        p('v_mul_f32 v%d, v%d, v%d' % (vS + k, vA, vRd + k))
    for w in range(1, W):
        for k in range(nv):
            p('v_fmac_f32 v%d, v%d, v%d' % (vS + k, vA + 2 * w, vRd + 2 * w * nv + k))
    for k in range(nv // 2):
        p('v_cvt_pk_bf16_f32 v%d, v%d, v%d' % (vP + k, vS + 2 * k, vS + 2 * k + 1))
    st = {2: 'dword v%d' % vP, 4: 'dwordx2 v[%d:%d]' % (vP, vP + 1), 8: 'dwordx4 v[%d:%d]' % (vP, vP + 3)}[nv]
    p('buffer_store_%s, v%d, s[%d:%d], 0 offen%s' % (st, vRow, sO, sO + 3, ofl))
    if diag_hold:
        p.label('L_hold')
        p('s_sleep 1')
        p('s_memrealtime s[42:43]')
        p('s_waitcnt lgkmcnt(0)')
        p('s_sub_u32 s42, s42, s40')
        p('s_cmp_lt_u32 s42, %d' % (diag_hold * 100))
        p('s_cbranch_scc1 L_hold')

    def stamps():
        p('s_memrealtime s[42:43]')
        p('s_waitcnt lgkmcnt(0)')
        p('s_getreg_b32 s46, hwreg(HW_REG_XCC_ID)')
        p('s_mul_i32 s%d, s2, %d' % (sTmp, NW))
        p('s_add_u32 s%d, s%d, s%d' % (sTmp, sTmp, sW))
        p('s_lshl_b32 s%d, s%d, 5' % (sTmp, sTmp))
        p('v_mov_b32 v%d, s%d' % (vT0, sTmp))
        for i, s in enumerate((40, 41, 42, 43)):
            p('v_mov_b32 v%d, s%d' % (vVt + i, s))
        p('v_mov_b32 v%d, s46' % (vVt + 4))
        p('v_mov_b32 v%d, %d' % (vVt + 5, W))
        p('s_mov_b64 exec, 1')
        p('global_store_dwordx4 v%d, %s, s[44:45]' % (vT0, r4(vVt)))
        p('global_store_dwordx2 v%d, v[%d:%d], s[44:45] offset:16' % (vT0, vVt + 4, vVt + 5))
        if stamp > 1:
            p('v_lshlrev_b32 v%d, 2, v%d' % (vT0, vT0))
            p('v_add_u32 v%d, 0x100000, v%d' % (vT0, vT0))
            for k in range(5):
                p('v_mov_b32 v%d, s%d' % (vD + k, 50 + 2 * k))
            p('global_store_dwordx4 v%d, %s, s[44:45]' % (vT0, r4(vD)))
            p('global_store_dword v%d, v%d, s[44:45] offset:16' % (vT0, vD + 4))
    if stamp:
        stamps()
    p.label('L_end')
    p('s_endpgm')

    if helper:
        sNext, sWord, sCur, sTill, sR = 50, 51, 52, 53, 54
        vA0, vOne, vRk, vPr = 8, 9, 10, 12
        TB = 2 * IT
        p.label('L_helper')
        p('v_mov_b32 v%d, %d' % (vT0, NS))
        p('v_mov_b32 v%d, 0' % vT1)
        p('ds_write_b32 v%d, v%d' % (vCtl, vT0))
        for w in range(W):
            p('ds_write_b32 v%d, v%d offset:%d' % (vCtl, vT1, 4 + 4 * w))
        p('v_mov_b32 v%d, 1' % vOne)
        ng = 256 // G
        p('s_lshr_b32 s%d, s2, 3' % sTmp)
        p('s_and_b32 s%d, s%d, %d' % (sTmp, sTmp, ng - 1))
        p('s_lshl_b32 s%d, s%d, 2' % (sWord, sTmp))
        p('s_mul_i32 s%d, s%d, %d' % (sNext, sTmp, I))
        p('s_lshr_b32 s%d, s%d, %d' % (sNext, sNext, int(math.log2(ng))))
        p('s_add_u32 s%d, s%d, %d' % (sNext, sNext, first))
        p('s_waitcnt lgkmcnt(0)')
        p('s_barrier')
        p('s_mov_b64 exec, 1')

        def wait_progress(tag, sreg):
            p.label('L_w' + tag)
            p('s_sleep 2')
            p('ds_read_b32 v%d, v%d offset:4' % (vPr, vCtl))
            p('s_waitcnt lgkmcnt(0)')
            p('v_readfirstlane_b32 s%d, v%d' % (sCur, vPr))
            p('s_cmp_lt_u32 s%d, s%d' % (sCur, sreg))
            p('s_cbranch_scc1 L_w' + tag)

        def set_depth_imm(n):
            p('v_mov_b32 v%d, %d' % (vT0, n))
            p('ds_write_b32 v%d, v%d' % (vCtl, vT0))

        if warm:
            p('s_mov_b32 s%d, %d' % (sTill, 2))
            wait_progress('w', sTill)
            if 'v' in warm:
                p('s_lshl_b32 s%d, s2, 20' % sTmp)
                p('v_mov_b32 v%d, s%d' % (vA0, sTmp))
                p('global_load_dword v%d, v%d, s[36:37] nt' % (vRk, vA0))
            if 'o' in warm:
                p('s_lshl_b32 s%d, s2, 11' % sTmp)
                p('v_mov_b32 v%d, s%d' % (vA0, sTmp))
                p('global_load_dword v%d, v%d, s[38:39] nt' % (vRk, vA0))
            p('s_waitcnt vmcnt(0)')
        if n0:
            p('s_mov_b32 s%d, %d' % (sTill, n0b - 1))
            wait_progress('0', sTill)
            set_depth_imm(N)
        last = TB - (tailb if tailn else 0) - lastgap
        if ctl:
            p.label('L_hloop')
            wait_progress('1', sNext)
            p('v_mov_b32 v%d, s%d' % (vA0, sWord))
            p('global_atomic_add v%d, v%d, v%d, s[48:49] sc0' % (vRk, vA0, vOne))
            p('s_waitcnt vmcnt(0)')
            p('v_readfirstlane_b32 s%d, v%d' % (sR, vRk))
            p('s_lshl_b32 s%d, s%d, 1' % (sR, sR))
            p('s_sub_i32 s%d, s%d, %d' % (sR, sR, G - 1))
            p('s_mul_i32 s%d, s%d, %d' % (sR, sR, umax))
            p('s_add_i32 s%d, s%d, %d' % (sR, sR, G // 2))
            p('s_ashr_i32 s%d, s%d, %d' % (sR, sR, int(math.log2(G))))
            p('s_cmp_eq_i32 s%d, 0' % sR)
            p('s_cbranch_scc1 L_hnext')
            p('s_cmp_gt_i32 s%d, 0' % sR)
            p('s_cselect_b32 s%d, %d, %d' % (sTmp, N + step, N - step))
            p('v_mov_b32 v%d, s%d' % (vT0, sTmp))
            p('ds_write_b32 v%d, v%d' % (vCtl, vT0))
            p('ds_read_b32 v%d, v%d offset:4' % (vPr, vCtl))
            p('s_abs_i32 s%d, s%d' % (sR, sR))
            p('s_waitcnt lgkmcnt(0)')
            p('v_readfirstlane_b32 s%d, v%d' % (sCur, vPr))
            p('s_add_u32 s%d, s%d, s%d' % (sTill, sCur, sR))
            p('s_min_u32 s%d, s%d, %d' % (sTill, sTill, TB - 1 - (tailb if tailn else 0)))
            wait_progress('2', sTill)
            set_depth_imm(N)
            p.label('L_hnext')
            p('s_add_u32 s%d, s%d, %d' % (sWord, sWord, 4 * ng))
            p('s_add_u32 s%d, s%d, %d' % (sNext, sNext, I))
            p('s_cmp_le_u32 s%d, %d' % (sNext, last))
            p('s_cbranch_scc1 L_hloop')
            nchk = (last - first) // I + 1
            assert nchk * ng <= 64, nchk * ng
        if chk:
            cps = [tuple(int(v) for v in e.split(':')) for e in chk.split(',')]
            assert len(cps) <= 16
            sG, sBs, sX1, sX3, sU = 55, 58, 59, 60, 61
            p('s_lshr_b32 s%d, s2, 3' % sG)
            p('s_and_b32 s%d, s%d, %d' % (sG, sG, ng - 1))
            if loc == 'ws':
                p('s_load_dwordx2 s[48:49], s[0:1], 40')
                lg = int(math.log2(ng))
                for ci in range(len(cps)):
                    mul = [0, 1, 4, 3, 5, 2, 7, 9, 6, 11, 13, 10, 12, 14, 15, 8][ci] if rot else 0
                    p('s_and_b32 s%d, s2, 7' % sTmp)
                    p('s_mul_i32 s%d, s%d, %d' % (sTmp, sTmp, mul))
                    p('s_lshr_b32 s%d, s2, 3' % sWord)
                    if ng < 32 and rot:
                        p('s_lshr_b32 s%d, s%d, %d' % (sX1, sWord, ci % 5))
                        p('s_lshl_b32 s%d, s%d, %d' % (sWord, sWord, 5 - ci % 5))
                        p('s_or_b32 s%d, s%d, s%d' % (sWord, sWord, sX1))
                    p('s_xor_b32 s%d, s%d, s%d' % (sWord, sWord, sTmp))
                    p('s_and_b32 s%d, s%d, %d' % (sWord, sWord, ng - 1))
                    p('s_lshl_b32 s%d, s%d, 8' % (sWord, sWord))
                    p('s_add_u32 s%d, s%d, 0x%x' % (66 + 2 * ci, sWord, wsoff + ci * ng * 256))
                p('s_waitcnt lgkmcnt(0)')
                for ci in range(len(cps)):
                    p('s_load_dword s%d, s[48:49], s%d glc' % (67 + 2 * ci, 66 + 2 * ci))
                p('s_waitcnt lgkmcnt(0)')
            else:
                assert ng * len(cps) <= 32
                p('s_and_b32 s%d, s%d, 1' % (sWord, sG))
                p('s_lshl_b32 s%d, s%d, 7' % (sWord, sWord))
                p('s_lshr_b32 s%d, s%d, 1' % (sTmp, sG))
                p('s_lshl_b32 s%d, s%d, 2' % (sTmp, sTmp))
                p('s_add_u32 s%d, s%d, s%d' % (sWord, sWord, sTmp))
            for ci, (kb, sc) in enumerate(cps):
                end = (cps[ci + 1][0] if ci + 1 < len(cps) else TB - (tailb if tailn else 0)) - 1
                p('s_and_b32 s%d, s%d, 3' % (sNext, sG))
                p('s_mul_i32 s%d, s%d, %d' % (sNext, sNext, gst))
                p('s_add_u32 s%d, s%d, %d' % (sNext, sNext, kb))
                wait_progress('c%d' % ci, sNext)
                step_w = 0x40400 if loc == 'ws' else 4 * max(1, ng // 2)
                if loc == 'ws':
                    p('s_mov_b32 s%d, s%d' % (sTmp, 66 + 2 * ci))
                else:
                    p('s_add_u32 s%d, s%d, 0x%x' % (sTmp, sWord, ci * step_w))
                if sat:
                    p('s_mov_b32 s%d, 1' % sR)
                    p('s_atomic_add s%d, s[48:49], s%d glc' % (sR, sTmp))
                    p('s_waitcnt lgkmcnt(0)')
                    if loc == 'ws':
                        p('s_sub_u32 s%d, s%d, s%d' % (sR, sR, 67 + 2 * ci))
                else:
                    p('v_mov_b32 v%d, s%d' % (vA0, sTmp))
                    p('global_atomic_add v%d, v%d, v%d, s[48:49] sc0' % (vRk, vA0, vOne))
                    p('s_waitcnt vmcnt(0)')
                    if loc == 'ws':
                        p('v_sub_u32 v%d, v%d, v%d' % (vRk, vRk, 16 + ci))
                    p('v_readfirstlane_b32 s%d, v%d' % (sR, vRk))
                p('s_min_u32 s%d, s%d, %d' % (sR, sR, G - 1))
                p('s_lshl_b32 s%d, s%d, 1' % (sR, sR))
                p('s_sub_i32 s%d, s%d, %d' % (sR, sR, G - 1))
                p('s_mul_i32 s%d, s%d, %d' % (sX1, sR, 256 // G))
                p('s_mul_i32 s%d, s%d, s%d' % (sX3, sX1, sX1))
                p('s_lshr_b32 s%d, s%d, 8' % (sX3, sX3))
                p('s_mul_i32 s%d, s%d, s%d' % (sX3, sX3, sX3))
                p('s_lshr_b32 s%d, s%d, 8' % (sX3, sX3))
                p('s_mul_i32 s%d, s%d, 5' % (sX3, sX3))
                p('s_lshr_b32 s%d, s%d, 2' % (sX3, sX3))
                p('s_add_u32 s%d, s%d, 333' % (sX3, sX3))
                p('s_abs_i32 s%d, s%d' % (sU, sX1))
                p('s_mul_i32 s%d, s%d, s%d' % (sU, sU, sX3))
                p('s_mul_i32 s%d, s%d, %d' % (sU, sU, sc))
                p('s_add_u32 s%d, s%d, 0x8000' % (sU, sU))
                p('s_lshr_b32 s%d, s%d, 16' % (sU, sU))
                if dn != 4:
                    p('s_mul_i32 s%d, s%d, %d' % (sTmp, sU, dn))
                    p('s_add_u32 s%d, s%d, 2' % (sTmp, sTmp))
                    p('s_lshr_b32 s%d, s%d, 2' % (sTmp, sTmp))
                    p('s_cmp_gt_i32 s%d, 0' % sX1)
                    p('s_cselect_b32 s%d, s%d, s%d' % (sU, sU, sTmp))
                p('s_cmp_eq_u32 s%d, 0' % sU)
                p('s_cbranch_scc1 L_cn%d' % ci)
                p('s_cmp_gt_u32 s%d, %d' % (sU, R))
                p('s_cselect_b32 s%d, 1, 0' % sTmp)
                p('s_lshr_b32 s%d, s%d, s%d' % (sU, sU, sTmp))
                p('s_add_u32 s%d, s%d, 1' % (sTmp, sTmp))
                p('s_mul_i32 s%d, s%d, %d' % (sTmp, sTmp, act))
                p('s_sub_u32 s%d, 0, s%d' % (sBs, sTmp))
                p('s_cmp_gt_i32 s%d, 0' % sX1)
                p('s_cselect_b32 s%d, s%d, s%d' % (sTmp, sTmp, sBs))
                p('s_add_u32 s%d, s%d, %d' % (sTmp, sTmp, N))
                p('v_mov_b32 v%d, s%d' % (vT0, sTmp))
                p('ds_write_b32 v%d, v%d' % (vCtl, vT0))
                p('ds_read_b32 v%d, v%d offset:4' % (vPr, vCtl))
                p('s_waitcnt lgkmcnt(0)')
                p('v_readfirstlane_b32 s%d, v%d' % (sCur, vPr))
                p('s_add_u32 s%d, s%d, s%d' % (sTill, sCur, sU))
                p('s_min_u32 s%d, s%d, %d' % (sTill, sTill, end))
                wait_progress('d%d' % ci, sTill)
                set_depth_imm(N)
                p.label('L_cn%d' % ci)
        if probe:
            p('s_load_dwordx2 s[56:57], s[0:1], 40')
            p('s_waitcnt lgkmcnt(0)')
            p('s_mov_b32 s%d, %d' % (sNext, first))
            p('s_lshr_b32 s58, s2, 3')
            p('s_mul_i32 s58, s58, 0x11100')
            p('s_add_u32 s58, s58, 0x400000')
            p.label('L_ploop')
            wait_progress('p', sNext)
            if 's' in probe:
                p('s_and_b32 s%d, s2, 0x18' % sTmp)
                p('s_cmp_lg_u32 s%d, 0' % sTmp)
                p('s_cbranch_scc1 L_pns')
                p('s_lshr_b32 s%d, s2, 5' % sTmp)
                p('s_lshl_b32 s%d, s%d, 3' % (sTmp, sTmp))
                p('s_and_b32 s3, s2, 7')
                p('s_or_b32 s%d, s%d, s3' % (sTmp, sTmp))
                p('s_lshl_b32 s%d, s%d, 2' % (sTmp, sTmp))
                p('v_mov_b32 v%d, s%d' % (vA0, sTmp))
                p('v_mov_b32 v%d, s%d' % (vRk, sNext))
                p('global_store_dword v%d, v%d, s[48:49] sc1' % (vA0, vRk))
                p.label('L_pns')
            if 'l' in probe:
                p('s_mov_b64 exec, -1')
                p('v_lshlrev_b32 v%d, 2, v0' % vA0)
                p('global_load_dword v%d, v%d, s[48:49] sc1' % (vRk, vA0))
                p('s_mov_b64 exec, 1')
            if 'a' in probe:
                p('v_mov_b32 v%d, s58' % vA0)
                p('global_atomic_add v%d, v%d, v%d, s[56:57] sc0' % (vRk, vA0, vOne))
                p('s_add_u32 s58, s58, 0x1100')
            p('s_waitcnt vmcnt(0)')
            p('s_add_u32 s%d, s%d, %d' % (sNext, sNext, I))
            p('s_cmp_le_u32 s%d, %d' % (sNext, last))
            p('s_cbranch_scc1 L_ploop')
        if tailn:
            p('s_mov_b32 s%d, %d' % (sTill, TB - tailb - 1))
            wait_progress('3', sTill)
            set_depth_imm(tailn)
        p('s_waitcnt lgkmcnt(0)')
        if stamp:
            p('s_mov_b32 s42, s40')
            p('s_mov_b32 s43, s41')
            for k in range(5):
                p('s_mov_b32 s%d, s40' % (50 + 2 * k))
            p('s_mov_b64 exec, -1')
            p('s_memrealtime s[42:43]')
            p('s_waitcnt lgkmcnt(0)')
            p('s_mul_i32 s%d, s2, %d' % (sTmp, NW))
            p('s_add_u32 s%d, s%d, s%d' % (sTmp, sTmp, sW))
            p('s_lshl_b32 s%d, s%d, 5' % (sTmp, sTmp))
            p('v_mov_b32 v%d, s%d' % (vT0, sTmp))
            for i in range(6):
                p('v_mov_b32 v%d, -1' % (vVt + i))
            p('s_mov_b64 exec, 1')
            p('global_store_dwordx4 v%d, %s, s[44:45]' % (vT0, r4(vVt)))
            p('global_store_dwordx2 v%d, v[%d:%d], s[44:45] offset:16' % (vT0, vVt + 4, vVt + 5))
        p('s_endpgm')
    p.fix_hazards()
    mv, ma, ms = p.max_regs()
    nvg = mv + 1
    acc = min(256, (nvg + 3) // 4 * 4)
    txt = HEADER + '; @launch grid=(256,1,1) block=(%d,1,1) lds=%d\n' % (64 * NW, lds)
    txt += '.amdgcn_target "amdgcn-amd-amdhsa--gfx950"\n.text\n.globl %s\n.p2align 8\n.type %s,@function\n%s:\n' % (
        KNAME, KNAME, KNAME)
    txt += p.text()
    txt += """.section .rodata,"a"
.p2align 6
.amdhsa_kernel %s
  .amdhsa_next_free_vgpr %d
  .amdhsa_next_free_sgpr %d
  .amdhsa_accum_offset %d
  .amdhsa_group_segment_fixed_size 0
  .amdhsa_kernarg_size 48
  .amdhsa_user_sgpr_count 2
  .amdhsa_user_sgpr_kernarg_segment_ptr 1
  .amdhsa_system_sgpr_workgroup_id_x 1
.end_amdhsa_kernel
""" % (KNAME, nvg, ms + 1, acc)
    return txt


if __name__ == '__main__':
    kw = {}
    for a in sys.argv[2:]:
        k, v = a.split('=')
        try:
            v = int(v, 0)
        except ValueError:
            pass
        kw[k] = v
    open(sys.argv[1], 'w').write(gen(**kw))
```

```python
import re

TRANS = ('v_exp_f32', 'v_log_f32', 'v_rcp_f32', 'v_rsq_f32', 'v_sqrt_f32', 'v_sin_f32', 'v_cos_f32')
MFMA_PASSES = {
    'v_mfma_f32_16x16x32_bf16': 4,
    'v_mfma_f32_32x32x16_bf16': 8,
    'v_mfma_f32_16x16x16_bf16': 4,
    'v_mfma_f32_4x4x4_16b_bf16': 2,
}
D_TO_VALU = {2: 5, 4: 8, 8: 12, 16: 20}
D_TO_AB = {2: 5, 4: 8, 8: 12, 16: 20}
D_TO_C_PART = {2: 4, 4: 6, 8: 10, 16: 18}
D_TO_C_SAME = {2: 2, 4: 0, 8: 0, 16: 0}
C_WAR = {2: 1, 4: 3, 8: 7, 16: 15}

REG_RE = re.compile(r'^(-?)(abs\()?([vas])(\d+|\[(\d+):(\d+)\])\)?$')


def regs_of(op):
    op = op.strip()
    if op in ('vcc', 'vcc_lo', 'vcc_hi'):
        return {('s', 'vcc')}
    if op in ('exec', 'exec_lo', 'exec_hi'):
        return {('s', 'exec')}
    if op == 'm0':
        return {('s', 'm0')}
    m = REG_RE.match(op)
    if not m:
        return set()
    k = m.group(3)
    if m.group(5) is not None:
        return {(k, i) for i in range(int(m.group(5)), int(m.group(6)) + 1)}
    return {(k, int(m.group(4)))}


class Ins:
    def __init__(self, text):
        self.text = text
        body = text.split(';')[0].strip()
        parts = body.split(None, 1)
        self.op = parts[0]
        rest = parts[1] if len(parts) > 1 else ''
        ops = [o.strip() for o in rest.split(',')] if rest else []
        mods = ''
        if ops:
            last = ops[-1].split(None, 1)
            ops[-1] = last[0]
            if len(last) > 1:
                mods = last[1]
        self.ops = ops
        self.mods = mods
        op = self.op
        self.base = re.sub(r'_(e32|e64|dpp|sdwa)$', '', op)
        self.is_mfma = op.startswith('v_mfma')
        self.is_valu = op.startswith('v_') and not self.is_mfma
        self.is_salu = op.startswith('s_')
        self.is_vmem = op.startswith(('buffer_', 'global_', 'flat_'))
        self.is_ds = op.startswith('ds_')
        self.is_dpp = op.endswith('_dpp') or 'quad_perm' in mods or 'row_' in mods
        self.is_trans = self.base in TRANS
        self.is_permlane = op.startswith('v_permlane')
        self.is_readlane = op.startswith(('v_readlane', 'v_readfirstlane'))
        self.lds_dma = self.is_vmem and (' lds' in (' ' + mods) or '_lds_' in op)
        R = [regs_of(o) for o in ops]
        self.defs, self.uses = set(), set()
        self.nstates = 1
        if op == 's_nop':
            self.nstates = int(ops[0], 0) + 1
        elif self.is_mfma:
            self.passes = MFMA_PASSES[op]
            self.D, self.A, self.B, self.C = R[0], R[1], R[2], R[3]
            self.defs = set(R[0])
            self.uses = R[1] | R[2] | R[3]
        elif self.is_valu:
            if self.is_permlane and 'swap' in op:
                self.defs = R[0] | R[1]
                self.uses = R[0] | R[1]
            elif self.base.startswith('v_cmp'):
                self.defs = set(R[0])
                if self.base.startswith('v_cmpx'):
                    self.defs |= {('s', 'exec')}
                for r in R[1:]:
                    self.uses |= r
            elif '_co_' in self.base:
                self.defs = R[0] | R[1]
                for r in R[2:]:
                    self.uses |= r
            else:
                self.defs = set(R[0])
                for r in R[1:]:
                    self.uses |= r
                if self.base in ('v_fmac_f32', 'v_pk_fmac_f16', 'v_dot2c_f32_bf16') or self.is_dpp:
                    self.uses |= R[0]
                if self.base == 'v_cndmask_b32' and len(ops) == 3:
                    self.uses |= {('s', 'vcc')}
        elif self.is_vmem:
            load = '_load' in op
            ret_atomic = '_atomic' in op and 'sc0' in mods.split()
            if self.lds_dma:
                for r in R:
                    self.uses |= r
                self.uses |= {('s', 'm0')}
            elif load:
                self.defs = set(R[0])
                for r in R[1:]:
                    self.uses |= r
            else:
                for r in R:
                    self.uses |= r
                if ret_atomic:
                    self.defs = set(R[0])
            self.wide_store = (not load) and ('x4' in op or 'x3' in op)
            self.sdata = set()
            if self.wide_store:
                self.sdata = R[0] if op.startswith('buffer_') else R[1]
        elif self.is_ds:
            if op.startswith(('ds_read', 'ds_bpermute', 'ds_permute', 'ds_swizzle')):
                self.defs = set(R[0])
                for r in R[1:]:
                    self.uses |= r
            else:
                for r in R:
                    self.uses |= r
        elif self.is_salu:
            nodef = op.startswith(('s_cmp', 's_waitcnt', 's_barrier', 's_cbranch', 's_branch', 's_endpgm',
                                   's_setprio', 's_sleep', 's_bitcmp', 's_setpc'))
            if nodef:
                for r in R:
                    self.uses |= r
            else:
                if R:
                    self.defs = set(R[0])
                for r in R[1:]:
                    self.uses |= r
                if op.startswith('s_atomic'):
                    self.uses |= R[0]
                if 'saveexec' in op:
                    self.defs |= {('s', 'exec')}


def vec(rs):
    return {r for r in rs if r[0] in 'va'}


def sca(rs):
    return {r for r in rs if r[0] == 's'}


def required(prev, cur):
    need = 0
    if prev.is_valu:
        pv, ps = vec(prev.defs), sca(prev.defs)
        if cur.is_mfma and pv & cur.uses:
            need = max(need, 2)
        if cur.is_valu and cur.is_dpp and pv & cur.uses:
            need = max(need, 2)
        if cur.is_permlane and pv & cur.uses:
            need = max(need, 2)
        if cur.is_readlane and pv & cur.uses:
            need = max(need, 1)
        if prev.is_trans and cur.is_valu and not cur.is_trans and pv & cur.uses:
            need = max(need, 1)
        if prev.is_trans and cur.is_mfma and pv & cur.uses:
            need = max(need, 2)
        if ('op_sel' in prev.mods or prev.op.endswith('sdwa')) and cur.is_valu and pv & (cur.uses | cur.defs):
            need = max(need, 1)
        if ps:
            if cur.is_valu and ps & cur.uses:
                need = max(need, 4 if cur.is_readlane else 2)
            if cur.is_vmem and ps & cur.uses:
                need = max(need, 5)
            if cur.is_salu and ps & cur.uses:
                need = max(need, 1)
            if ('s', 'exec') in ps:
                if cur.is_dpp:
                    need = max(need, 5)
                if cur.is_mfma or cur.is_permlane or cur.is_readlane:
                    need = max(need, 4)
    if prev.is_mfma:
        p = prev.passes
        if cur.is_mfma:
            if prev.D & (cur.A | cur.B):
                need = max(need, D_TO_AB[p])
            if prev.D & cur.C:
                same = prev.D == cur.C and prev.passes == cur.passes
                need = max(need, D_TO_C_SAME[p] if same else D_TO_C_PART[p])
            elif prev.D & cur.D:
                need = max(need, D_TO_C_PART[p])
        elif cur.is_valu:
            if prev.D & (cur.uses | cur.defs):
                need = max(need, D_TO_VALU[p])
            if prev.C & cur.defs:
                need = max(need, C_WAR[p])
        elif cur.is_vmem or cur.is_ds:
            if prev.D & (cur.uses | cur.defs):
                need = max(need, D_TO_VALU[p])
            if prev.C & cur.defs:
                need = max(need, C_WAR[p])
    if prev.is_vmem and getattr(prev, 'wide_store', False):
        if prev.sdata & cur.defs:
            need = max(need, 2)
    if prev.is_salu and ('s', 'm0') in prev.defs:
        if cur.is_vmem and cur.lds_dma:
            need = max(need, 1)
    return need


WINDOW = 24


class Prog:
    def __init__(self):
        self.items = []

    def __call__(self, text):
        for line in text.strip().split('\n'):
            line = line.strip()
            if not line or line.startswith(';'):
                if line:
                    self.items.append(('raw', '    ' + line))
                continue
            if line.endswith(':'):
                self.items.append(('label', line[:-1]))
            elif line.startswith('.'):
                self.items.append(('raw', line))
            else:
                self.items.append(('ins', Ins(line)))

    def label(self, n):
        self.items.append(('label', n))

    def _succ_paths_pad(self):
        items = self.items
        labels = {it[1]: i for i, it in enumerate(items) if it[0] == 'label'}
        preds = {}
        for i, it in enumerate(items):
            if it[0] == 'ins' and it[1].op.startswith(('s_cbranch', 's_branch')):
                preds.setdefault(labels[it[1].ops[0]], []).append(i)
            if it[0] == 'ins' and it[1].op == 's_call_b64':
                preds.setdefault(labels[it[1].ops[1]], []).append(i)

        def walk_back(start, dist, cur, via_branch, seen):
            miss = 0
            j = start
            while j >= 0 and dist < WINDOW:
                it = items[j]
                if it[0] == 'label':
                    for pj in preds.get(j, []):
                        key = (pj, dist)
                        if key in seen:
                            continue
                        seen.add(key)
                        miss = max(miss, walk_back(pj, dist, cur, True, seen))
                elif it[0] == 'ins':
                    ins = it[1]
                    if ins.op in ('s_branch', 's_endpgm', 's_setpc_b64') and not (via_branch and j == start):
                        return miss
                    miss = max(miss, required(ins, cur) - dist)
                    dist += ins.nstates
                j -= 1
            return miss

        for i, it in enumerate(items):
            if it[0] != 'ins':
                continue
            m = walk_back(i - 1, 0, it[1], False, set())
            if m > 0:
                while m > 0:
                    k = min(m, 16)
                    items.insert(i, ('ins', Ins('s_nop %d' % (k - 1))))
                    m -= k
                return True
        return False

    def fix_hazards(self):
        n = 0
        while self._succ_paths_pad():
            n += 1
        return n

    def text(self):
        out = []
        for it in self.items:
            if it[0] == 'label':
                out.append(it[1] + ':')
            elif it[0] == 'raw':
                out.append(it[1])
            else:
                out.append('    ' + it[1].text)
        return '\n'.join(out) + '\n'

    def max_regs(self):
        mv = ma = ms = -1
        for it in self.items:
            if it[0] == 'ins':
                for k, r in it[1].defs | it[1].uses:
                    if isinstance(r, int):
                        if k == 'v':
                            mv = max(mv, r)
                        elif k == 'a':
                            ma = max(ma, r)
                        else:
                            ms = max(ms, r)
        return mv, ma, ms
```

```python
import math
import sys
sys.path.insert(0, 'work')
from asmlib import Prog
from gen_attn import KNAME, f32bits

PATS = {
    'B': '100 200 400 800 1000 2000 4000 8000 10000 20000 40000 80000 0 0 0 0 0 0 0 0',
    'C2': '100 200 800 8000 1000 2000 4000 10000 20000 40000 80000 400 0 0 0 0 0 0 0 0',
    'S1': '2000 100 400 8100 1000 200 800 10200 80000 20000 40800 4000 0 0 0 0 0 0 0 0',
    'S2': '2000 4000 8100 200 1000 100 800 10000 80000 20000 400 40800 0 0 0 0 0 0 0 0',
    'F': '8800 a00 1ba00 8b00 72b00 12000 1e000 11300 c9200 4b000 9c900 43f00 70000 1c800 be000 6800 9d800 48000 b000 79800',
    'F2': 'a00 1b000 8b00 72b00 12000 1e000 8800 11300 c9200 4b000 94100 43f00 70000 18800 ac000 6800 95800 48000 b000 69000',
}

HEADER = """; GQA decode attention (B=16, Hq=32, Hkv=16, Sq=4, Sk=4096, D=128), bf16 in / bf16 out.
"""


def dep(x, ms):
    r = 0
    for k, m in enumerate(ms):
        if x >> k & 1:
            r ^= m
    return r


def gen(N=10, amp=2, pol='nt', pat='F2', chk='24:6,40:7,54:5', R=12, dn=2, lag=2, act=1, wsoff=0,
        stamp=0, diag_hold=0, opol='', alt=0, noat=0, nobase=0, lw2=0, w0only=0, cstride=256, fk=0, fv=0):
    W, IT = 2, 32
    TB = 2 * IT
    cps = [tuple(int(v) for v in e.split(':')) for e in chk.split(',') if e] if chk else []
    nlo = N - amp if cps else N
    nhi = N + amp if cps else N
    dyn = nhi > nlo
    rt = pat == 'rt'
    pm = [int(x, 16) for x in PATS.get('B' if rt else pat, pat.replace('_', ' ')).split()]
    mL, mW, mS = pm[0:2], pm[5:6], pm[12:20]
    seq = pm[2:5] + pm[6:12]
    mJ, mT = seq[:4], seq[4:]
    p = Prog()
    vLn, vLv, vT0, vT1, vM, vL, vSa = 1, 2, 3, 4, 5, 6, 7
    vAB = 8
    vP = 12
    vQ = 16
    vS = 24
    vD = 32
    vVt = 48
    vO = 80
    vR = 112
    vMA, vMB, vBase, vAd = 176, 177, 178, 179
    vEw, vEm, vEr, vEl, vEo, vDum = 181, 182, 184, 183, 188, 189
    sX, sQ, sO, sVb = 8, 16, 20, 12
    sCnt, sW, sC, sSelLo, sSelHi, sTmp, sTgt = 26, 27, 28, 29, 30, 31, 32
    sH = 34
    sFix, sNx, sBi = 24, 25, 33
    sEvt, sTill, sMod, sRk, sX1, sX3, sU, sSt = 50, 51, 52, 53, 54, 55, 56, 57
    sRet, sWs, sGo = 58, 48, 60
    sCw = 84
    fl = (' ' + pol.replace('+', ' ')) if pol else ''
    ofl = (' ' + opol.replace('+', ' ')) if opol else ''
    QS, MS = 656, 80
    HS = 8 * QS
    WS = 65536
    ML = 131072 + 2048
    lds = ML + 128

    def r4(b):
        return 'v[%d:%d]' % (b, b + 3)

    def mark(k):
        if stamp > 1:
            p('s_memrealtime s[%d:%d]' % (90 + 2 * k, 91 + 2 * k))

    def addr(j):
        c = dep(j % 16, mJ)
        if rt:
            p('v_xor_b32 v%d, s%d, v%d' % (vAd + (j & 1), 64 + j % 16, vBase))
        elif c:
            p('v_xor_b32 v%d, 0x%x, v%d' % (vAd + (j & 1), c, vBase))

    def load(j):
        va = vAd + (j & 1) if (rt or dep(j % 16, mJ)) else vBase
        p('buffer_load_dwordx4 %s, v%d, s[%d:%d], 0 offen%s' % (r4(vR + 4 * (j % 16)), va, sX, sX + 3, fl))

    def issue(j):
        addr(j)
        load(j)

    p('s_cmp_ge_u32 s2, 256')
    p('s_cbranch_scc1 L_end')
    p('s_load_dwordx4 s[4:7], s[0:1], 0')
    p('s_load_dwordx4 s[36:39], s[0:1], 16')
    if cps or stamp:
        p('s_load_dwordx2 s[%d:%d], s[0:1], 40' % (sWs, sWs + 1))
    if stamp or diag_hold:
        p('s_memrealtime s[40:41]')
    p('v_lshrrev_b32 v%d, 6, v0' % vT0)
    p('v_and_b32 v0, 63, v0')
    p('v_readfirstlane_b32 s%d, v%d' % (sW, vT0))
    p('v_lshrrev_b32 v%d, 4, v0' % vT0)
    p('v_lshlrev_b32 v%d, 6, v%d' % (vT0, vT0))
    p('v_and_b32 v%d, 3, v0' % vT1)
    p('v_lshl_add_u32 v%d, v%d, 4, v%d' % (vLn, vT1, vT0))
    for k in range(2):
        p('v_bfe_i32 v%d, v0, %d, 1' % (vT1, 2 + k))
        p('v_and_b32 v%d, 0x%x, v%d' % (vT1, mL[k], vT1))
        p('v_xor_b32 v%d, v%d, v%d' % (vLn, vLn, vT1))
    p('; Q lanes: (s, h = (lane>>3)&1, q = lane&7) read 16 B at q*256 + (4 s + h) * 16, and 32 B further')
    p('v_and_b32 v%d, 7, v0' % vT1)
    p('v_lshl_add_u32 v%d, v%d, 8, v%d' % (vT0, vT1, vT0))
    p('v_bfe_u32 v%d, v0, 3, 1' % vT1)
    p('v_lshl_add_u32 v%d, v%d, 4, v%d' % (vT0, vT1, vT0))
    p('v_cmp_ne_u32 s[%d:%d], 0, v%d' % (sH, sH + 1, vT1))
    p('s_mov_b32 s%d, 0' % sFix)
    for src, ms in ((sW, mW), (2, mS)):
        for k, m in enumerate(ms):
            if m:
                p('s_bitcmp1_b32 s%d, %d' % (src, k))
                p('s_cselect_b32 s3, 0x%x, 0' % m)
                p('s_xor_b32 s%d, s%d, s3' % (sFix, sFix))
    p('v_xor_b32 v%d, s%d, v%d' % (vBase, sFix, vLn))
    p('s_lshl_b32 s%d, s2, 20' % sTmp)
    p('s_lshl_b32 s3, s2, 11')
    for s, n in ((sX, 0x100000), (sQ, 2048), (sO, 2048)):
        p('s_mov_b32 s%d, 0x%x' % (s + 2, n))
        p('s_mov_b32 s%d, 0x20000' % (s + 3))
    p('s_waitcnt lgkmcnt(0)')
    mark(0)
    if rt:
        p('s_add_u32 s46, s%d, 0x200000' % sWs)
        p('s_addc_u32 s47, s%d, 0' % (sWs + 1))
        p('s_lshl_b32 s63, s2, 1')
        p('s_add_u32 s63, s63, s%d' % sW)
        p('s_lshl_b32 s63, s63, 2')
        p('s_load_dword s%d, s[46:47], s63' % sFix)
        p('s_load_dwordx16 s[64:79], s[46:47], 0x1000')
        p('s_load_dword s80, s[46:47], 0x1104')
        p('v_lshlrev_b32 v%d, 2, v0' % vT1)
        p('v_add_u32 v%d, 0x1800, v%d' % (vT1, vT1))
        p('global_load_dword v%d, v%d, s[46:47]' % (vLv, vT1))
        p('global_load_dword v%d, v%d, s[46:47] offset:256' % (vLn, vT1))
        p('s_waitcnt vmcnt(0) lgkmcnt(0)')
        p('s_memrealtime s[40:41]')
        p('v_xor_b32 v%d, s%d, v%d' % (vBase, sFix, vLn))
    p('s_add_u32 s%d, s6, s%d' % (sX, sTmp))
    p('s_addc_u32 s%d, s7, 0' % (sX + 1))
    p('s_add_u32 s%d, s4, s3' % sQ)
    p('s_addc_u32 s%d, s5, 0' % (sQ + 1))
    p('buffer_load_dwordx4 %s, v%d, s[%d:%d], 0 offen' % (r4(vQ), vT0, sQ, sQ + 3))
    p('buffer_load_dwordx4 %s, v%d, s[%d:%d], 0 offen offset:32' % (r4(vQ + 4), vT0, sQ, sQ + 3))
    for j in range(N):
        issue(j)
    p('s_add_u32 s%d, s36, s%d' % (sVb, sTmp))
    p('s_addc_u32 s%d, s37, 0' % (sVb + 1))
    p('s_add_u32 s%d, s38, s3' % sO)
    p('s_addc_u32 s%d, s39, 0' % (sO + 1))
    if cps:
        p('; rank counters: one word per (checkpoint, wave, group of 8 workgroups); entry value = base')
        for ci in range(len(cps)):
            mul = [0, 1, 4, 3, 5, 2, 7, 9][ci]
            p('s_and_b32 s%d, s2, 7' % sTmp)
            p('s_mul_i32 s%d, s%d, %d' % (sTmp, sTmp, mul))
            p('s_lshr_b32 s3, s2, 3')
            p('s_xor_b32 s3, s3, s%d' % sTmp)
            p('s_and_b32 s3, s3, 31')
            p('s_lshl_b32 s%d, s%d, 5' % (sTmp, sW))
            p('s_or_b32 s3, s3, s%d' % sTmp)
            p('s_mul_i32 s3, s3, %d' % cstride)
            p('s_add_u32 s%d, s3, 0x%x' % (sCw + 2 * ci, wsoff + ci * 64 * cstride))
            if nobase:
                p('s_mov_b32 s%d, 0' % (sCw + 2 * ci + 1))
            else:
                p('s_load_dword s%d, s[%d:%d], s%d glc' % (sCw + 2 * ci + 1, sWs, sWs + 1, sCw + 2 * ci))
        p('s_mov_b32 s%d, %d' % (sEvt, cps[0][0]))
        p('s_mov_b32 s%d, 0' % sSt)
        p('s_mov_b32 s%d, 0' % sTill)
        p('s_mov_b32 s%d, %d' % (sMod, N))
    c = math.log2(math.e) / math.sqrt(128.0)
    p('s_mov_b32 s%d, 0x%08x' % (sC, f32bits(c)))
    p('s_mov_b32 s%d, 0x05040100' % sSelLo)
    p('s_mov_b32 s%d, 0x07060302' % sSelHi)
    p('s_mov_b32 s%d, 0' % sBi)
    p('s_mov_b32 s%d, %d' % (sCnt, IT))
    if not rt:
        p('; V lanes: (row = lane>>4, i = lane&15) read 16 B at row + 16 i')
        p('v_and_b32 v%d, 15, v0' % vLv)
        p('v_lshlrev_b32 v%d, 4, v%d' % (vLv, vLv))
        for k in range(2):
            p('v_bfe_i32 v%d, v0, %d, 1' % (vT1, 4 + k))
            p('v_and_b32 v%d, 0x%x, v%d' % (vT1, mL[k], vT1))
            p('v_xor_b32 v%d, v%d, v%d' % (vLv, vLv, vT1))
    p('s_lshl_b32 s%d, s%d, 16' % (sTmp, sW))
    p('v_lshl_add_u32 v%d, v0, 4, s%d' % (vSa, sTmp))
    p('v_mov_b32 v%d, 0xff800000' % vM)
    p('v_mov_b32 v%d, 0' % vL)
    p('v_cndmask_b32 v%d, -1, 0, s[%d:%d]' % (vMA, sH, sH + 1))
    p('v_cndmask_b32 v%d, 0, -1, s[%d:%d]' % (vMB, sH, sH + 1))
    for i in range(32):
        p('v_mov_b32 v%d, 0' % (vO + i))
    p('v_and_b32 v%d, 15, v0' % vT0)
    p('v_mul_u32_u24 v%d, %d, v%d' % (vEw, QS, vT0))
    p('v_lshrrev_b32 v%d, 4, v0' % vT1)
    p('v_lshl_add_u32 v%d, v%d, 4, v%d' % (vEw, vT1, vEw))
    p('v_add_u32 v%d, s%d, v%d' % (vEw, sTmp, vEw))
    p('s_lshl_b32 s3, s%d, 2' % sW)
    p('v_add_u32 v%d, s3, v%d' % (vT1, vT1))
    p('v_mul_u32_u24 v%d, %d, v%d' % (vEr, QS, vT1))
    p('v_lshl_add_u32 v%d, v%d, 2, v%d' % (vEr, vT0, vEr))
    p('v_add_u32 v%d, %d, v%d' % (vEr + 1, HS, vEr))
    p('v_add_u32 v%d, %d, v%d' % (vEr + 2, WS, vEr))
    p('v_add_u32 v%d, %d, v%d' % (vEr + 3, WS + HS, vEr))
    p('v_lshlrev_b32 v%d, 4, v%d' % (vEl, vT1))
    p('v_add_u32 v%d, %d, v%d' % (vEl, ML, vEl))
    p('v_lshlrev_b32 v%d, 8, v%d' % (vEo, vT1))
    p('v_lshl_add_u32 v%d, v%d, 4, v%d' % (vEo, vT0, vEo))
    p('v_and_b32 v%d, 7, v0' % vT0)
    p('s_lshl_b32 s3, s%d, 3' % sW)
    p('s_add_u32 s3, s3, %d' % ML)
    p('v_lshl_add_u32 v%d, v%d, 4, s3' % (vEm, vT0))
    if stamp > 1:
        p('s_waitcnt vmcnt(%d)' % (N - 1))
        mark(1)
        p('s_waitcnt lgkmcnt(0)')

    def ab(i):
        d, t = vD + 8 * (i & 1), vAB + 2 * (i & 1)
        p('v_add_f32 v%d, v%d, v%d' % (t, d + 0, d + 6))
        p('v_add_f32 v%d, v%d, v%d' % (t + 1, d + 1, d + 7))

    def dpp(i):
        t = vAB + 2 * (i & 1)
        if i < 8:
            p('v_add_f32_dpp v%d, v%d, v%d row_ror:8 row_mask:0xf bank_mask:0x3' % (vS + i, t + 1, t))
        else:
            p('v_add_f32_dpp v%d, v%d, v%d row_ror:8 row_mask:0xf bank_mask:0xc' % (vS + i - 8, t, t + 1))

    def cross(ph):
        p('s_cmp_eq_u32 s%d, 1' % sCnt)
        if ph == 'K':
            p('s_cselect_b32 s%d, s%d, s%d' % (sX, sVb, sX))
            p('s_cselect_b32 s%d, s%d, s%d' % (sX + 1, sVb + 1, sX + 1))
            p('s_cselect_b64 vcc, -1, 0')
            p('v_cndmask_b32 v%d, v%d, v%d, vcc' % (vLn, vLn, vLv))
        else:
            p('s_cselect_b32 s%d, 0, s%d' % (sX + 2, sX + 2))
        p('v_xor_b32 v%d, s%d, v%d' % (vBase, sNx, vLn))

    def head(ph, n, i):
        f = fk if ph == 'K' else fv
        if i == 0:
            addr(n)
            p('s_waitcnt vmcnt(%d)' % (n - 1))
            load(n)
            p.label('L_%s%d_a' % (ph, n))
            if f:
                issue(n + 1)
            p('s_add_u32 s%d, s%d, 1' % (sBi, sBi))
            if rt:
                p('s_xor_b32 s%d, s%d, s80' % (sNx, sFix))
                p('s_lshl_b32 s3, s%d, 2' % sBi)
                p('s_add_u32 s3, s3, 0x1104')
                p('s_load_dword s80, s[46:47], s3')
            else:
                p('s_mov_b32 s%d, s%d' % (sNx, sFix))
                for k, m in enumerate(mT):
                    p('s_bitcmp1_b32 s%d, %d' % (sBi, k))
                    p('s_cselect_b32 s3, 0x%x, 0' % m)
                    p('s_xor_b32 s%d, s%d, s3' % (sNx, sNx))
            return
        if f and i == f:
            p('s_waitcnt vmcnt(%d)' % n)
            return
        wide = 1 if i < f else 0
        j = i + n + wide
        if j == 16:
            cross(ph)
        addr(j)
        p('s_waitcnt vmcnt(%d)' % (n - 1 + wide))
        load(j)

    def decide(n):
        p('s_sub_u32 s%d, s%d, 1' % (sCnt, sCnt))
        if dyn:
            p('s_cmp_lt_u32 s%d, s%d' % (sBi, sTill))
            p('s_cselect_b32 s%d, s%d, %d' % (sGo, sMod, N))
            p('s_xor_b32 s%d, s%d, %d' % (sGo, sGo, n))
            p('s_cmp_eq_u32 s%d, 0' % sCnt)
            p('s_cselect_b32 s%d, 1, s%d' % (sGo, sGo))
            p('s_cmp_eq_u32 s%d, s%d' % (sBi, sEvt))
            p('s_cselect_b32 s%d, 1, s%d' % (sGo, sGo))

    def tail(ph, n, exit_label):
        if not dyn:
            p('s_cmp_lg_u32 s%d, 0' % sCnt)
            p('s_cbranch_scc1 L_%s%d' % (ph, n))
            p('s_branch %s' % exit_label)
            return
        p('s_cmp_eq_u32 s%d, 0' % sGo)
        p('s_cbranch_scc1 L_%s%d' % (ph, n))
        p('s_cmp_eq_u32 s%d, 0' % sCnt)
        if ph == 'V':
            p('s_cbranch_scc1 %s' % exit_label)
        p('s_cmp_lg_u32 s%d, s%d' % (sBi, sEvt))
        p('s_cbranch_scc1 L_%s%d_c' % (ph, n))
        p('s_call_b64 s[%d:%d], L_ctl' % (sRet, sRet + 1))
        p.label('L_%s%d_c' % (ph, n))
        if ph == 'K':
            p('s_cmp_eq_u32 s%d, 0' % sCnt)
            p('s_cbranch_scc1 %s' % exit_label)
        p('s_cmp_lt_u32 s%d, s%d' % (sBi, sTill))
        p('s_cselect_b32 s%d, s%d, %d' % (sTgt, sMod, N))
        if n < nhi:
            p('s_cmp_gt_u32 s%d, %d' % (sTgt, n))
            p('s_cbranch_scc1 L_%s%d_up' % (ph, n))
        if n > nlo:
            p('s_cmp_ge_u32 s%d, %d' % (sTgt, n))
            p('s_cbranch_scc1 L_%s%d' % (ph, n))
            p('s_waitcnt vmcnt(%d)' % (n - 1))
            p('s_branch L_%s%d_a' % (ph, n - 1))
        else:
            p('s_branch L_%s%d' % (ph, n))
        if n < nhi:
            p.label('L_%s%d_up' % (ph, n))
            issue(n)
            p('s_branch L_%s%d' % (ph, n + 1))

    def kbody(n):
        p('.p2align 3')
        p.label('L_K%d' % n)
        for i in range(16):
            head('K', n, i)
            d = vD + 8 * (i & 1)
            p('v_mfma_f32_16x16x32_bf16 %s, %s, %s, 0' % (r4(d), r4(vR + 4 * i), r4(vQ)))
            p('v_mfma_f32_16x16x32_bf16 %s, %s, %s, 0' % (r4(d + 4), r4(vR + 4 * i), r4(vQ + 4)))
            if i >= 2:
                dpp(i - 2)
            if i >= 1:
                ab(i - 1)
            if i == 12:
                decide(n)
            if i == 14 and rt:
                p('s_waitcnt lgkmcnt(0)')
        dpp(14)
        ab(15)
        p('v_max3_f32 v%d, v%d, v%d, v%d' % (vM, vM, vS, vS + 1))
        p('v_max3_f32 v%d, v%d, v%d, v%d' % (vM, vM, vS + 2, vS + 3))
        dpp(15)
        p('ds_write_b128 v%d, %s' % (vSa, r4(vS)))
        p('v_max3_f32 v%d, v%d, v%d, v%d' % (vM, vM, vS + 4, vS + 5))
        p('v_max3_f32 v%d, v%d, v%d, v%d' % (vM, vM, vS + 6, vS + 7))
        p('ds_write_b128 v%d, %s offset:1024' % (vSa, r4(vS + 4)))
        p('v_add_u32 v%d, 2048, v%d' % (vSa, vSa))
        tail('K', n, 'L_T%d' % n)

    lw = 0 if rt else 1 + lw2

    def trans(n):
        p.label('L_T%d' % n)
        p('v_subrev_u32 v%d, %d, v%d' % (vSa, IT * 2048, vSa))
        mark(2)
        p('ds_read_b128 %s, v%d' % (r4(vS), vSa))
        p('ds_read_b128 %s, v%d offset:1024' % (r4(vS + 4), vSa))
        p('ds_read_b32 v%d, v%d' % (vDum, vSa))
        if lw2:
            p('ds_read_b32 v%d, v%d' % (vDum, vSa))
        p('v_max_f32_dpp v%d, v%d, v%d row_ror:8 row_mask:0xf bank_mask:0xf' % (vM, vM, vM))
        p('s_mov_b32 s%d, %d' % (sCnt, IT))
        p('v_mov_b32 v%d, v%d' % (vT1, vM))
        p('v_permlane32_swap_b32 v%d, v%d' % (vM, vT1))
        p('v_max_f32 v%d, v%d, v%d' % (vM, vM, vT1))
        p('v_mov_b32 v%d, v%d' % (vT1, vM))
        p('v_permlane16_swap_b32 v%d, v%d' % (vM, vT1))
        p('v_max_f32 v%d, v%d, v%d' % (vM, vM, vT1))
        p('v_mul_f32 v%d, s%d, v%d' % (vM, sC, vM))
        p('s_waitcnt lgkmcnt(%d)' % (0 if stamp > 1 else lw))

    def vbody(n):
        extra = {i: [] for i in range(16)}
        extra[0] += ['v_fma_f32 v%d, v%d, s%d, -v%d' % (vS + e, vS + e, sC, vM) for e in range(8)]
        extra[0] += ['v_exp_f32 v%d, v%d' % (vS + e, vS + e) for e in range(4)]
        extra[2] += ['v_exp_f32 v%d, v%d' % (vS + e, vS + e) for e in range(4, 8)]
        extra[2] += ['v_add_f32 v%d, v%d, v%d' % (vT0, vS, vS + 1), 'v_add_f32 v%d, v%d, v%d' % (vT1, vS + 2, vS + 3)]
        extra[4] += ['v_cvt_pk_bf16_f32 v%d, v%d, v%d' % (vP + w, vS + 2 * w, vS + 2 * w + 1) for w in range(4)]
        extra[4] += ['v_add_f32 v%d, v%d, v%d' % (vT0, vT0, vS + 4), 'v_add_f32 v%d, v%d, v%d' % (vT1, vT1, vS + 5),
                     'v_add_f32 v%d, v%d, v%d' % (vT0, vT0, vS + 6), 'v_add_f32 v%d, v%d, v%d' % (vT1, vT1, vS + 7),
                     'v_add_f32 v%d, v%d, v%d' % (vL, vL, vT0), 'v_add_f32 v%d, v%d, v%d' % (vL, vL, vT1)]
        extra[6] += ['v_add_u32 v%d, 2048, v%d' % (vSa, vSa),
                     'ds_read_b128 %s, v%d' % (r4(vS), vSa),
                     'ds_read_b128 %s, v%d offset:1024' % (r4(vS + 4), vSa),
                     'ds_read_b32 v%d, v%d' % (vDum, vSa)] + ['ds_read_b32 v%d, v%d' % (vDum, vSa)] * lw2
        extra[6] += ['v_and_b32 v%d, v%d, v%d' % (vQ + w, vMA, vP + w) for w in range(4)]
        extra[10] += ['v_and_b32 v%d, v%d, v%d' % (vQ + 4 + w, vMB, vP + w) for w in range(4)]
        extra[12] += ['s_cmp_lg_u32 s%d, 1' % sCnt, 's_cbranch_scc1 L_V%d_l' % n,
                      's_call_b64 s[%d:%d], L_sum' % (sRet, sRet + 1), 'L_V%d_l:' % n]
        extra[14] += ['s_waitcnt lgkmcnt(%d)' % lw]

        def mf(pb, ms):
            return ['v_mfma_f32_16x16x32_bf16 %s, %s, %s, %s' % (r4(vO + 4 * m), r4(vVt + 4 * m), r4(pb), r4(vO + 4 * m))
                    for m in ms]
        extra[7] += mf(vQ, range(0, 4))
        extra[8] += mf(vQ, range(4, 8))
        extra[15] += mf(vQ + 4, range(0, 8))
        p('.p2align 3')
        p.label('L_V%d' % n)
        for i in range(16):
            head('V', n, i)
            if i & 1:
                w = (i & 7) >> 1
                a = vR + 4 * (i - 1)
                for u in range(4):
                    p('v_perm_b32 v%d, v%d, v%d, s%d' % (vVt + 8 * u + w, a + 4 + u, a + u, sSelLo))
                    p('v_perm_b32 v%d, v%d, v%d, s%d' % (vVt + 8 * u + 4 + w, a + 4 + u, a + u, sSelHi))
            for x in extra[i]:
                p(x)
            if i == 12:
                decide(n)
        tail('V', n, 'L_epi')

    assert nhi + (1 if fk or fv else 0) <= 14 and nlo >= 5
    order = [N] + [n for n in range(nlo, nhi + 1) if n != N]
    for n in order:
        kbody(n)
    for n in order[::-1]:
        trans(n)
        vbody(n)

    p.label('L_epi')
    mark(3)
    for m in range(8):
        p('ds_write_b128 v%d, %s offset:%d' % (vEw, r4(vO + 4 * m), m * MS))
    p('s_waitcnt lgkmcnt(0)')
    p('s_barrier')
    mark(4)
    vA, vRd = vVt, vO
    p('ds_read_b128 %s, v%d' % (r4(vA), vEl))
    for pp in range(4):
        for k in range(4):
            dst = vRd + pp * 8 + 2 * k
            p('ds_read2_b32 v[%d:%d], v%d offset0:%d offset1:%d' %
              (dst, dst + 1, vEr + pp, 2 * k * MS // 4, (2 * k + 1) * MS // 4))
    p('s_waitcnt lgkmcnt(%d)' % (0 if stamp > 1 else 15))
    p('v_max_f32 v%d, v%d, v%d' % (vT1, vA, vA + 2))
    p('v_sub_f32 v%d, v%d, v%d' % (vA, vA, vT1))
    p('v_sub_f32 v%d, v%d, v%d' % (vA + 2, vA + 2, vT1))
    p('v_exp_f32 v%d, v%d' % (vA, vA))
    p('v_exp_f32 v%d, v%d' % (vA + 2, vA + 2))
    p('v_mul_f32 v%d, v%d, v%d' % (vL, vA, vA + 1))
    p('v_fmac_f32 v%d, v%d, v%d' % (vL, vA + 2, vA + 3))
    p('v_rcp_f32 v%d, v%d' % (vL, vL))
    p('s_waitcnt lgkmcnt(%d)' % (0 if stamp > 1 else 8))
    for k in range(8):
        p('v_add_f32 v%d, v%d, v%d' % (vRd + k, vRd + k, vRd + 8 + k))
    p('v_mul_f32 v%d, v%d, v%d' % (vA, vA, vL))
    p('v_mul_f32 v%d, v%d, v%d' % (vA + 2, vA + 2, vL))
    for k in range(8):
        p('v_mul_f32 v%d, v%d, v%d' % (vS + k, vA, vRd + k))
    p('s_waitcnt lgkmcnt(0)')
    for k in range(8):
        p('v_add_f32 v%d, v%d, v%d' % (vRd + 16 + k, vRd + 16 + k, vRd + 24 + k))
    for k in range(8):
        p('v_fmac_f32 v%d, v%d, v%d' % (vS + k, vA + 2, vRd + 16 + k))
    for k in range(4):
        p('v_cvt_pk_bf16_f32 v%d, v%d, v%d' % (vP + k, vS + 2 * k, vS + 2 * k + 1))
    p('buffer_store_dwordx4 %s, v%d, s[%d:%d], 0 offen%s' % (r4(vP), vEo, sO, sO + 3, ofl))
    if diag_hold:
        p.label('L_hold')
        p('s_sleep 1')
        p('s_memrealtime s[42:43]')
        p('s_waitcnt lgkmcnt(0)')
        p('s_sub_u32 s42, s42, s40')
        p('s_cmp_lt_u32 s42, %d' % (diag_hold * 100))
        p('s_cbranch_scc1 L_hold')
    if stamp:
        p('s_memrealtime s[42:43]')
        p('s_waitcnt lgkmcnt(0)')
        p('s_getreg_b32 s46, hwreg(HW_REG_XCC_ID)')
        p('s_lshl_b32 s%d, s2, 1' % sTmp)
        p('s_add_u32 s%d, s%d, s%d' % (sTmp, sTmp, sW))
        p('s_lshl_b32 s%d, s%d, 5' % (sTmp, sTmp))
        p('v_mov_b32 v%d, s%d' % (vT0, sTmp))
        for i, s in enumerate((40, 41, 42, 43)):
            p('v_mov_b32 v%d, s%d' % (vVt + i, s))
        p('v_mov_b32 v%d, s46' % (vVt + 4))
        p('v_mov_b32 v%d, %d' % (vVt + 5, W))
        p('s_mov_b64 exec, 1')
        p('global_store_dwordx4 v%d, %s, s[%d:%d]' % (vT0, r4(vVt), sWs, sWs + 1))
        p('global_store_dwordx2 v%d, v[%d:%d], s[%d:%d] offset:16' % (vT0, vVt + 4, vVt + 5, sWs, sWs + 1))
        if stamp > 1:
            p('v_lshlrev_b32 v%d, 2, v%d' % (vT0, vT0))
            p('v_add_u32 v%d, 0x100000, v%d' % (vT0, vT0))
            for k in range(5):
                p('v_mov_b32 v%d, s%d' % (vD + k, 90 + 2 * k))
            p('global_store_dwordx4 v%d, %s, s[%d:%d]' % (vT0, r4(vD), sWs, sWs + 1))
            p('global_store_dword v%d, v%d, s[%d:%d] offset:16' % (vT0, vD + 4, sWs, sWs + 1))
    p.label('L_end')
    p('s_endpgm')

    p.label('L_sum')
    p('s_nop 1')
    p('v_add_f32_dpp v%d, v%d, v%d row_ror:8 row_mask:0xf bank_mask:0xf' % (vL, vL, vL))
    p('v_mov_b32 v%d, v%d' % (vAB, vM))
    p('v_mov_b32 v%d, v%d' % (vT1, vL))
    p('v_permlane32_swap_b32 v%d, v%d' % (vL, vT1))
    p('v_add_f32 v%d, v%d, v%d' % (vL, vL, vT1))
    p('v_mov_b32 v%d, v%d' % (vT1, vL))
    p('v_permlane16_swap_b32 v%d, v%d' % (vL, vT1))
    p('v_add_f32 v%d, v%d, v%d' % (vAB + 1, vL, vT1))
    p('ds_write_b64 v%d, v[%d:%d]' % (vEm, vAB, vAB + 1))
    p('s_setpc_b64 s[%d:%d]' % (sRet, sRet + 1))

    if cps:
        p.label('L_ctl')
        p('s_add_u32 s%d, s%d, 1' % (sSt, sSt))
        for ci, (kb, sc) in enumerate(cps):
            end = (cps[ci + 1][0] if ci + 1 < len(cps) else TB - 1)
            p('s_cmp_lg_u32 s%d, %d' % (sSt, 2 * ci + 1))
            p('s_cbranch_scc1 L_ctl_a%d' % ci)
            p('s_mov_b32 s%d, 1' % sRk)
            if w0only:
                p('s_cmp_lg_u32 s%d, 0' % sW)
                p('s_cbranch_scc1 L_ctl_s%d' % ci)
            if not noat:
                p('s_atomic_add s%d, s[%d:%d], s%d glc' % (sRk, sWs, sWs + 1, sCw + 2 * ci))
            if w0only:
                p.label('L_ctl_s%d' % ci)
            p('s_mov_b32 s%d, %d' % (sEvt, kb + lag))
            p('s_setpc_b64 s[%d:%d]' % (sRet, sRet + 1))
            p.label('L_ctl_a%d' % ci)
            p('s_cmp_lg_u32 s%d, %d' % (sSt, 2 * ci + 2))
            p('s_cbranch_scc1 L_ctl_b%d' % ci)
            p('s_waitcnt lgkmcnt(0)')
            p('s_sub_u32 s%d, s%d, s%d' % (sRk, sRk, sCw + 2 * ci + 1))
            p('s_mov_b32 s%d, %d' % (sEvt, cps[ci + 1][0] if ci + 1 < len(cps) else 255))
            p('s_mov_b32 s%d, %d' % (sX3, sc))
            p('s_mov_b32 s%d, %d' % (sTill, end))
            p('s_branch L_ctl_set')
            p.label('L_ctl_b%d' % ci)
        p('s_setpc_b64 s[%d:%d]' % (sRet, sRet + 1))
        p.label('L_ctl_set')
        wt = [int(round(16 * z)) for z in (0.165, 0.51, 0.93, 1.78)]
        p('s_min_u32 s%d, s%d, 7' % (sRk, sRk))
        p('s_sub_i32 s%d, 3, s%d' % (sX1, sRk))
        p('s_sub_i32 s%d, s%d, 4' % (sU, sRk))
        p('s_max_i32 s%d, s%d, s%d' % (sU, sU, sX1))
        p('s_lshl_b32 s%d, s%d, 3' % (sU, sU))
        p('s_mov_b32 s%d, 0x%08x' % (sTmp, wt[0] | wt[1] << 8 | wt[2] << 16 | wt[3] << 24))
        p('s_lshr_b32 s%d, s%d, s%d' % (sU, sTmp, sU))
        p('s_and_b32 s%d, s%d, 0xff' % (sU, sU))
        p('s_mul_i32 s%d, s%d, s%d' % (sU, sU, sX3))
        p('s_cmp_ge_u32 s%d, 4' % sRk)
        p('s_cselect_b32 s%d, 4, %d' % (sTmp, dn))
        p('s_cselect_b32 s%d, %d, %d' % (sX1, act, -act))
        p('s_mul_i32 s%d, s%d, s%d' % (sU, sU, sTmp))
        p('s_add_u32 s%d, s%d, 32' % (sU, sU))
        p('s_lshr_b32 s%d, s%d, 6' % (sU, sU))
        if amp > 1:
            p('s_cmp_gt_u32 s%d, %d' % (sU, R))
            p('s_cselect_b32 s%d, 1, 0' % sTmp)
            p('s_lshr_b32 s%d, s%d, s%d' % (sU, sU, sTmp))
            p('s_lshl_b32 s%d, s%d, s%d' % (sX1, sX1, sTmp))
        p('s_add_i32 s%d, s%d, %d' % (sMod, sX1, N))
        p('s_add_u32 s%d, s%d, s%d' % (sU, sU, sBi))
        p('s_min_u32 s%d, s%d, s%d' % (sTill, sTill, sU))
        p('s_setpc_b64 s[%d:%d]' % (sRet, sRet + 1))
    p.fix_hazards()
    mv, ma, ms = p.max_regs()
    nvg = mv + 1
    acc = min(256, (nvg + 3) // 4 * 4)
    txt = HEADER + '; @launch grid=(256,1,1) block=(128,1,1) lds=%d\n' % lds
    txt += '.amdgcn_target "amdgcn-amd-amdhsa--gfx950"\n.text\n.globl %s\n.p2align 8\n.type %s,@function\n%s:\n' % (
        KNAME, KNAME, KNAME)
    txt += p.text()
    txt += """.section .rodata,"a"
.p2align 6
.amdhsa_kernel %s
  .amdhsa_next_free_vgpr %d
  .amdhsa_next_free_sgpr %d
  .amdhsa_accum_offset %d
  .amdhsa_group_segment_fixed_size 0
  .amdhsa_kernarg_size 48
  .amdhsa_user_sgpr_count 2
  .amdhsa_user_sgpr_kernarg_segment_ptr 1
  .amdhsa_system_sgpr_workgroup_id_x 1
.end_amdhsa_kernel
""" % (KNAME, nvg, ms + 1, acc)
    return txt


if __name__ == '__main__':
    kw = {}
    for a in sys.argv[2:]:
        k, v = a.split('=')
        try:
            v = int(v, 0)
        except ValueError:
            pass
        kw[k] = v
    open(sys.argv[1], 'w').write(gen(**kw))
```

```python
import math
import sys
sys.path.insert(0, 'work')
from asmlib import Prog
from gen_attn import KNAME, f32bits

PATS = {
    'B': '100 200 400 800 1000 2000 4000 8000 10000 20000 40000 80000 0 0 0 0 0 0 0 0',
    'C2': '100 200 800 8000 1000 2000 4000 10000 20000 40000 80000 400 0 0 0 0 0 0 0 0',
    'S1': '2000 100 400 8100 1000 200 800 10200 80000 20000 40800 4000 0 0 0 0 0 0 0 0',
    'S2': '2000 4000 8100 200 1000 100 800 10000 80000 20000 400 40800 0 0 0 0 0 0 0 0',
    'F': '8800 a00 1ba00 8b00 72b00 12000 1e000 11300 c9200 4b000 9c900 43f00 70000 1c800 be000 6800 9d800 48000 b000 79800',
    'F3': 'a00 1b000 8b00 12000 72b00 1e000 8800 11300 c9200 4b000 94100 43f00 70000 18800 ac000 6800 95800 48000 b000 69000',
    'S3': '100 200 2000 8000 1000 400 800 10200 80000 20400 40000 4000 0 0 0 0 0 0 0 0',
    'S4': '4000 2000 1000 8100 100 800 200 10200 80000 40800 20400 400 0 0 0 0 0 0 0 0',
    'S5': 'a100 400 8100 11200 1600 9b00 a8100 10200 20000 100 43d00 84100 0 0 0 0 0 0 0 0',
    'F30': 'a00 1b000 8b00 12000 72b00 1e000 8800 11300 c9200 4b000 94100 43f00 0 0 0 0 0 0 0 0',
    'F2': 'a00 1b000 8b00 72b00 12000 1e000 8800 11300 c9200 4b000 94100 43f00 70000 18800 ac000 6800 95800 48000 b000 69000',
}

HEADER = """; GQA decode attention (B=16, Hq=32, Hkv=16, Sq=4, Sk=4096, D=128), bf16 in / bf16 out.
"""


def dep(x, ms):
    r = 0
    for k, m in enumerate(ms):
        if x >> k & 1:
            r ^= m
    return r


def gen(N=10, amp=2, pol='nt', pat='F2', chk='24:6,40:7,54:5', R=12, dn=2, lag=2, act=1, wsoff=0,
        stamp=0, diag_hold=0, opol='', alt=0, noat=0, nobase=0, lw2=0, w0only=0, cstride=256, fk=0, fv=0, al=3, pad=0, cwarm=0, epi=2):
    W, IT = 2, 32
    TB = 2 * IT
    cps = [tuple(int(v) for v in e.split(':')) for e in chk.split(',') if e] if chk else []
    cps = [c + (dn, R)[len(c) - 2:] for c in cps]
    nlo = N - amp if cps else N
    nhi = N + amp if cps else N
    dyn = nhi > nlo
    rt = pat == 'rt'
    pm = [int(x, 16) for x in PATS.get('B' if rt else pat, pat.replace('_', ' ')).split()]
    mL, mW, mS = pm[0:2], pm[5:6], pm[12:20]
    seq = pm[2:5] + pm[6:12]
    mJ, mT = seq[:4], seq[4:]
    p = Prog()
    vLn, vLv, vT0, vT1, vM, vL, vSa = 1, 2, 3, 4, 5, 6, 7
    vAB = 8
    vP = 12
    vQ = 16
    vS = 24
    vD = 32
    vVt = 48
    vO = 80
    vR = 112
    vMA, vMB, vBase, vAd = 176, 177, 178, 179
    vEw, vEm, vEr, vEl, vEo, vDum = 181, 182, 184, 183, 188, 189
    sX, sQ, sO, sVb = 8, 16, 20, 12
    sCnt, sW, sC, sSelLo, sSelHi, sTmp, sTgt = 26, 27, 28, 29, 30, 31, 32
    sH = 34
    sFix, sNx, sBi = 24, 25, 33
    sEvt, sTill, sMod, sRk, sX1, sX3, sU, sSt = 50, 51, 52, 53, 54, 55, 56, 57
    sRet, sWs, sGo, sRr = 58, 48, 60, 61
    sCw = 82
    fl = (' ' + pol.replace('+', ' ')) if pol else ''
    ofl = (' ' + opol.replace('+', ' ')) if opol else ''
    QS, MS = 656, 80
    HS = 8 * QS
    WS = 65536
    ML = 131072 + 2048
    XB = ML + 2048 if epi == 2 else 0
    XB = (XB + 4095) // 4096 * 4096
    lds = XB + 4096 if epi == 2 else ML + 128

    def r4(b):
        return 'v[%d:%d]' % (b, b + 3)

    def mark(k):
        if stamp == 2:
            p('s_memrealtime s[%d:%d]' % (90 + 2 * k, 91 + 2 * k))

    def addr(j):
        c = dep(j % 16, mJ)
        if rt:
            p('v_xor_b32 v%d, s%d, v%d' % (vAd + (j & 1), 64 + j % 16, vBase))
        elif c:
            p('v_xor_b32 v%d, 0x%x, v%d' % (vAd + (j & 1), c, vBase))

    def load(j):
        va = vAd + (j & 1) if (rt or dep(j % 16, mJ)) else vBase
        p('buffer_load_dwordx4 %s, v%d, s[%d:%d], 0 offen%s' % (r4(vR + 4 * (j % 16)), va, sX, sX + 3, fl))

    def issue(j):
        addr(j)
        load(j)

    p('s_cmp_ge_u32 s2, 256')
    p('s_cbranch_scc1 L_end')
    p('s_load_dwordx4 s[4:7], s[0:1], 0')
    p('s_load_dwordx4 s[36:39], s[0:1], 16')
    if cps or stamp:
        p('s_load_dwordx2 s[%d:%d], s[0:1], 40' % (sWs, sWs + 1))
    if stamp or diag_hold:
        p('s_memrealtime s[40:41]')
    p('v_lshrrev_b32 v%d, 6, v0' % vT0)
    p('v_and_b32 v0, 63, v0')
    p('v_readfirstlane_b32 s%d, v%d' % (sW, vT0))
    p('v_lshrrev_b32 v%d, 4, v0' % vT0)
    p('v_lshlrev_b32 v%d, 6, v%d' % (vT0, vT0))
    p('v_and_b32 v%d, 3, v0' % vT1)
    p('v_lshl_add_u32 v%d, v%d, 4, v%d' % (vLn, vT1, vT0))
    for k in range(2):
        p('v_bfe_i32 v%d, v0, %d, 1' % (vT1, 2 + k))
        p('v_and_b32 v%d, 0x%x, v%d' % (vT1, mL[k], vT1))
        p('v_xor_b32 v%d, v%d, v%d' % (vLn, vLn, vT1))
    p('; Q lanes: (s, h = (lane>>3)&1, q = lane&7) read 16 B at q*256 + (4 s + h) * 16, and 32 B further')
    p('v_and_b32 v%d, 7, v0' % vT1)
    p('v_lshl_add_u32 v%d, v%d, 8, v%d' % (vT0, vT1, vT0))
    p('v_bfe_u32 v%d, v0, 3, 1' % vT1)
    p('v_lshl_add_u32 v%d, v%d, 4, v%d' % (vT0, vT1, vT0))
    p('v_cmp_ne_u32 s[%d:%d], 0, v%d' % (sH, sH + 1, vT1))
    p('s_mov_b32 s%d, 0' % sFix)
    for src, ms in ((sW, mW), (2, mS)):
        for k, m in enumerate(ms):
            if m:
                p('s_bitcmp1_b32 s%d, %d' % (src, k))
                p('s_cselect_b32 s3, 0x%x, 0' % m)
                p('s_xor_b32 s%d, s%d, s3' % (sFix, sFix))
    p('v_xor_b32 v%d, s%d, v%d' % (vBase, sFix, vLn))
    if cwarm:
        p('s_getpc_b64 s[62:63]')
        p.label('L_pc')
        p('s_lshr_b32 s3, s2, 3')
        p('s_lshl_b32 s3, s3, 1')
        p('s_add_u32 s3, s3, s%d' % sW)
        p('s_lshl_b32 s3, s3, 9')
        p('v_lshl_add_u32 v%d, v0, 3, s3' % vEr)
        p('v_min_u32 v%d, L_last-L_pc-8, v%d' % (vEr, vEr))
        p('v_mov_b32 v%d, s63' % (vEr + 1))
        p('v_add_co_u32 v%d, vcc, s62, v%d' % (vEr, vEr))
        p('v_addc_co_u32 v%d, vcc, 0, v%d, vcc' % (vEr + 1, vEr + 1))
        p('global_load_dword v%d, v[%d:%d], off' % (vDum, vEr, vEr + 1))
    p('s_lshl_b32 s%d, s2, 20' % sTmp)
    p('s_lshl_b32 s3, s2, 11')
    for s, n in ((sX, 0x100000), (sQ, 2048), (sO, 2048)):
        p('s_mov_b32 s%d, 0x%x' % (s + 2, n))
        p('s_mov_b32 s%d, 0x20000' % (s + 3))
    p('s_waitcnt lgkmcnt(0)')
    mark(0)
    if rt:
        p('s_add_u32 s46, s%d, 0x200000' % sWs)
        p('s_addc_u32 s47, s%d, 0' % (sWs + 1))
        p('s_lshl_b32 s63, s2, 1')
        p('s_add_u32 s63, s63, s%d' % sW)
        p('s_lshl_b32 s63, s63, 2')
        p('s_load_dword s%d, s[46:47], s63' % sFix)
        p('s_load_dwordx16 s[64:79], s[46:47], 0x1000')
        p('s_load_dword s80, s[46:47], 0x1104')
        p('v_lshlrev_b32 v%d, 2, v0' % vT1)
        p('v_add_u32 v%d, 0x1800, v%d' % (vT1, vT1))
        p('global_load_dword v%d, v%d, s[46:47]' % (vLv, vT1))
        p('global_load_dword v%d, v%d, s[46:47] offset:256' % (vLn, vT1))
        p('s_waitcnt vmcnt(0) lgkmcnt(0)')
        p('s_memrealtime s[40:41]')
        p('v_xor_b32 v%d, s%d, v%d' % (vBase, sFix, vLn))
    p('s_add_u32 s%d, s6, s%d' % (sX, sTmp))
    p('s_addc_u32 s%d, s7, 0' % (sX + 1))
    p('s_add_u32 s%d, s4, s3' % sQ)
    p('s_addc_u32 s%d, s5, 0' % (sQ + 1))
    p('buffer_load_dwordx4 %s, v%d, s[%d:%d], 0 offen' % (r4(vQ), vT0, sQ, sQ + 3))
    p('buffer_load_dwordx4 %s, v%d, s[%d:%d], 0 offen offset:32' % (r4(vQ + 4), vT0, sQ, sQ + 3))
    for j in range(N):
        issue(j)
    p('s_add_u32 s%d, s36, s%d' % (sVb, sTmp))
    p('s_addc_u32 s%d, s37, 0' % (sVb + 1))
    p('s_add_u32 s%d, s38, s3' % sO)
    p('s_addc_u32 s%d, s39, 0' % (sO + 1))
    if cps:
        p('; rank counters: one word per (checkpoint, wave, group of 8 workgroups); entry value = base')
        for ci in range(len(cps)):
            mul = [0, 1, 4, 3, 5, 2, 7, 9][ci]
            p('s_and_b32 s%d, s2, 7' % sTmp)
            p('s_mul_i32 s%d, s%d, %d' % (sTmp, sTmp, mul))
            p('s_lshr_b32 s3, s2, 3')
            p('s_xor_b32 s3, s3, s%d' % sTmp)
            p('s_and_b32 s3, s3, 31')
            p('s_lshl_b32 s%d, s%d, 5' % (sTmp, sW))
            p('s_or_b32 s3, s3, s%d' % sTmp)
            p('s_mul_i32 s3, s3, %d' % cstride)
            p('s_add_u32 s%d, s3, 0x%x' % (sCw + 2 * ci, wsoff + ci * 64 * cstride))
            if nobase:
                p('s_mov_b32 s%d, 0' % (sCw + 2 * ci + 1))
            else:
                p('s_load_dword s%d, s[%d:%d], s%d glc' % (sCw + 2 * ci + 1, sWs, sWs + 1, sCw + 2 * ci))
        p('s_mov_b32 s%d, %d' % (sEvt, cps[0][0]))
        p('s_mov_b32 s%d, 0' % sSt)
        p('s_mov_b32 s%d, 0' % sTill)
        p('s_mov_b32 s%d, %d' % (sMod, N))
    c = math.log2(math.e) / math.sqrt(128.0)
    p('s_mov_b32 s%d, 0x%08x' % (sC, f32bits(c)))
    p('s_mov_b32 s%d, 0x05040100' % sSelLo)
    p('s_mov_b32 s%d, 0x07060302' % sSelHi)
    p('s_mov_b32 s%d, 0' % sBi)
    p('s_mov_b32 s%d, %d' % (sCnt, IT))
    if not rt:
        p('; V lanes: (row = lane>>4, i = lane&15) read 16 B at row + 16 i')
        p('v_and_b32 v%d, 15, v0' % vLv)
        p('v_lshlrev_b32 v%d, 4, v%d' % (vLv, vLv))
        for k in range(2):
            p('v_bfe_i32 v%d, v0, %d, 1' % (vT1, 4 + k))
            p('v_and_b32 v%d, 0x%x, v%d' % (vT1, mL[k], vT1))
            p('v_xor_b32 v%d, v%d, v%d' % (vLv, vLv, vT1))
    p('s_lshl_b32 s%d, s%d, 16' % (sTmp, sW))
    p('v_lshl_add_u32 v%d, v0, 4, s%d' % (vSa, sTmp))
    p('v_mov_b32 v%d, 0xff800000' % vM)
    p('v_mov_b32 v%d, 0' % vL)
    if epi != 2:
        p('v_cndmask_b32 v%d, -1, 0, s[%d:%d]' % (vMA, sH, sH + 1))
        p('v_cndmask_b32 v%d, 0, -1, s[%d:%d]' % (vMB, sH, sH + 1))
    for i in range(32):
        p('v_mov_b32 v%d, 0' % (vO + i))
    if epi == 2:
        p('s_lshl_b32 s3, s%d, 11' % sW)
        p('s_add_u32 s3, s3, %d' % XB)
        p('v_lshl_add_u32 v%d, v0, 4, s3' % vEw)
        p('v_xor_b32 v%d, 0x800, v%d' % (vEr, vEw))
        p('v_and_b32 v%d, 7, v0' % vT0)
        p('s_lshl_b32 s3, s%d, 6' % sW)
        p('s_add_u32 s3, s3, %d' % ML)
        p('v_lshl_add_u32 v%d, v%d, 3, s3' % (vEm, vT0))
        p('v_xor_b32 v%d, 64, v%d' % (vEl, vEm))
        p('v_lshrrev_b32 v%d, 4, v0' % vT1)
        p('v_lshlrev_b32 v%d, 6, v%d' % (vT1, vT1))
        p('v_lshl_add_u32 v%d, v%d, 8, v%d' % (vEo, vT0, vT1))
        p('v_bfe_u32 v%d, v0, 3, 1' % vT1)
        p('v_lshl_add_u32 v%d, v%d, 4, v%d' % (vEo, vT1, vEo))
        p('s_lshl_b32 s3, s%d, 5' % sW)
        p('v_add_u32 v%d, s3, v%d' % (vEo, vEo))
    else:
        p('v_and_b32 v%d, 15, v0' % vT0)
        p('v_mul_u32_u24 v%d, %d, v%d' % (vEw, QS, vT0))
        p('v_lshrrev_b32 v%d, 4, v0' % vT1)
        p('v_lshl_add_u32 v%d, v%d, 4, v%d' % (vEw, vT1, vEw))
        p('v_add_u32 v%d, s%d, v%d' % (vEw, sTmp, vEw))
        p('s_lshl_b32 s3, s%d, 2' % sW)
        p('v_add_u32 v%d, s3, v%d' % (vT1, vT1))
        p('v_mul_u32_u24 v%d, %d, v%d' % (vEr, QS, vT1))
        p('v_lshl_add_u32 v%d, v%d, 2, v%d' % (vEr, vT0, vEr))
        p('v_add_u32 v%d, %d, v%d' % (vEr + 1, HS, vEr))
        p('v_add_u32 v%d, %d, v%d' % (vEr + 2, WS, vEr))
        p('v_add_u32 v%d, %d, v%d' % (vEr + 3, WS + HS, vEr))
        p('v_lshlrev_b32 v%d, 4, v%d' % (vEl, vT1))
        p('v_add_u32 v%d, %d, v%d' % (vEl, ML, vEl))
        p('v_lshlrev_b32 v%d, 8, v%d' % (vEo, vT1))
        p('v_lshl_add_u32 v%d, v%d, 4, v%d' % (vEo, vT0, vEo))
        p('v_and_b32 v%d, 7, v0' % vT0)
        p('s_lshl_b32 s3, s%d, 3' % sW)
        p('s_add_u32 s3, s3, %d' % ML)
        p('v_lshl_add_u32 v%d, v%d, 4, s3' % (vEm, vT0))
    if stamp == 2:
        p('s_waitcnt vmcnt(%d)' % (N - 1))
        mark(1)
        p('s_waitcnt lgkmcnt(0)')

    def ab(i):
        d, t = vD + 8 * (i & 1), vAB + 2 * (i & 1)
        p('v_add_f32 v%d, v%d, v%d' % (t, d + 0, d + 6))
        p('v_add_f32 v%d, v%d, v%d' % (t + 1, d + 1, d + 7))

    def dpp(i):
        t = vAB + 2 * (i & 1)
        if i < 8:
            p('v_add_f32_dpp v%d, v%d, v%d row_ror:8 row_mask:0xf bank_mask:0x3' % (vS + i, t + 1, t))
        else:
            p('v_add_f32_dpp v%d, v%d, v%d row_ror:8 row_mask:0xf bank_mask:0xc' % (vS + i - 8, t, t + 1))

    def cross(ph):
        p('s_cmp_eq_u32 s%d, 1' % sCnt)
        if ph == 'K':
            p('s_cselect_b32 s%d, s%d, s%d' % (sX, sVb, sX))
            p('s_cselect_b32 s%d, s%d, s%d' % (sX + 1, sVb + 1, sX + 1))
            p('s_cselect_b64 vcc, -1, 0')
            p('v_cndmask_b32 v%d, v%d, v%d, vcc' % (vLn, vLn, vLv))
        else:
            p('s_cselect_b32 s%d, 0, s%d' % (sX + 2, sX + 2))
        p('v_xor_b32 v%d, s%d, v%d' % (vBase, sNx, vLn))

    def head(ph, n, i):
        f = fk if ph == 'K' else fv
        if i == 0:
            addr(n)
            p('s_waitcnt vmcnt(%d)' % (n - 1))
            load(n)
            p.label('L_%s%d_a' % (ph, n))
            if f:
                issue(n + 1)
            p('s_add_u32 s%d, s%d, 1' % (sBi, sBi))
            if rt:
                p('s_xor_b32 s%d, s%d, s80' % (sNx, sFix))
                p('s_lshl_b32 s3, s%d, 2' % sBi)
                p('s_add_u32 s3, s3, 0x1104')
                p('s_load_dword s80, s[46:47], s3')
            else:
                p('s_mov_b32 s%d, s%d' % (sNx, sFix))
                for k, m in enumerate(mT):
                    p('s_bitcmp1_b32 s%d, %d' % (sBi, k))
                    p('s_cselect_b32 s3, 0x%x, 0' % m)
                    p('s_xor_b32 s%d, s%d, s3' % (sNx, sNx))
            return
        if f and i == f:
            p('s_waitcnt vmcnt(%d)' % n)
            return
        wide = 1 if i < f else 0
        j = i + n + wide
        if j == 16:
            cross(ph)
        addr(j)
        p('s_waitcnt vmcnt(%d)' % (n - 1 + wide))
        load(j)

    def decide(n):
        p('s_sub_u32 s%d, s%d, 1' % (sCnt, sCnt))
        if dyn:
            p('s_cmp_lt_u32 s%d, s%d' % (sBi, sTill))
            p('s_cselect_b32 s%d, s%d, %d' % (sGo, sMod, N))
            p('s_xor_b32 s%d, s%d, %d' % (sGo, sGo, n))
            p('s_cmp_eq_u32 s%d, 0' % sCnt)
            p('s_cselect_b32 s%d, 1, s%d' % (sGo, sGo))
            p('s_cmp_eq_u32 s%d, s%d' % (sBi, sEvt))
            p('s_cselect_b32 s%d, 1, s%d' % (sGo, sGo))

    def tail(ph, n, exit_label):
        if stamp == 3:
            p('s_memrealtime s[42:43]')
            p('s_waitcnt lgkmcnt(0)')
            p('s_sub_u32 s3, s%d, 1' % sBi)
            p('s_mov_b32 m0, s3')
            p('s_lshl_b32 s42, s42, 4')
            p('s_or_b32 s42, s42, %d' % n)
            p('v_writelane_b32 v190, s42, m0')
        if not dyn:
            p('s_cmp_lg_u32 s%d, 0' % sCnt)
            p('s_cbranch_scc1 L_%s%d' % (ph, n))
            p('s_branch %s' % exit_label)
            return
        p('s_cmp_eq_u32 s%d, 0' % sGo)
        p('s_cbranch_scc1 L_%s%d' % (ph, n))
        p('s_cmp_eq_u32 s%d, 0' % sCnt)
        if ph == 'V':
            p('s_cbranch_scc1 %s' % exit_label)
        p('s_cmp_lg_u32 s%d, s%d' % (sBi, sEvt))
        p('s_cbranch_scc1 L_%s%d_c' % (ph, n))
        p('s_call_b64 s[%d:%d], L_ctl' % (sRet, sRet + 1))
        p.label('L_%s%d_c' % (ph, n))
        if ph == 'K':
            p('s_cmp_eq_u32 s%d, 0' % sCnt)
            p('s_cbranch_scc1 %s' % exit_label)
        p('s_cmp_lt_u32 s%d, s%d' % (sBi, sTill))
        p('s_cselect_b32 s%d, s%d, %d' % (sTgt, sMod, N))
        if n < nhi:
            p('s_cmp_gt_u32 s%d, %d' % (sTgt, n))
            p('s_cbranch_scc1 L_%s%d_up' % (ph, n))
        if n > nlo:
            p('s_cmp_ge_u32 s%d, %d' % (sTgt, n))
            p('s_cbranch_scc1 L_%s%d' % (ph, n))
            p('s_waitcnt vmcnt(%d)' % (n - 1))
            p('s_branch L_%s%d_a' % (ph, n - 1))
        else:
            p('s_branch L_%s%d' % (ph, n))
        if n < nhi:
            p.label('L_%s%d_up' % (ph, n))
            issue(n)
            p('s_branch L_%s%d' % (ph, n + 1))

    def kbody(n):
        p('.p2align %d' % al)
        for _ in range(pad):
            p('s_nop 0')
        p.label('L_K%d' % n)
        for i in range(16):
            head('K', n, i)
            d = vD + 8 * (i & 1)
            p('v_mfma_f32_16x16x32_bf16 %s, %s, %s, 0' % (r4(d), r4(vR + 4 * i), r4(vQ)))
            p('v_mfma_f32_16x16x32_bf16 %s, %s, %s, 0' % (r4(d + 4), r4(vR + 4 * i), r4(vQ + 4)))
            if i >= 2:
                dpp(i - 2)
            if i >= 1:
                ab(i - 1)
            if i == 12:
                decide(n)
            if i == 14 and rt:
                p('s_waitcnt lgkmcnt(0)')
        dpp(14)
        ab(15)
        p('v_max3_f32 v%d, v%d, v%d, v%d' % (vM, vM, vS, vS + 1))
        p('v_max3_f32 v%d, v%d, v%d, v%d' % (vM, vM, vS + 2, vS + 3))
        dpp(15)
        p('ds_write_b128 v%d, %s' % (vSa, r4(vS)))
        p('v_max3_f32 v%d, v%d, v%d, v%d' % (vM, vM, vS + 4, vS + 5))
        p('v_max3_f32 v%d, v%d, v%d, v%d' % (vM, vM, vS + 6, vS + 7))
        p('ds_write_b128 v%d, %s offset:1024' % (vSa, r4(vS + 4)))
        p('v_add_u32 v%d, 2048, v%d' % (vSa, vSa))
        tail('K', n, 'L_T%d' % n)

    lw = 0 if rt else 1 + lw2

    def trans(n):
        p.label('L_T%d' % n)
        p('v_subrev_u32 v%d, %d, v%d' % (vSa, IT * 2048, vSa))
        mark(2)
        p('ds_read_b128 %s, v%d' % (r4(vS), vSa))
        p('ds_read_b128 %s, v%d offset:1024' % (r4(vS + 4), vSa))
        p('ds_read_b32 v%d, v%d' % (vDum, vSa))
        if lw2:
            p('ds_read_b32 v%d, v%d' % (vDum, vSa))
        p('v_max_f32_dpp v%d, v%d, v%d row_ror:8 row_mask:0xf bank_mask:0xf' % (vM, vM, vM))
        p('s_mov_b32 s%d, %d' % (sCnt, IT))
        p('v_mov_b32 v%d, v%d' % (vT1, vM))
        p('v_permlane32_swap_b32 v%d, v%d' % (vM, vT1))
        p('v_max_f32 v%d, v%d, v%d' % (vM, vM, vT1))
        p('v_mov_b32 v%d, v%d' % (vT1, vM))
        p('v_permlane16_swap_b32 v%d, v%d' % (vM, vT1))
        p('v_max_f32 v%d, v%d, v%d' % (vM, vM, vT1))
        p('v_mul_f32 v%d, s%d, v%d' % (vM, sC, vM))
        p('s_waitcnt lgkmcnt(%d)' % (0 if stamp > 1 else lw))

    def vbody(n):
        extra = {i: [] for i in range(16)}
        extra[0] += ['v_fma_f32 v%d, v%d, s%d, -v%d' % (vS + e, vS + e, sC, vM) for e in range(8)]
        extra[0] += ['v_exp_f32 v%d, v%d' % (vS + e, vS + e) for e in range(4)]
        extra[2] += ['v_exp_f32 v%d, v%d' % (vS + e, vS + e) for e in range(4, 8)]
        extra[2] += ['v_add_f32 v%d, v%d, v%d' % (vT0, vS, vS + 1), 'v_add_f32 v%d, v%d, v%d' % (vT1, vS + 2, vS + 3)]
        if epi == 2:
            extra[4] += ['v_cvt_pk_bf16_f32 v%d, v%d, v%d' % (vQ + w, vS + 2 * w, vS + 2 * w + 1) for w in range(4)]
            extra[4] += ['v_cvt_pk_bf16_f32 v%d, v%d, v%d' % (vP + w, vS + 2 * w, vS + 2 * w + 1) for w in range(4)]
        else:
            extra[4] += ['v_cvt_pk_bf16_f32 v%d, v%d, v%d' % (vP + w, vS + 2 * w, vS + 2 * w + 1) for w in range(4)]
        extra[4] += ['v_add_f32 v%d, v%d, v%d' % (vT0, vT0, vS + 4), 'v_add_f32 v%d, v%d, v%d' % (vT1, vT1, vS + 5),
                     'v_add_f32 v%d, v%d, v%d' % (vT0, vT0, vS + 6), 'v_add_f32 v%d, v%d, v%d' % (vT1, vT1, vS + 7),
                     'v_add_f32 v%d, v%d, v%d' % (vL, vL, vT0), 'v_add_f32 v%d, v%d, v%d' % (vL, vL, vT1)]
        extra[6] += ['v_add_u32 v%d, 2048, v%d' % (vSa, vSa),
                     'ds_read_b128 %s, v%d' % (r4(vS), vSa),
                     'ds_read_b128 %s, v%d offset:1024' % (r4(vS + 4), vSa),
                     'ds_read_b32 v%d, v%d' % (vDum, vSa)] + ['ds_read_b32 v%d, v%d' % (vDum, vSa)] * lw2
        if epi == 2:
            extra[6] += ['v_mov_b32_dpp v%d, v%d row_ror:8 row_mask:0xf bank_mask:0xc' % (vQ + w, vQ + w) for w in range(4)]
            extra[10] += ['v_mov_b32_dpp v%d, v%d row_ror:8 row_mask:0xf bank_mask:0x3' % (vP + w, vP + w) for w in range(4)]
        else:
            extra[6] += ['v_and_b32 v%d, v%d, v%d' % (vQ + w, vMA, vP + w) for w in range(4)]
            extra[10] += ['v_and_b32 v%d, v%d, v%d' % (vQ + 4 + w, vMB, vP + w) for w in range(4)]
        extra[12] += ['s_cmp_lg_u32 s%d, 1' % sCnt, 's_cbranch_scc1 L_V%d_l' % n,
                      's_call_b64 s[%d:%d], L_sum' % (sRet, sRet + 1), 'L_V%d_l:' % n]
        extra[14] += ['s_waitcnt lgkmcnt(%d)' % lw]

        def mf(pb, ms):
            return ['v_mfma_f32_16x16x32_bf16 %s, %s, %s, %s' % (r4(vO + 4 * m), r4(vVt + 4 * m), r4(pb), r4(vO + 4 * m))
                    for m in ms]
        extra[7] += mf(vQ, range(0, 4))
        extra[8] += mf(vQ, range(4, 8))
        extra[15] += mf(vP if epi == 2 else vQ + 4, range(0, 8))
        p('.p2align %d' % al)
        for _ in range(pad):
            p('s_nop 0')
        p.label('L_V%d' % n)
        for i in range(16):
            head('V', n, i)
            if i & 1:
                w = (i & 7) >> 1
                a = vR + 4 * (i - 1)
                for u in range(4):
                    p('v_perm_b32 v%d, v%d, v%d, s%d' % (vVt + 8 * u + w, a + 4 + u, a + u, sSelLo))
                    p('v_perm_b32 v%d, v%d, v%d, s%d' % (vVt + 8 * u + 4 + w, a + 4 + u, a + u, sSelHi))
            for x in extra[i]:
                p(x)
            if i == 12:
                decide(n)
        tail('V', n, 'L_epi')

    assert nhi + (1 if fk or fv else 0) <= 14 and nlo >= 5
    order = [N] + [n for n in range(nlo, nhi + 1) if n != N]
    for n in order:
        kbody(n)
    for n in order[::-1]:
        trans(n)
        vbody(n)

    p.label('L_epi')
    mark(3)
    if epi == 2:
        vSn, vKp, vRc, vA = vVt, vVt + 8, vVt + 16, vVt + 24
        p('; wave w keeps rows r = 2w + h of every 4-row group and hands the other pair to its partner')
        p('s_cmp_lg_u32 s%d, 0' % sW)
        p('s_cbranch_scc1 L_epi1')
        for w in range(2):
            if w:
                p.label('L_epi1')
            o, k = 2 * (1 - w), 2 * w
            for hb in range(2):
                for m in range(4 * hb, 4 * hb + 4):
                    p('v_cndmask_b32 v%d, v%d, v%d, s[%d:%d]' % (vSn + m, vO + 4 * m + o, vO + 4 * m + o + 1, sH, sH + 1))
                p('ds_write_b128 v%d, %s offset:%d' % (vEw, r4(vSn + 4 * hb), 1024 * hb))
            for m in range(8):
                p('v_cndmask_b32 v%d, v%d, v%d, s[%d:%d]' % (vKp + m, vO + 4 * m + k, vO + 4 * m + k + 1, sH, sH + 1))
            if not w:
                p('s_branch L_epi2')
        p.label('L_epi2')
        p('s_waitcnt lgkmcnt(0)')
        p('s_barrier')
        mark(4)
        p('ds_read_b64 v[%d:%d], v%d' % (vA, vA + 1, vEl))
        p('ds_read_b128 %s, v%d' % (r4(vRc), vEr))
        p('ds_read_b128 %s, v%d offset:1024' % (r4(vRc + 4), vEr))
        p('s_waitcnt lgkmcnt(%d)' % (0 if stamp == 2 else 2))
        p('v_max_f32 v%d, v%d, v%d' % (vT1, vA, vAB))
        p('v_sub_f32 v%d, v%d, v%d' % (vA, vA, vT1))
        p('v_sub_f32 v%d, v%d, v%d' % (vAB, vAB, vT1))
        p('v_exp_f32 v%d, v%d' % (vA, vA))
        p('v_exp_f32 v%d, v%d' % (vAB, vAB))
        p('v_mul_f32 v%d, v%d, v%d' % (vL, vA, vA + 1))
        p('v_fmac_f32 v%d, v%d, v%d' % (vL, vAB, vAB + 1))
        p('v_rcp_f32 v%d, v%d' % (vL, vL))
        p('v_mul_f32 v%d, v%d, v%d' % (vAB, vAB, vL))
        p('v_mul_f32 v%d, v%d, v%d' % (vA, vA, vL))
        for m in range(8):
            p('v_mul_f32 v%d, v%d, v%d' % (vKp + m, vAB, vKp + m))
        p('s_waitcnt lgkmcnt(0)')
        for m in range(8):
            p('v_fmac_f32 v%d, v%d, v%d' % (vKp + m, vA, vRc + m))
        for k in range(4):
            p('v_cvt_pk_bf16_f32 v%d, v%d, v%d' % (vS + k, vKp + 2 * k, vKp + 2 * k + 1))
        p('buffer_store_dwordx4 %s, v%d, s[%d:%d], 0 offen%s' % (r4(vS), vEo, sO, sO + 3, ofl))
    else:
        for m in range(8):
            p('ds_write_b128 v%d, %s offset:%d' % (vEw, r4(vO + 4 * m), m * MS))
        p('s_waitcnt lgkmcnt(0)')
        p('s_barrier')
        mark(4)
        vA, vRd = vVt, vO
        p('ds_read_b128 %s, v%d' % (r4(vA), vEl))
        for pp in range(4):
            for k in range(4):
                dst = vRd + pp * 8 + 2 * k
                p('ds_read2_b32 v[%d:%d], v%d offset0:%d offset1:%d' %
                  (dst, dst + 1, vEr + pp, 2 * k * MS // 4, (2 * k + 1) * MS // 4))
        p('s_waitcnt lgkmcnt(%d)' % (0 if stamp > 1 else 15))
        p('v_max_f32 v%d, v%d, v%d' % (vT1, vA, vA + 2))
        p('v_sub_f32 v%d, v%d, v%d' % (vA, vA, vT1))
        p('v_sub_f32 v%d, v%d, v%d' % (vA + 2, vA + 2, vT1))
        p('v_exp_f32 v%d, v%d' % (vA, vA))
        p('v_exp_f32 v%d, v%d' % (vA + 2, vA + 2))
        p('v_mul_f32 v%d, v%d, v%d' % (vL, vA, vA + 1))
        p('v_fmac_f32 v%d, v%d, v%d' % (vL, vA + 2, vA + 3))
        p('v_rcp_f32 v%d, v%d' % (vL, vL))
        p('s_waitcnt lgkmcnt(%d)' % (0 if stamp > 1 else 8))
        for k in range(8):
            p('v_add_f32 v%d, v%d, v%d' % (vRd + k, vRd + k, vRd + 8 + k))
        p('v_mul_f32 v%d, v%d, v%d' % (vA, vA, vL))
        p('v_mul_f32 v%d, v%d, v%d' % (vA + 2, vA + 2, vL))
        for k in range(8):
            p('v_mul_f32 v%d, v%d, v%d' % (vS + k, vA, vRd + k))
        p('s_waitcnt lgkmcnt(0)')
        for k in range(8):
            p('v_add_f32 v%d, v%d, v%d' % (vRd + 16 + k, vRd + 16 + k, vRd + 24 + k))
        for k in range(8):
            p('v_fmac_f32 v%d, v%d, v%d' % (vS + k, vA + 2, vRd + 16 + k))
        for k in range(4):
            p('v_cvt_pk_bf16_f32 v%d, v%d, v%d' % (vP + k, vS + 2 * k, vS + 2 * k + 1))
        p('buffer_store_dwordx4 %s, v%d, s[%d:%d], 0 offen%s' % (r4(vP), vEo, sO, sO + 3, ofl))
    if diag_hold:
        p.label('L_hold')
        p('s_sleep 1')
        p('s_memrealtime s[42:43]')
        p('s_waitcnt lgkmcnt(0)')
        p('s_sub_u32 s42, s42, s40')
        p('s_cmp_lt_u32 s42, %d' % (diag_hold * 100))
        p('s_cbranch_scc1 L_hold')
    if stamp:
        p('s_memrealtime s[42:43]')
        p('s_waitcnt lgkmcnt(0)')
        p('s_getreg_b32 s46, hwreg(HW_REG_XCC_ID)')
        p('s_lshl_b32 s%d, s2, 1' % sTmp)
        p('s_add_u32 s%d, s%d, s%d' % (sTmp, sTmp, sW))
        p('s_lshl_b32 s%d, s%d, 5' % (sTmp, sTmp))
        p('v_mov_b32 v%d, s%d' % (vT0, sTmp))
        for i, s in enumerate((40, 41, 42, 43)):
            p('v_mov_b32 v%d, s%d' % (vVt + i, s))
        p('v_mov_b32 v%d, s46' % (vVt + 4))
        p('v_mov_b32 v%d, %d' % (vVt + 5, W))
        if stamp == 3:
            p('s_lshl_b32 s3, s%d, 3' % sTmp)
            p('s_add_u32 s3, s3, 0x100000')
            p('v_lshl_add_u32 v%d, v0, 2, s3' % vT1)
            p('global_store_dword v%d, v190, s[%d:%d]' % (vT1, sWs, sWs + 1))
        p('s_mov_b64 exec, 1')
        p('global_store_dwordx4 v%d, %s, s[%d:%d]' % (vT0, r4(vVt), sWs, sWs + 1))
        p('global_store_dwordx2 v%d, v[%d:%d], s[%d:%d] offset:16' % (vT0, vVt + 4, vVt + 5, sWs, sWs + 1))
        if stamp == 2:
            p('v_lshlrev_b32 v%d, 2, v%d' % (vT0, vT0))
            p('v_add_u32 v%d, 0x100000, v%d' % (vT0, vT0))
            for k in range(5):
                p('v_mov_b32 v%d, s%d' % (vD + k, 90 + 2 * k))
            p('global_store_dwordx4 v%d, %s, s[%d:%d]' % (vT0, r4(vD), sWs, sWs + 1))
            p('global_store_dword v%d, v%d, s[%d:%d] offset:16' % (vT0, vD + 4, sWs, sWs + 1))
    p.label('L_end')
    p('s_endpgm')

    p.label('L_sum')
    p('s_nop 1')
    p('v_add_f32_dpp v%d, v%d, v%d row_ror:8 row_mask:0xf bank_mask:0xf' % (vL, vL, vL))
    p('v_mov_b32 v%d, v%d' % (vAB, vM))
    p('v_mov_b32 v%d, v%d' % (vT1, vL))
    p('v_permlane32_swap_b32 v%d, v%d' % (vL, vT1))
    p('v_add_f32 v%d, v%d, v%d' % (vL, vL, vT1))
    p('v_mov_b32 v%d, v%d' % (vT1, vL))
    p('v_permlane16_swap_b32 v%d, v%d' % (vL, vT1))
    p('v_add_f32 v%d, v%d, v%d' % (vAB + 1, vL, vT1))
    p('ds_write_b64 v%d, v[%d:%d]' % (vEm, vAB, vAB + 1))
    p('s_setpc_b64 s[%d:%d]' % (sRet, sRet + 1))

    if cps:
        p.label('L_ctl')
        p('s_add_u32 s%d, s%d, 1' % (sSt, sSt))
        for ci, (kb, sc, cdn, cR) in enumerate(cps):
            end = (cps[ci + 1][0] if ci + 1 < len(cps) else TB - 1)
            p('s_cmp_lg_u32 s%d, %d' % (sSt, 2 * ci + 1))
            p('s_cbranch_scc1 L_ctl_a%d' % ci)
            p('s_mov_b32 s%d, 1' % sRk)
            if w0only:
                p('s_cmp_lg_u32 s%d, 0' % sW)
                p('s_cbranch_scc1 L_ctl_s%d' % ci)
            if not noat:
                p('s_atomic_add s%d, s[%d:%d], s%d glc' % (sRk, sWs, sWs + 1, sCw + 2 * ci))
            if w0only:
                p.label('L_ctl_s%d' % ci)
            p('s_mov_b32 s%d, %d' % (sEvt, kb + lag))
            p('s_setpc_b64 s[%d:%d]' % (sRet, sRet + 1))
            p.label('L_ctl_a%d' % ci)
            p('s_cmp_lg_u32 s%d, %d' % (sSt, 2 * ci + 2))
            p('s_cbranch_scc1 L_ctl_b%d' % ci)
            p('s_waitcnt lgkmcnt(0)')
            p('s_sub_u32 s%d, s%d, s%d' % (sRk, sRk, sCw + 2 * ci + 1))
            p('s_mov_b32 s%d, %d' % (sEvt, cps[ci + 1][0] if ci + 1 < len(cps) else 255))
            p('s_and_b32 s%d, s%d, 0xff' % (sRk, sRk))
            p('s_cmp_ge_u32 s%d, 4' % sRk)
            p('s_cselect_b32 s%d, %d, %d' % (sX3, 4 * sc, cdn * sc))
            p('s_mov_b32 s%d, %d' % (sRr, cR))
            p('s_mov_b32 s%d, %d' % (sTill, end))
            p('s_branch L_ctl_set')
            p.label('L_ctl_b%d' % ci)
        p('s_setpc_b64 s[%d:%d]' % (sRet, sRet + 1))
        p.label('L_ctl_set')
        wt = [int(round(16 * z)) for z in (0.165, 0.51, 0.93, 1.78)]
        p('s_min_u32 s%d, s%d, 7' % (sRk, sRk))
        p('s_sub_i32 s%d, 3, s%d' % (sX1, sRk))
        p('s_sub_i32 s%d, s%d, 4' % (sU, sRk))
        p('s_max_i32 s%d, s%d, s%d' % (sU, sU, sX1))
        p('s_lshl_b32 s%d, s%d, 3' % (sU, sU))
        p('s_mov_b32 s%d, 0x%08x' % (sTmp, wt[0] | wt[1] << 8 | wt[2] << 16 | wt[3] << 24))
        p('s_lshr_b32 s%d, s%d, s%d' % (sU, sTmp, sU))
        p('s_and_b32 s%d, s%d, 0xff' % (sU, sU))
        p('s_mul_i32 s%d, s%d, s%d' % (sU, sU, sX3))
        p('s_cmp_ge_u32 s%d, 4' % sRk)
        p('s_cselect_b32 s%d, %d, %d' % (sX1, act, -act))
        p('s_add_u32 s%d, s%d, 32' % (sU, sU))
        p('s_lshr_b32 s%d, s%d, 6' % (sU, sU))
        if amp > 1:
            p('s_cmp_gt_u32 s%d, s%d' % (sU, sRr))
            p('s_cselect_b32 s%d, 1, 0' % sTmp)
            p('s_lshr_b32 s%d, s%d, s%d' % (sU, sU, sTmp))
            p('s_lshl_b32 s%d, s%d, s%d' % (sX1, sX1, sTmp))
        p('s_add_i32 s%d, s%d, %d' % (sMod, sX1, N))
        p('s_add_u32 s%d, s%d, s%d' % (sU, sU, sBi))
        p('s_min_u32 s%d, s%d, s%d' % (sTill, sTill, sU))
        p('s_setpc_b64 s[%d:%d]' % (sRet, sRet + 1))
    p.label('L_last')
    p.fix_hazards()
    mv, ma, ms = p.max_regs()
    nvg = mv + 1
    acc = min(256, (nvg + 3) // 4 * 4)
    txt = HEADER + '; @launch grid=(256,1,1) block=(128,1,1) lds=%d\n' % lds
    txt += '.amdgcn_target "amdgcn-amd-amdhsa--gfx950"\n.text\n.globl %s\n.p2align 8\n.type %s,@function\n%s:\n' % (
        KNAME, KNAME, KNAME)
    txt += p.text()
    txt += """.section .rodata,"a"
.p2align 6
.amdhsa_kernel %s
  .amdhsa_next_free_vgpr %d
  .amdhsa_next_free_sgpr %d
  .amdhsa_accum_offset %d
  .amdhsa_group_segment_fixed_size 0
  .amdhsa_kernarg_size 48
  .amdhsa_user_sgpr_count 2
  .amdhsa_user_sgpr_kernarg_segment_ptr 1
  .amdhsa_system_sgpr_workgroup_id_x 1
.end_amdhsa_kernel
""" % (KNAME, nvg, ms + 1, acc)
    return txt


if __name__ == '__main__':
    kw = {}
    for a in sys.argv[2:]:
        k, v = a.split('=')
        try:
            v = int(v, 0)
        except ValueError:
            pass
        kw[k] = v
    open(sys.argv[1], 'w').write(gen(**kw))
```

```python
import math
import sys
sys.path.insert(0, 'work')
from asmlib import Prog
from gen_attn import KNAME, f32bits

PATS = {
    'B': '100 200 400 800 1000 2000 4000 8000 10000 20000 40000 80000 0 0 0 0 0 0 0 0',
    'C2': '100 200 800 8000 1000 2000 4000 10000 20000 40000 80000 400 0 0 0 0 0 0 0 0',
    'S1': '2000 100 400 8100 1000 200 800 10200 80000 20000 40800 4000 0 0 0 0 0 0 0 0',
    'S2': '2000 4000 8100 200 1000 100 800 10000 80000 20000 400 40800 0 0 0 0 0 0 0 0',
    'F': '8800 a00 1ba00 8b00 72b00 12000 1e000 11300 c9200 4b000 9c900 43f00 70000 1c800 be000 6800 9d800 48000 b000 79800',
    'F3': 'a00 1b000 8b00 12000 72b00 1e000 8800 11300 c9200 4b000 94100 43f00 70000 18800 ac000 6800 95800 48000 b000 69000',
    'S3': '100 200 2000 8000 1000 400 800 10200 80000 20400 40000 4000 0 0 0 0 0 0 0 0',
    'S4': '4000 2000 1000 8100 100 800 200 10200 80000 40800 20400 400 0 0 0 0 0 0 0 0',
    'S5': 'a100 400 8100 11200 1600 9b00 a8100 10200 20000 100 43d00 84100 0 0 0 0 0 0 0 0',
    'F30': 'a00 1b000 8b00 12000 72b00 1e000 8800 11300 c9200 4b000 94100 43f00 0 0 0 0 0 0 0 0',
    'F2': 'a00 1b000 8b00 72b00 12000 1e000 8800 11300 c9200 4b000 94100 43f00 70000 18800 ac000 6800 95800 48000 b000 69000',
}

HEADER = """; GQA decode attention (B=16, Hq=32, Hkv=16, Sq=4, Sk=4096, D=128), bf16 in / bf16 out.
"""


def dep(x, ms):
    r = 0
    for k, m in enumerate(ms):
        if x >> k & 1:
            r ^= m
    return r


def gen(N=10, amp=2, pol='nt', pat='F2', chk='24:6,40:7,54:5', R=12, dn=2, lag=2, act=1, wsoff=0,
        stamp=0, diag_hold=0, opol='', alt=0, noat=0, nobase=0, lw2=0, w0only=0, cstride=256, fk=0, fv=0, al=3, pad=0, cwarm=0, epi=2, m0early=0, qpos=0, G=8):
    W, IT = 2, 32
    TB = 2 * IT
    cps = [tuple(int(v) for v in e.split(':')) for e in chk.split(',') if e] if chk else []
    cps = [c + (dn, R)[len(c) - 2:] for c in cps]
    nlo = N - amp if cps else N
    nhi = N + amp if cps else N
    dyn = nhi > nlo
    rt = pat == 'rt'
    pm = [int(x, 16) for x in PATS.get('B' if rt else pat, pat.replace('_', ' ')).split()]
    mL, mW, mS = pm[0:2], pm[5:6], pm[12:20]
    seq = pm[2:5] + pm[6:12]
    mJ, mT = seq[:4], seq[4:]
    p = Prog()
    vLn, vLv, vT0, vT1, vM, vL, vSa = 1, 2, 3, 4, 5, 6, 7
    vAB = 8
    vP = 12
    vQ = 16
    vS = 24
    vD = 32
    vVt = 48
    vO = 80
    vR = 112
    vMA, vMB, vBase, vAd = 176, 177, 178, 179
    vEw, vEm, vEr, vEl, vEo, vDum = 181, 182, 184, 183, 188, 189
    sX, sQ, sO, sVb = 8, 16, 20, 12
    sCnt, sW, sC, sSelLo, sSelHi, sTmp, sTgt = 26, 27, 28, 29, 30, 31, 32
    sH = 34
    sFix, sNx, sBi = 24, 25, 33
    sEvt, sTill, sMod, sRk, sX1, sX3, sU, sSt = 50, 51, 52, 53, 54, 55, 56, 57
    sRet, sWs, sGo, sRr = 58, 48, 60, 61
    sCw = 82
    fl = (' ' + pol.replace('+', ' ')) if pol else ''
    ofl = (' ' + opol.replace('+', ' ')) if opol else ''
    QS, MS = 656, 80
    HS = 8 * QS
    WS = 65536
    ML = 131072 + 2048
    XB = ML + 2048 if epi == 2 else 0
    XB = (XB + 4095) // 4096 * 4096
    lds = XB + 4096 if epi == 2 else ML + 128

    def r4(b):
        return 'v[%d:%d]' % (b, b + 3)

    def mark(k):
        if stamp == 2:
            p('s_memrealtime s[%d:%d]' % (90 + 2 * k, 91 + 2 * k))

    def addr(j):
        c = dep(j % 16, mJ)
        if rt:
            p('v_xor_b32 v%d, s%d, v%d' % (vAd + (j & 1), 64 + j % 16, vBase))
        elif c:
            p('v_xor_b32 v%d, 0x%x, v%d' % (vAd + (j & 1), c, vBase))

    def load(j):
        va = vAd + (j & 1) if (rt or dep(j % 16, mJ)) else vBase
        p('buffer_load_dwordx4 %s, v%d, s[%d:%d], 0 offen%s' % (r4(vR + 4 * (j % 16)), va, sX, sX + 3, fl))

    def issue(j):
        addr(j)
        load(j)

    p('s_cmp_ge_u32 s2, 256')
    p('s_cbranch_scc1 L_end')
    p('s_load_dwordx4 s[4:7], s[0:1], 0')
    p('s_load_dwordx4 s[36:39], s[0:1], 16')
    if cps or stamp:
        p('s_load_dwordx2 s[%d:%d], s[0:1], 40' % (sWs, sWs + 1))
    if stamp or diag_hold:
        p('s_memrealtime s[40:41]')
    p('v_lshrrev_b32 v%d, 6, v0' % vT0)
    p('v_and_b32 v0, 63, v0')
    p('v_readfirstlane_b32 s%d, v%d' % (sW, vT0))
    p('v_lshrrev_b32 v%d, 4, v0' % vT0)
    p('v_lshlrev_b32 v%d, 6, v%d' % (vT0, vT0))
    p('v_and_b32 v%d, 3, v0' % vT1)
    p('v_lshl_add_u32 v%d, v%d, 4, v%d' % (vLn, vT1, vT0))
    for k in range(2):
        p('v_bfe_i32 v%d, v0, %d, 1' % (vT1, 2 + k))
        p('v_and_b32 v%d, 0x%x, v%d' % (vT1, mL[k], vT1))
        p('v_xor_b32 v%d, v%d, v%d' % (vLn, vLn, vT1))
    p('; Q lanes: (s, h = (lane>>3)&1, q = lane&7) read 16 B at q*256 + (4 s + h) * 16, and 32 B further')
    p('v_and_b32 v%d, 7, v0' % vT1)
    p('v_lshl_add_u32 v%d, v%d, 8, v%d' % (vT0, vT1, vT0))
    p('v_bfe_u32 v%d, v0, 3, 1' % vT1)
    p('v_lshl_add_u32 v%d, v%d, 4, v%d' % (vT0, vT1, vT0))
    p('v_cmp_ne_u32 s[%d:%d], 0, v%d' % (sH, sH + 1, vT1))
    p('s_mov_b32 s%d, 0' % sFix)
    for src, ms in ((sW, mW), (2, mS)):
        for k, m in enumerate(ms):
            if m:
                p('s_bitcmp1_b32 s%d, %d' % (src, k))
                p('s_cselect_b32 s3, 0x%x, 0' % m)
                p('s_xor_b32 s%d, s%d, s3' % (sFix, sFix))
    p('v_xor_b32 v%d, s%d, v%d' % (vBase, sFix, vLn))
    if cwarm:
        p('s_getpc_b64 s[62:63]')
        p.label('L_pc')
        p('s_lshr_b32 s3, s2, 3')
        p('s_lshl_b32 s3, s3, 1')
        p('s_add_u32 s3, s3, s%d' % sW)
        p('s_lshl_b32 s3, s3, 9')
        p('v_lshl_add_u32 v%d, v0, 3, s3' % vEr)
        p('v_min_u32 v%d, L_last-L_pc-8, v%d' % (vEr, vEr))
        p('v_mov_b32 v%d, s63' % (vEr + 1))
        p('v_add_co_u32 v%d, vcc, s62, v%d' % (vEr, vEr))
        p('v_addc_co_u32 v%d, vcc, 0, v%d, vcc' % (vEr + 1, vEr + 1))
        p('global_load_dword v%d, v[%d:%d], off' % (vDum, vEr, vEr + 1))
    p('s_lshl_b32 s%d, s2, 20' % sTmp)
    p('s_lshl_b32 s3, s2, 11')
    for s, n in ((sX, 0x100000), (sQ, 2048), (sO, 2048)):
        p('s_mov_b32 s%d, 0x%x' % (s + 2, n))
        p('s_mov_b32 s%d, 0x20000' % (s + 3))
    if m0early == 1:
        mark(0)
    p('s_waitcnt lgkmcnt(0)')
    if not m0early:
        mark(0)
    if rt:
        p('s_add_u32 s46, s%d, 0x200000' % sWs)
        p('s_addc_u32 s47, s%d, 0' % (sWs + 1))
        p('s_lshl_b32 s63, s2, 1')
        p('s_add_u32 s63, s63, s%d' % sW)
        p('s_lshl_b32 s63, s63, 2')
        p('s_load_dword s%d, s[46:47], s63' % sFix)
        p('s_load_dwordx16 s[64:79], s[46:47], 0x1000')
        p('s_load_dword s80, s[46:47], 0x1104')
        p('v_lshlrev_b32 v%d, 2, v0' % vT1)
        p('v_add_u32 v%d, 0x1800, v%d' % (vT1, vT1))
        p('global_load_dword v%d, v%d, s[46:47]' % (vLv, vT1))
        p('global_load_dword v%d, v%d, s[46:47] offset:256' % (vLn, vT1))
        p('s_waitcnt vmcnt(0) lgkmcnt(0)')
        p('s_memrealtime s[40:41]')
        p('v_xor_b32 v%d, s%d, v%d' % (vBase, sFix, vLn))
    p('s_add_u32 s%d, s6, s%d' % (sX, sTmp))
    p('s_addc_u32 s%d, s7, 0' % (sX + 1))
    for j in range(qpos):
        issue(j)
    p('s_add_u32 s%d, s4, s3' % sQ)
    p('s_addc_u32 s%d, s5, 0' % (sQ + 1))
    p('buffer_load_dwordx4 %s, v%d, s[%d:%d], 0 offen' % (r4(vQ), vT0, sQ, sQ + 3))
    p('buffer_load_dwordx4 %s, v%d, s[%d:%d], 0 offen offset:32' % (r4(vQ + 4), vT0, sQ, sQ + 3))
    for j in range(qpos, N):
        issue(j)
    if m0early == 2:
        mark(0)
    p('s_add_u32 s%d, s36, s%d' % (sVb, sTmp))
    p('s_addc_u32 s%d, s37, 0' % (sVb + 1))
    p('s_add_u32 s%d, s38, s3' % sO)
    p('s_addc_u32 s%d, s39, 0' % (sO + 1))
    if cps:
        p('; rank counters: one word per (checkpoint, wave, group of 8 workgroups); entry value = base')
        for ci in range(len(cps)):
            mul = [0, 1, 4, 3, 5, 2, 7, 9][ci]
            p('s_and_b32 s%d, s2, 7' % sTmp)
            p('s_mul_i32 s%d, s%d, %d' % (sTmp, sTmp, mul))
            p('s_lshr_b32 s3, s2, 3')
            p('s_xor_b32 s3, s3, s%d' % sTmp)
            p('s_and_b32 s3, s3, 31')
            if G == 8:
                p('s_lshl_b32 s%d, s%d, 5' % (sTmp, sW))
                p('s_or_b32 s3, s3, s%d' % sTmp)
            p('s_mul_i32 s3, s3, %d' % cstride)
            p('s_add_u32 s%d, s3, 0x%x' % (sCw + 2 * ci, wsoff + ci * 64 * cstride))
            if nobase:
                p('s_mov_b32 s%d, 0' % (sCw + 2 * ci + 1))
            else:
                p('s_load_dword s%d, s[%d:%d], s%d glc' % (sCw + 2 * ci + 1, sWs, sWs + 1, sCw + 2 * ci))
        p('s_mov_b32 s%d, %d' % (sEvt, cps[0][0]))
        p('s_mov_b32 s%d, 0' % sSt)
        p('s_mov_b32 s%d, 0' % sTill)
        p('s_mov_b32 s%d, %d' % (sMod, N))
    c = math.log2(math.e) / math.sqrt(128.0)
    p('s_mov_b32 s%d, 0x%08x' % (sC, f32bits(c)))
    p('s_mov_b32 s%d, 0x05040100' % sSelLo)
    p('s_mov_b32 s%d, 0x07060302' % sSelHi)
    p('s_mov_b32 s%d, 0' % sBi)
    p('s_mov_b32 s%d, %d' % (sCnt, IT))
    if not rt:
        p('; V lanes: (row = lane>>4, i = lane&15) read 16 B at row + 16 i')
        p('v_and_b32 v%d, 15, v0' % vLv)
        p('v_lshlrev_b32 v%d, 4, v%d' % (vLv, vLv))
        for k in range(2):
            p('v_bfe_i32 v%d, v0, %d, 1' % (vT1, 4 + k))
            p('v_and_b32 v%d, 0x%x, v%d' % (vT1, mL[k], vT1))
            p('v_xor_b32 v%d, v%d, v%d' % (vLv, vLv, vT1))
    p('s_lshl_b32 s%d, s%d, 16' % (sTmp, sW))
    p('v_lshl_add_u32 v%d, v0, 4, s%d' % (vSa, sTmp))
    p('v_mov_b32 v%d, 0xff800000' % vM)
    p('v_mov_b32 v%d, 0' % vL)
    if epi != 2:
        p('v_cndmask_b32 v%d, -1, 0, s[%d:%d]' % (vMA, sH, sH + 1))
        p('v_cndmask_b32 v%d, 0, -1, s[%d:%d]' % (vMB, sH, sH + 1))
    for i in range(32):
        p('v_mov_b32 v%d, 0' % (vO + i))
    if epi == 2:
        p('s_lshl_b32 s3, s%d, 11' % sW)
        p('s_add_u32 s3, s3, %d' % XB)
        p('v_lshl_add_u32 v%d, v0, 4, s3' % vEw)
        p('v_xor_b32 v%d, 0x800, v%d' % (vEr, vEw))
        p('v_and_b32 v%d, 7, v0' % vT0)
        p('s_lshl_b32 s3, s%d, 6' % sW)
        p('s_add_u32 s3, s3, %d' % ML)
        p('v_lshl_add_u32 v%d, v%d, 3, s3' % (vEm, vT0))
        p('v_xor_b32 v%d, 64, v%d' % (vEl, vEm))
        p('v_lshrrev_b32 v%d, 4, v0' % vT1)
        p('v_lshlrev_b32 v%d, 6, v%d' % (vT1, vT1))
        p('v_lshl_add_u32 v%d, v%d, 8, v%d' % (vEo, vT0, vT1))
        p('v_bfe_u32 v%d, v0, 3, 1' % vT1)
        p('v_lshl_add_u32 v%d, v%d, 4, v%d' % (vEo, vT1, vEo))
        p('s_lshl_b32 s3, s%d, 5' % sW)
        p('v_add_u32 v%d, s3, v%d' % (vEo, vEo))
    else:
        p('v_and_b32 v%d, 15, v0' % vT0)
        p('v_mul_u32_u24 v%d, %d, v%d' % (vEw, QS, vT0))
        p('v_lshrrev_b32 v%d, 4, v0' % vT1)
        p('v_lshl_add_u32 v%d, v%d, 4, v%d' % (vEw, vT1, vEw))
        p('v_add_u32 v%d, s%d, v%d' % (vEw, sTmp, vEw))
        p('s_lshl_b32 s3, s%d, 2' % sW)
        p('v_add_u32 v%d, s3, v%d' % (vT1, vT1))
        p('v_mul_u32_u24 v%d, %d, v%d' % (vEr, QS, vT1))
        p('v_lshl_add_u32 v%d, v%d, 2, v%d' % (vEr, vT0, vEr))
        p('v_add_u32 v%d, %d, v%d' % (vEr + 1, HS, vEr))
        p('v_add_u32 v%d, %d, v%d' % (vEr + 2, WS, vEr))
        p('v_add_u32 v%d, %d, v%d' % (vEr + 3, WS + HS, vEr))
        p('v_lshlrev_b32 v%d, 4, v%d' % (vEl, vT1))
        p('v_add_u32 v%d, %d, v%d' % (vEl, ML, vEl))
        p('v_lshlrev_b32 v%d, 8, v%d' % (vEo, vT1))
        p('v_lshl_add_u32 v%d, v%d, 4, v%d' % (vEo, vT0, vEo))
        p('v_and_b32 v%d, 7, v0' % vT0)
        p('s_lshl_b32 s3, s%d, 3' % sW)
        p('s_add_u32 s3, s3, %d' % ML)
        p('v_lshl_add_u32 v%d, v%d, 4, s3' % (vEm, vT0))
    if stamp == 2:
        p('s_waitcnt vmcnt(%d)' % (N - 1))
        mark(1)
        p('s_waitcnt lgkmcnt(0)')

    if qpos:
        p('s_waitcnt vmcnt(%d)' % (N - qpos))

    def ab(i):
        d, t = vD + 8 * (i & 1), vAB + 2 * (i & 1)
        p('v_add_f32 v%d, v%d, v%d' % (t, d + 0, d + 6))
        p('v_add_f32 v%d, v%d, v%d' % (t + 1, d + 1, d + 7))

    def dpp(i):
        t = vAB + 2 * (i & 1)
        if i < 8:
            p('v_add_f32_dpp v%d, v%d, v%d row_ror:8 row_mask:0xf bank_mask:0x3' % (vS + i, t + 1, t))
        else:
            p('v_add_f32_dpp v%d, v%d, v%d row_ror:8 row_mask:0xf bank_mask:0xc' % (vS + i - 8, t, t + 1))

    def cross(ph):
        p('s_cmp_eq_u32 s%d, 1' % sCnt)
        if ph == 'K':
            p('s_cselect_b32 s%d, s%d, s%d' % (sX, sVb, sX))
            p('s_cselect_b32 s%d, s%d, s%d' % (sX + 1, sVb + 1, sX + 1))
            p('s_cselect_b64 vcc, -1, 0')
            p('v_cndmask_b32 v%d, v%d, v%d, vcc' % (vLn, vLn, vLv))
        else:
            p('s_cselect_b32 s%d, 0, s%d' % (sX + 2, sX + 2))
        p('v_xor_b32 v%d, s%d, v%d' % (vBase, sNx, vLn))

    def head(ph, n, i):
        f = fk if ph == 'K' else fv
        if i == 0:
            addr(n)
            p('s_waitcnt vmcnt(%d)' % (n - 1))
            load(n)
            p.label('L_%s%d_a' % (ph, n))
            if f:
                issue(n + 1)
            p('s_add_u32 s%d, s%d, 1' % (sBi, sBi))
            if rt:
                p('s_xor_b32 s%d, s%d, s80' % (sNx, sFix))
                p('s_lshl_b32 s3, s%d, 2' % sBi)
                p('s_add_u32 s3, s3, 0x1104')
                p('s_load_dword s80, s[46:47], s3')
            else:
                p('s_mov_b32 s%d, s%d' % (sNx, sFix))
                for k, m in enumerate(mT):
                    p('s_bitcmp1_b32 s%d, %d' % (sBi, k))
                    p('s_cselect_b32 s3, 0x%x, 0' % m)
                    p('s_xor_b32 s%d, s%d, s3' % (sNx, sNx))
            return
        if f and i == f:
            p('s_waitcnt vmcnt(%d)' % n)
            return
        wide = 1 if i < f else 0
        j = i + n + wide
        if j == 16:
            cross(ph)
        addr(j)
        p('s_waitcnt vmcnt(%d)' % (n - 1 + wide))
        load(j)

    def decide(n):
        p('s_sub_u32 s%d, s%d, 1' % (sCnt, sCnt))
        if dyn:
            p('s_cmp_lt_u32 s%d, s%d' % (sBi, sTill))
            p('s_cselect_b32 s%d, s%d, %d' % (sGo, sMod, N))
            p('s_xor_b32 s%d, s%d, %d' % (sGo, sGo, n))
            p('s_cmp_eq_u32 s%d, 0' % sCnt)
            p('s_cselect_b32 s%d, 1, s%d' % (sGo, sGo))
            p('s_cmp_eq_u32 s%d, s%d' % (sBi, sEvt))
            p('s_cselect_b32 s%d, 1, s%d' % (sGo, sGo))

    def tail(ph, n, exit_label):
        if stamp == 3:
            p('s_memrealtime s[42:43]')
            p('s_waitcnt lgkmcnt(0)')
            p('s_sub_u32 s3, s%d, 1' % sBi)
            p('s_mov_b32 m0, s3')
            p('s_lshl_b32 s42, s42, 4')
            p('s_or_b32 s42, s42, %d' % n)
            p('v_writelane_b32 v190, s42, m0')
        if not dyn:
            p('s_cmp_lg_u32 s%d, 0' % sCnt)
            p('s_cbranch_scc1 L_%s%d' % (ph, n))
            p('s_branch %s' % exit_label)
            return
        p('s_cmp_eq_u32 s%d, 0' % sGo)
        p('s_cbranch_scc1 L_%s%d' % (ph, n))
        p('s_cmp_eq_u32 s%d, 0' % sCnt)
        if ph == 'V':
            p('s_cbranch_scc1 %s' % exit_label)
        p('s_cmp_lg_u32 s%d, s%d' % (sBi, sEvt))
        p('s_cbranch_scc1 L_%s%d_c' % (ph, n))
        p('s_call_b64 s[%d:%d], L_ctl' % (sRet, sRet + 1))
        p.label('L_%s%d_c' % (ph, n))
        if ph == 'K':
            p('s_cmp_eq_u32 s%d, 0' % sCnt)
            p('s_cbranch_scc1 %s' % exit_label)
        p('s_cmp_lt_u32 s%d, s%d' % (sBi, sTill))
        p('s_cselect_b32 s%d, s%d, %d' % (sTgt, sMod, N))
        if n < nhi:
            p('s_cmp_gt_u32 s%d, %d' % (sTgt, n))
            p('s_cbranch_scc1 L_%s%d_up' % (ph, n))
        if n > nlo:
            p('s_cmp_ge_u32 s%d, %d' % (sTgt, n))
            p('s_cbranch_scc1 L_%s%d' % (ph, n))
            p('s_waitcnt vmcnt(%d)' % (n - 1))
            p('s_branch L_%s%d_a' % (ph, n - 1))
        else:
            p('s_branch L_%s%d' % (ph, n))
        if n < nhi:
            p.label('L_%s%d_up' % (ph, n))
            issue(n)
            p('s_branch L_%s%d' % (ph, n + 1))

    def kbody(n):
        p('.p2align %d' % al)
        for _ in range(pad):
            p('s_nop 0')
        p.label('L_K%d' % n)
        for i in range(16):
            head('K', n, i)
            d = vD + 8 * (i & 1)
            p('v_mfma_f32_16x16x32_bf16 %s, %s, %s, 0' % (r4(d), r4(vR + 4 * i), r4(vQ)))
            p('v_mfma_f32_16x16x32_bf16 %s, %s, %s, 0' % (r4(d + 4), r4(vR + 4 * i), r4(vQ + 4)))
            if i >= 2:
                dpp(i - 2)
            if i >= 1:
                ab(i - 1)
            if i == 12:
                decide(n)
            if i == 14 and rt:
                p('s_waitcnt lgkmcnt(0)')
        dpp(14)
        ab(15)
        p('v_max3_f32 v%d, v%d, v%d, v%d' % (vM, vM, vS, vS + 1))
        p('v_max3_f32 v%d, v%d, v%d, v%d' % (vM, vM, vS + 2, vS + 3))
        dpp(15)
        p('ds_write_b128 v%d, %s' % (vSa, r4(vS)))
        p('v_max3_f32 v%d, v%d, v%d, v%d' % (vM, vM, vS + 4, vS + 5))
        p('v_max3_f32 v%d, v%d, v%d, v%d' % (vM, vM, vS + 6, vS + 7))
        p('ds_write_b128 v%d, %s offset:1024' % (vSa, r4(vS + 4)))
        p('v_add_u32 v%d, 2048, v%d' % (vSa, vSa))
        tail('K', n, 'L_T%d' % n)

    lw = 0 if rt else 1 + lw2

    def trans(n):
        p.label('L_T%d' % n)
        p('v_subrev_u32 v%d, %d, v%d' % (vSa, IT * 2048, vSa))
        mark(2)
        p('ds_read_b128 %s, v%d' % (r4(vS), vSa))
        p('ds_read_b128 %s, v%d offset:1024' % (r4(vS + 4), vSa))
        p('ds_read_b32 v%d, v%d' % (vDum, vSa))
        if lw2:
            p('ds_read_b32 v%d, v%d' % (vDum, vSa))
        p('v_max_f32_dpp v%d, v%d, v%d row_ror:8 row_mask:0xf bank_mask:0xf' % (vM, vM, vM))
        p('s_mov_b32 s%d, %d' % (sCnt, IT))
        p('v_mov_b32 v%d, v%d' % (vT1, vM))
        p('v_permlane32_swap_b32 v%d, v%d' % (vM, vT1))
        p('v_max_f32 v%d, v%d, v%d' % (vM, vM, vT1))
        p('v_mov_b32 v%d, v%d' % (vT1, vM))
        p('v_permlane16_swap_b32 v%d, v%d' % (vM, vT1))
        p('v_max_f32 v%d, v%d, v%d' % (vM, vM, vT1))
        p('v_mul_f32 v%d, s%d, v%d' % (vM, sC, vM))
        p('s_waitcnt lgkmcnt(%d)' % (0 if stamp > 1 else lw))

    def vbody(n):
        extra = {i: [] for i in range(16)}
        extra[0] += ['v_fma_f32 v%d, v%d, s%d, -v%d' % (vS + e, vS + e, sC, vM) for e in range(8)]
        extra[0] += ['v_exp_f32 v%d, v%d' % (vS + e, vS + e) for e in range(4)]
        extra[2] += ['v_exp_f32 v%d, v%d' % (vS + e, vS + e) for e in range(4, 8)]
        extra[2] += ['v_add_f32 v%d, v%d, v%d' % (vT0, vS, vS + 1), 'v_add_f32 v%d, v%d, v%d' % (vT1, vS + 2, vS + 3)]
        if epi == 2:
            extra[4] += ['v_cvt_pk_bf16_f32 v%d, v%d, v%d' % (vQ + w, vS + 2 * w, vS + 2 * w + 1) for w in range(4)]
            extra[4] += ['v_cvt_pk_bf16_f32 v%d, v%d, v%d' % (vP + w, vS + 2 * w, vS + 2 * w + 1) for w in range(4)]
        else:
            extra[4] += ['v_cvt_pk_bf16_f32 v%d, v%d, v%d' % (vP + w, vS + 2 * w, vS + 2 * w + 1) for w in range(4)]
        extra[4] += ['v_add_f32 v%d, v%d, v%d' % (vT0, vT0, vS + 4), 'v_add_f32 v%d, v%d, v%d' % (vT1, vT1, vS + 5),
                     'v_add_f32 v%d, v%d, v%d' % (vT0, vT0, vS + 6), 'v_add_f32 v%d, v%d, v%d' % (vT1, vT1, vS + 7),
                     'v_add_f32 v%d, v%d, v%d' % (vL, vL, vT0), 'v_add_f32 v%d, v%d, v%d' % (vL, vL, vT1)]
        extra[6] += ['v_add_u32 v%d, 2048, v%d' % (vSa, vSa),
                     'ds_read_b128 %s, v%d' % (r4(vS), vSa),
                     'ds_read_b128 %s, v%d offset:1024' % (r4(vS + 4), vSa),
                     'ds_read_b32 v%d, v%d' % (vDum, vSa)] + ['ds_read_b32 v%d, v%d' % (vDum, vSa)] * lw2
        if epi == 2:
            extra[6] += ['v_mov_b32_dpp v%d, v%d row_ror:8 row_mask:0xf bank_mask:0xc' % (vQ + w, vQ + w) for w in range(4)]
            extra[10] += ['v_mov_b32_dpp v%d, v%d row_ror:8 row_mask:0xf bank_mask:0x3' % (vP + w, vP + w) for w in range(4)]
        else:
            extra[6] += ['v_and_b32 v%d, v%d, v%d' % (vQ + w, vMA, vP + w) for w in range(4)]
            extra[10] += ['v_and_b32 v%d, v%d, v%d' % (vQ + 4 + w, vMB, vP + w) for w in range(4)]
        extra[12] += ['s_cmp_lg_u32 s%d, 1' % sCnt, 's_cbranch_scc1 L_V%d_l' % n,
                      's_call_b64 s[%d:%d], L_sum' % (sRet, sRet + 1), 'L_V%d_l:' % n]
        extra[14] += ['s_waitcnt lgkmcnt(%d)' % lw]

        def mf(pb, ms):
            return ['v_mfma_f32_16x16x32_bf16 %s, %s, %s, %s' % (r4(vO + 4 * m), r4(vVt + 4 * m), r4(pb), r4(vO + 4 * m))
                    for m in ms]
        extra[7] += mf(vQ, range(0, 4))
        extra[8] += mf(vQ, range(4, 8))
        extra[15] += mf(vP if epi == 2 else vQ + 4, range(0, 8))
        p('.p2align %d' % al)
        for _ in range(pad):
            p('s_nop 0')
        p.label('L_V%d' % n)
        for i in range(16):
            head('V', n, i)
            if i & 1:
                w = (i & 7) >> 1
                a = vR + 4 * (i - 1)
                for u in range(4):
                    p('v_perm_b32 v%d, v%d, v%d, s%d' % (vVt + 8 * u + w, a + 4 + u, a + u, sSelLo))
                    p('v_perm_b32 v%d, v%d, v%d, s%d' % (vVt + 8 * u + 4 + w, a + 4 + u, a + u, sSelHi))
            for x in extra[i]:
                p(x)
            if i == 12:
                decide(n)
        tail('V', n, 'L_epi')

    assert nhi + (1 if fk or fv else 0) <= 14 and nlo >= 5
    order = [N] + [n for n in range(nlo, nhi + 1) if n != N]
    for n in order:
        kbody(n)
    for n in order[::-1]:
        trans(n)
        vbody(n)

    p.label('L_epi')
    mark(3)
    if epi == 2:
        vSn, vKp, vRc, vA = vVt, vVt + 8, vVt + 16, vVt + 24
        p('; wave w keeps rows r = 2w + h of every 4-row group and hands the other pair to its partner')
        p('s_cmp_lg_u32 s%d, 0' % sW)
        p('s_cbranch_scc1 L_epi1')
        for w in range(2):
            if w:
                p.label('L_epi1')
            o, k = 2 * (1 - w), 2 * w
            for hb in range(2):
                for m in range(4 * hb, 4 * hb + 4):
                    p('v_cndmask_b32 v%d, v%d, v%d, s[%d:%d]' % (vSn + m, vO + 4 * m + o, vO + 4 * m + o + 1, sH, sH + 1))
                p('ds_write_b128 v%d, %s offset:%d' % (vEw, r4(vSn + 4 * hb), 1024 * hb))
            for m in range(8):
                p('v_cndmask_b32 v%d, v%d, v%d, s[%d:%d]' % (vKp + m, vO + 4 * m + k, vO + 4 * m + k + 1, sH, sH + 1))
            if not w:
                p('s_branch L_epi2')
        p.label('L_epi2')
        p('s_waitcnt lgkmcnt(0)')
        p('s_barrier')
        mark(4)
        p('ds_read_b64 v[%d:%d], v%d' % (vA, vA + 1, vEl))
        p('ds_read_b128 %s, v%d' % (r4(vRc), vEr))
        p('ds_read_b128 %s, v%d offset:1024' % (r4(vRc + 4), vEr))
        p('s_waitcnt lgkmcnt(%d)' % (0 if stamp == 2 else 2))
        p('v_max_f32 v%d, v%d, v%d' % (vT1, vA, vAB))
        p('v_sub_f32 v%d, v%d, v%d' % (vA, vA, vT1))
        p('v_sub_f32 v%d, v%d, v%d' % (vAB, vAB, vT1))
        p('v_exp_f32 v%d, v%d' % (vA, vA))
        p('v_exp_f32 v%d, v%d' % (vAB, vAB))
        p('v_mul_f32 v%d, v%d, v%d' % (vL, vA, vA + 1))
        p('v_fmac_f32 v%d, v%d, v%d' % (vL, vAB, vAB + 1))
        p('v_rcp_f32 v%d, v%d' % (vL, vL))
        p('v_mul_f32 v%d, v%d, v%d' % (vAB, vAB, vL))
        p('v_mul_f32 v%d, v%d, v%d' % (vA, vA, vL))
        for m in range(8):
            p('v_mul_f32 v%d, v%d, v%d' % (vKp + m, vAB, vKp + m))
        p('s_waitcnt lgkmcnt(0)')
        for m in range(8):
            p('v_fmac_f32 v%d, v%d, v%d' % (vKp + m, vA, vRc + m))
        for k in range(4):
            p('v_cvt_pk_bf16_f32 v%d, v%d, v%d' % (vS + k, vKp + 2 * k, vKp + 2 * k + 1))
        p('buffer_store_dwordx4 %s, v%d, s[%d:%d], 0 offen%s' % (r4(vS), vEo, sO, sO + 3, ofl))
    else:
        for m in range(8):
            p('ds_write_b128 v%d, %s offset:%d' % (vEw, r4(vO + 4 * m), m * MS))
        p('s_waitcnt lgkmcnt(0)')
        p('s_barrier')
        mark(4)
        vA, vRd = vVt, vO
        p('ds_read_b128 %s, v%d' % (r4(vA), vEl))
        for pp in range(4):
            for k in range(4):
                dst = vRd + pp * 8 + 2 * k
                p('ds_read2_b32 v[%d:%d], v%d offset0:%d offset1:%d' %
                  (dst, dst + 1, vEr + pp, 2 * k * MS // 4, (2 * k + 1) * MS // 4))
        p('s_waitcnt lgkmcnt(%d)' % (0 if stamp > 1 else 15))
        p('v_max_f32 v%d, v%d, v%d' % (vT1, vA, vA + 2))
        p('v_sub_f32 v%d, v%d, v%d' % (vA, vA, vT1))
        p('v_sub_f32 v%d, v%d, v%d' % (vA + 2, vA + 2, vT1))
        p('v_exp_f32 v%d, v%d' % (vA, vA))
        p('v_exp_f32 v%d, v%d' % (vA + 2, vA + 2))
        p('v_mul_f32 v%d, v%d, v%d' % (vL, vA, vA + 1))
        p('v_fmac_f32 v%d, v%d, v%d' % (vL, vA + 2, vA + 3))
        p('v_rcp_f32 v%d, v%d' % (vL, vL))
        p('s_waitcnt lgkmcnt(%d)' % (0 if stamp > 1 else 8))
        for k in range(8):
            p('v_add_f32 v%d, v%d, v%d' % (vRd + k, vRd + k, vRd + 8 + k))
        p('v_mul_f32 v%d, v%d, v%d' % (vA, vA, vL))
        p('v_mul_f32 v%d, v%d, v%d' % (vA + 2, vA + 2, vL))
        for k in range(8):
            p('v_mul_f32 v%d, v%d, v%d' % (vS + k, vA, vRd + k))
        p('s_waitcnt lgkmcnt(0)')
        for k in range(8):
            p('v_add_f32 v%d, v%d, v%d' % (vRd + 16 + k, vRd + 16 + k, vRd + 24 + k))
        for k in range(8):
            p('v_fmac_f32 v%d, v%d, v%d' % (vS + k, vA + 2, vRd + 16 + k))
        for k in range(4):
            p('v_cvt_pk_bf16_f32 v%d, v%d, v%d' % (vP + k, vS + 2 * k, vS + 2 * k + 1))
        p('buffer_store_dwordx4 %s, v%d, s[%d:%d], 0 offen%s' % (r4(vP), vEo, sO, sO + 3, ofl))
    if diag_hold:
        p.label('L_hold')
        p('s_sleep 1')
        p('s_memrealtime s[42:43]')
        p('s_waitcnt lgkmcnt(0)')
        p('s_sub_u32 s42, s42, s40')
        p('s_cmp_lt_u32 s42, %d' % (diag_hold * 100))
        p('s_cbranch_scc1 L_hold')
    if stamp:
        p('s_memrealtime s[42:43]')
        p('s_waitcnt lgkmcnt(0)')
        p('s_getreg_b32 s46, hwreg(HW_REG_XCC_ID)')
        p('s_lshl_b32 s%d, s2, 1' % sTmp)
        p('s_add_u32 s%d, s%d, s%d' % (sTmp, sTmp, sW))
        p('s_lshl_b32 s%d, s%d, 5' % (sTmp, sTmp))
        p('v_mov_b32 v%d, s%d' % (vT0, sTmp))
        for i, s in enumerate((40, 41, 42, 43)):
            p('v_mov_b32 v%d, s%d' % (vVt + i, s))
        p('v_mov_b32 v%d, s46' % (vVt + 4))
        p('v_mov_b32 v%d, %d' % (vVt + 5, W))
        if stamp == 3:
            p('s_lshl_b32 s3, s%d, 3' % sTmp)
            p('s_add_u32 s3, s3, 0x100000')
            p('v_lshl_add_u32 v%d, v0, 2, s3' % vT1)
            p('global_store_dword v%d, v190, s[%d:%d]' % (vT1, sWs, sWs + 1))
        p('s_mov_b64 exec, 1')
        p('global_store_dwordx4 v%d, %s, s[%d:%d]' % (vT0, r4(vVt), sWs, sWs + 1))
        p('global_store_dwordx2 v%d, v[%d:%d], s[%d:%d] offset:16' % (vT0, vVt + 4, vVt + 5, sWs, sWs + 1))
        if stamp == 2:
            p('v_lshlrev_b32 v%d, 2, v%d' % (vT0, vT0))
            p('v_add_u32 v%d, 0x100000, v%d' % (vT0, vT0))
            for k in range(5):
                p('v_mov_b32 v%d, s%d' % (vD + k, 90 + 2 * k))
            p('global_store_dwordx4 v%d, %s, s[%d:%d]' % (vT0, r4(vD), sWs, sWs + 1))
            p('global_store_dword v%d, v%d, s[%d:%d] offset:16' % (vT0, vD + 4, sWs, sWs + 1))
    p.label('L_end')
    p('s_endpgm')

    p.label('L_sum')
    p('s_nop 1')
    p('v_add_f32_dpp v%d, v%d, v%d row_ror:8 row_mask:0xf bank_mask:0xf' % (vL, vL, vL))
    p('v_mov_b32 v%d, v%d' % (vAB, vM))
    p('v_mov_b32 v%d, v%d' % (vT1, vL))
    p('v_permlane32_swap_b32 v%d, v%d' % (vL, vT1))
    p('v_add_f32 v%d, v%d, v%d' % (vL, vL, vT1))
    p('v_mov_b32 v%d, v%d' % (vT1, vL))
    p('v_permlane16_swap_b32 v%d, v%d' % (vL, vT1))
    p('v_add_f32 v%d, v%d, v%d' % (vAB + 1, vL, vT1))
    p('ds_write_b64 v%d, v[%d:%d]' % (vEm, vAB, vAB + 1))
    p('s_setpc_b64 s[%d:%d]' % (sRet, sRet + 1))

    if cps:
        p.label('L_ctl')
        p('s_add_u32 s%d, s%d, 1' % (sSt, sSt))
        for ci, (kb, sc, cdn, cR) in enumerate(cps):
            end = (cps[ci + 1][0] if ci + 1 < len(cps) else TB - 1)
            p('s_cmp_lg_u32 s%d, %d' % (sSt, 2 * ci + 1))
            p('s_cbranch_scc1 L_ctl_a%d' % ci)
            p('s_mov_b32 s%d, 1' % sRk)
            if w0only:
                p('s_cmp_lg_u32 s%d, 0' % sW)
                p('s_cbranch_scc1 L_ctl_s%d' % ci)
            if not noat:
                p('s_atomic_add s%d, s[%d:%d], s%d glc' % (sRk, sWs, sWs + 1, sCw + 2 * ci))
            if w0only:
                p.label('L_ctl_s%d' % ci)
            p('s_mov_b32 s%d, %d' % (sEvt, kb + lag))
            p('s_setpc_b64 s[%d:%d]' % (sRet, sRet + 1))
            p.label('L_ctl_a%d' % ci)
            p('s_cmp_lg_u32 s%d, %d' % (sSt, 2 * ci + 2))
            p('s_cbranch_scc1 L_ctl_b%d' % ci)
            p('s_waitcnt lgkmcnt(0)')
            p('s_sub_u32 s%d, s%d, s%d' % (sRk, sRk, sCw + 2 * ci + 1))
            p('s_mov_b32 s%d, %d' % (sEvt, cps[ci + 1][0] if ci + 1 < len(cps) else 255))
            p('s_and_b32 s%d, s%d, 0xff' % (sRk, sRk))
            p('s_cmp_ge_u32 s%d, %d' % (sRk, G // 2))
            p('s_cselect_b32 s%d, %d, %d' % (sX3, 4 * sc, cdn * sc))
            p('s_mov_b32 s%d, %d' % (sRr, cR))
            p('s_mov_b32 s%d, %d' % (sTill, end))
            p('s_branch L_ctl_set')
            p.label('L_ctl_b%d' % ci)
        p('s_setpc_b64 s[%d:%d]' % (sRet, sRet + 1))
        p.label('L_ctl_set')
        zs = (0.165, 0.51, 0.93, 1.78) if G == 8 else (0.09, 0.26, 0.44, 0.64, 0.85, 1.11, 1.45, 2.05)
        wt = sum(int(round(16 * z)) << (8 * i) for i, z in enumerate(zs))
        p('s_min_u32 s%d, s%d, %d' % (sRk, sRk, G - 1))
        p('s_sub_i32 s%d, %d, s%d' % (sX1, G // 2 - 1, sRk))
        p('s_sub_i32 s%d, s%d, %d' % (sU, sRk, G // 2))
        p('s_max_i32 s%d, s%d, s%d' % (sU, sU, sX1))
        p('s_lshl_b32 s%d, s%d, 3' % (sU, sU))
        if G == 8:
            p('s_mov_b32 s%d, 0x%08x' % (sTmp, wt))
            p('s_lshr_b32 s%d, s%d, s%d' % (sU, sTmp, sU))
        else:
            p('s_mov_b32 s62, 0x%08x' % (wt & 0xffffffff))
            p('s_mov_b32 s63, 0x%08x' % (wt >> 32))
            p('s_lshr_b64 s[62:63], s[62:63], s%d' % sU)
            p('s_mov_b32 s%d, s62' % sU)
        p('s_and_b32 s%d, s%d, 0xff' % (sU, sU))
        p('s_mul_i32 s%d, s%d, s%d' % (sU, sU, sX3))
        p('s_cmp_ge_u32 s%d, %d' % (sRk, G // 2))
        p('s_cselect_b32 s%d, %d, %d' % (sX1, act, -act))
        p('s_add_u32 s%d, s%d, 32' % (sU, sU))
        p('s_lshr_b32 s%d, s%d, 6' % (sU, sU))
        if amp > 1:
            p('s_cmp_gt_u32 s%d, s%d' % (sU, sRr))
            p('s_cselect_b32 s%d, 1, 0' % sTmp)
            p('s_lshr_b32 s%d, s%d, s%d' % (sU, sU, sTmp))
            p('s_lshl_b32 s%d, s%d, s%d' % (sX1, sX1, sTmp))
        p('s_add_i32 s%d, s%d, %d' % (sMod, sX1, N))
        p('s_add_u32 s%d, s%d, s%d' % (sU, sU, sBi))
        p('s_min_u32 s%d, s%d, s%d' % (sTill, sTill, sU))
        p('s_setpc_b64 s[%d:%d]' % (sRet, sRet + 1))
    p.label('L_last')
    p.fix_hazards()
    mv, ma, ms = p.max_regs()
    nvg = mv + 1
    acc = min(256, (nvg + 3) // 4 * 4)
    txt = HEADER + '; @launch grid=(256,1,1) block=(128,1,1) lds=%d\n' % lds
    txt += '.amdgcn_target "amdgcn-amd-amdhsa--gfx950"\n.text\n.globl %s\n.p2align 8\n.type %s,@function\n%s:\n' % (
        KNAME, KNAME, KNAME)
    txt += p.text()
    txt += """.section .rodata,"a"
.p2align 6
.amdhsa_kernel %s
  .amdhsa_next_free_vgpr %d
  .amdhsa_next_free_sgpr %d
  .amdhsa_accum_offset %d
  .amdhsa_group_segment_fixed_size 0
  .amdhsa_kernarg_size 48
  .amdhsa_user_sgpr_count 2
  .amdhsa_user_sgpr_kernarg_segment_ptr 1
  .amdhsa_system_sgpr_workgroup_id_x 1
.end_amdhsa_kernel
""" % (KNAME, nvg, ms + 1, acc)
    return txt


if __name__ == '__main__':
    kw = {}
    for a in sys.argv[2:]:
        k, v = a.split('=')
        try:
            v = int(v, 0)
        except ValueError:
            pass
        kw[k] = v
    open(sys.argv[1], 'w').write(gen(**kw))
```

```python
import math
import sys
sys.path.insert(0, 'work')
from asmlib import Prog
from gen_attn import KNAME, f32bits

PATS = {
    'B': '100 200 400 800 1000 2000 4000 8000 10000 20000 40000 80000 0 0 0 0 0 0 0 0',
    'C2': '100 200 800 8000 1000 2000 4000 10000 20000 40000 80000 400 0 0 0 0 0 0 0 0',
    'S1': '2000 100 400 8100 1000 200 800 10200 80000 20000 40800 4000 0 0 0 0 0 0 0 0',
    'S2': '2000 4000 8100 200 1000 100 800 10000 80000 20000 400 40800 0 0 0 0 0 0 0 0',
    'F': '8800 a00 1ba00 8b00 72b00 12000 1e000 11300 c9200 4b000 9c900 43f00 70000 1c800 be000 6800 9d800 48000 b000 79800',
    'F3': 'a00 1b000 8b00 12000 72b00 1e000 8800 11300 c9200 4b000 94100 43f00 70000 18800 ac000 6800 95800 48000 b000 69000',
    'S3': '100 200 2000 8000 1000 400 800 10200 80000 20400 40000 4000 0 0 0 0 0 0 0 0',
    'S4': '4000 2000 1000 8100 100 800 200 10200 80000 40800 20400 400 0 0 0 0 0 0 0 0',
    'S5': 'a100 400 8100 11200 1600 9b00 a8100 10200 20000 100 43d00 84100 0 0 0 0 0 0 0 0',
    'F30': 'a00 1b000 8b00 12000 72b00 1e000 8800 11300 c9200 4b000 94100 43f00 0 0 0 0 0 0 0 0',
    'F2': 'a00 1b000 8b00 72b00 12000 1e000 8800 11300 c9200 4b000 94100 43f00 70000 18800 ac000 6800 95800 48000 b000 69000',
}

HEADER = """; GQA decode attention (B=16, Hq=32, Hkv=16, Sq=4, Sk=4096, D=128), bf16 in / bf16 out.
;
;   phase V : P = exp2((S - max) * log2e / sqrt(D)), V transposed in registers with v_perm,
; with seven peers and deepens (late) or shortens (early) its prefetch for a few tiles, so that all
"""


def dep(x, ms):
    r = 0
    for k, m in enumerate(ms):
        if x >> k & 1:
            r ^= m
    return r


def gen(N=10, amp=2, pol='nt', pat='F3', chk='24:8:2:6,35:8:2:12,50:6:2:5,57:6:2:5', R=12, dn=2, lag=1, act=1, wsoff=0,
        stamp=0, diag_hold=0, opol='', alt=0, noat=0, nobase=0, lw2=0, w0only=0, cstride=256, fk=4, fv=4, al=3, pad=0, cwarm=1, epi=2, m0early=0, qpos=2, G=8, bal=1, twarm=0, tw='vo'):
    W, IT = 2, 32
    TB = 2 * IT
    cps = [tuple(int(v) for v in e.split(':')) for e in chk.split(',') if e] if chk else []
    cps = [c + (dn, R)[len(c) - 2:] for c in cps]
    nlo = N - amp if cps else N
    nhi = N + amp if cps else N
    dyn = nhi > nlo
    rt = pat == 'rt'
    pm = [int(x, 16) for x in PATS.get('B' if rt else pat, pat.replace('_', ' ')).split()]
    mL, mW, mS = pm[0:2], pm[5:6], pm[12:20]
    seq = pm[2:5] + pm[6:12]
    mJ, mT = seq[:4], seq[4:]
    p = Prog()
    vLn, vLv, vT0, vT1, vM, vL, vSa = 1, 2, 3, 4, 5, 6, 7
    vAB = 8
    vP = 12
    vQ = 16
    vS = 24
    vD = 32
    vVt = 48
    vO = 80
    vR = 112
    vMA, vMB, vBase, vAd = 176, 177, 178, 179
    vEw, vEm, vEr, vEl, vEo, vDum = 181, 182, 184, 183, 188, 189
    sX, sQ, sO, sVb = 8, 16, 20, 12
    sCnt, sW, sC, sSelLo, sSelHi, sTmp, sTgt = 26, 27, 28, 29, 30, 31, 32
    sH = 34
    sFix, sNx, sBi = 24, 25, 33
    sEvt, sTill, sMod, sRk, sX1, sX3, sU, sSt = 50, 51, 52, 53, 54, 55, 56, 57
    sRet, sWs, sGo, sRr = 58, 48, 60, 61
    sCw = 82
    fl = (' ' + pol.replace('+', ' ')) if pol else ''
    ofl = (' ' + opol.replace('+', ' ')) if opol else ''
    QS, MS = 656, 80
    HS = 8 * QS
    WS = 65536
    ML = 131072 + 2048
    XB = ML + 2048 if epi == 2 else 0
    XB = (XB + 4095) // 4096 * 4096
    lds = XB + 4096 if epi == 2 else ML + 128

    def r4(b):
        return 'v[%d:%d]' % (b, b + 3)

    def mark(k):
        if stamp == 2:
            p('s_memrealtime s[%d:%d]' % (90 + 2 * k, 91 + 2 * k))

    def addr(j):
        c = dep(j % 16, mJ)
        if rt:
            p('v_xor_b32 v%d, s%d, v%d' % (vAd + (j & 1), 64 + j % 16, vBase))
        elif c:
            p('v_xor_b32 v%d, 0x%x, v%d' % (vAd + (j & 1), c, vBase))

    def load(j):
        va = vAd + (j & 1) if (rt or dep(j % 16, mJ)) else vBase
        p('buffer_load_dwordx4 %s, v%d, s[%d:%d], 0 offen%s' % (r4(vR + 4 * (j % 16)), va, sX, sX + 3, fl))

    def issue(j):
        addr(j)
        load(j)

    def touch():
        p('; address-translation warm-up for pages first used later (values are never read)')
        if 'v' in tw:
            p('s_load_dword s62, s[%d:%d], 0' % (sVb, sVb + 1))
        if 'o' in tw:
            p('s_load_dword s63, s[%d:%d], 0' % (sO, sO + 1))

    p('s_cmp_ge_u32 s2, 256')
    p('s_cbranch_scc1 L_end')
    p('s_load_dwordx4 s[4:7], s[0:1], 0')
    p('s_load_dwordx4 s[36:39], s[0:1], 16')
    if cps or stamp:
        p('s_load_dwordx2 s[%d:%d], s[0:1], 40' % (sWs, sWs + 1))
    if stamp or diag_hold:
        p('s_memrealtime s[40:41]')
    p('v_lshrrev_b32 v%d, 6, v0' % vT0)
    p('v_and_b32 v0, 63, v0')
    p('v_readfirstlane_b32 s%d, v%d' % (sW, vT0))
    p('v_lshrrev_b32 v%d, 4, v0' % vT0)
    p('v_lshlrev_b32 v%d, 6, v%d' % (vT0, vT0))
    p('v_and_b32 v%d, 3, v0' % vT1)
    p('v_lshl_add_u32 v%d, v%d, 4, v%d' % (vLn, vT1, vT0))
    for k in range(2):
        p('v_bfe_i32 v%d, v0, %d, 1' % (vT1, 2 + k))
        p('v_and_b32 v%d, 0x%x, v%d' % (vT1, mL[k], vT1))
        p('v_xor_b32 v%d, v%d, v%d' % (vLn, vLn, vT1))
    p('; Q lanes: (s, h = (lane>>3)&1, q = lane&7) read 16 B at q*256 + (4 s + h) * 16, and 32 B further')
    p('v_and_b32 v%d, 7, v0' % vT1)
    p('v_lshl_add_u32 v%d, v%d, 8, v%d' % (vT0, vT1, vT0))
    p('v_bfe_u32 v%d, v0, 3, 1' % vT1)
    p('v_lshl_add_u32 v%d, v%d, 4, v%d' % (vT0, vT1, vT0))
    p('v_cmp_ne_u32 s[%d:%d], 0, v%d' % (sH, sH + 1, vT1))
    p('s_mov_b32 s%d, 0' % sFix)
    for src, ms in ((sW, mW), (2, mS)):
        for k, m in enumerate(ms):
            if m:
                p('s_bitcmp1_b32 s%d, %d' % (src, k))
                p('s_cselect_b32 s3, 0x%x, 0' % m)
                p('s_xor_b32 s%d, s%d, s3' % (sFix, sFix))
    p('v_xor_b32 v%d, s%d, v%d' % (vBase, sFix, vLn))
    if cwarm:
        p('; pull a 512 B slice of this kernel text into L2 (value unused)')
        p('s_getpc_b64 s[62:63]')
        p.label('L_pc')
        p('s_lshr_b32 s3, s2, 3')
        p('s_lshl_b32 s3, s3, 1')
        p('s_add_u32 s3, s3, s%d' % sW)
        p('s_lshl_b32 s3, s3, 9')
        p('v_lshl_add_u32 v%d, v0, 3, s3' % vEr)
        p('v_min_u32 v%d, L_last-L_pc-8, v%d' % (vEr, vEr))
        p('v_mov_b32 v%d, s63' % (vEr + 1))
        p('v_add_co_u32 v%d, vcc, s62, v%d' % (vEr, vEr))
        p('v_addc_co_u32 v%d, vcc, 0, v%d, vcc' % (vEr + 1, vEr + 1))
        p('global_load_dword v%d, v[%d:%d], off' % (vDum, vEr, vEr + 1))
    p('s_lshl_b32 s%d, s2, 20' % sTmp)
    p('s_lshl_b32 s3, s2, 11')
    for s, n in ((sX, 0x100000), (sQ, 2048), (sO, 2048)):
        p('s_mov_b32 s%d, 0x%x' % (s + 2, n))
        p('s_mov_b32 s%d, 0x20000' % (s + 3))
    if m0early == 1:
        mark(0)
    p('s_waitcnt lgkmcnt(0)')
    if not m0early:
        mark(0)
    if rt:
        p('s_add_u32 s46, s%d, 0x200000' % sWs)
        p('s_addc_u32 s47, s%d, 0' % (sWs + 1))
        p('s_lshl_b32 s63, s2, 1')
        p('s_add_u32 s63, s63, s%d' % sW)
        p('s_lshl_b32 s63, s63, 2')
        p('s_load_dword s%d, s[46:47], s63' % sFix)
        p('s_load_dwordx16 s[64:79], s[46:47], 0x1000')
        p('s_load_dword s80, s[46:47], 0x1104')
        p('v_lshlrev_b32 v%d, 2, v0' % vT1)
        p('v_add_u32 v%d, 0x1800, v%d' % (vT1, vT1))
        p('global_load_dword v%d, v%d, s[46:47]' % (vLv, vT1))
        p('global_load_dword v%d, v%d, s[46:47] offset:256' % (vLn, vT1))
        p('s_waitcnt vmcnt(0) lgkmcnt(0)')
        p('s_memrealtime s[40:41]')
        p('v_xor_b32 v%d, s%d, v%d' % (vBase, sFix, vLn))
    p('s_add_u32 s%d, s6, s%d' % (sX, sTmp))
    p('s_addc_u32 s%d, s7, 0' % (sX + 1))
    for j in range(qpos):
        issue(j)
    p('s_add_u32 s%d, s4, s3' % sQ)
    p('s_addc_u32 s%d, s5, 0' % (sQ + 1))
    p('buffer_load_dwordx4 %s, v%d, s[%d:%d], 0 offen' % (r4(vQ), vT0, sQ, sQ + 3))
    p('buffer_load_dwordx4 %s, v%d, s[%d:%d], 0 offen offset:32' % (r4(vQ + 4), vT0, sQ, sQ + 3))
    for j in range(qpos, N):
        issue(j)
    if m0early == 2:
        mark(0)
    p('s_add_u32 s%d, s36, s%d' % (sVb, sTmp))
    p('s_addc_u32 s%d, s37, 0' % (sVb + 1))
    p('s_add_u32 s%d, s38, s3' % sO)
    p('s_addc_u32 s%d, s39, 0' % (sO + 1))
    if twarm < 0:
        touch()
    if cps:
        p('; rank counters: one word per (checkpoint, wave, group of 8 workgroups); entry value = base')
        for ci in range(len(cps)):
            mul = [0, 1, 4, 3, 5, 2, 7, 9][ci]
            p('s_and_b32 s%d, s2, 7' % sTmp)
            p('s_mul_i32 s%d, s%d, %d' % (sTmp, sTmp, mul))
            p('s_lshr_b32 s3, s2, 3')
            p('s_xor_b32 s3, s3, s%d' % sTmp)
            p('s_and_b32 s3, s3, 31')
            if G == 8:
                p('s_lshl_b32 s%d, s%d, 5' % (sTmp, sW))
                p('s_or_b32 s3, s3, s%d' % sTmp)
            p('s_mul_i32 s3, s3, %d' % cstride)
            p('s_add_u32 s%d, s3, 0x%x' % (sCw + 2 * ci, wsoff + ci * 64 * cstride))
            if nobase:
                p('s_mov_b32 s%d, 0' % (sCw + 2 * ci + 1))
            else:
                p('s_load_dword s%d, s[%d:%d], s%d glc' % (sCw + 2 * ci + 1, sWs, sWs + 1, sCw + 2 * ci))
        p('s_mov_b32 s%d, %d' % (sEvt, twarm if twarm > 0 else cps[0][0]))
        p('s_mov_b32 s%d, %d' % (sSt, -1 if twarm > 0 else 0))
        p('s_mov_b32 s%d, 0' % sTill)
        p('s_mov_b32 s%d, %d' % (sMod, N))
    c = math.log2(math.e) / math.sqrt(128.0)
    p('s_mov_b32 s%d, 0x%08x' % (sC, f32bits(c)))
    p('s_mov_b32 s%d, 0x05040100' % sSelLo)
    p('s_mov_b32 s%d, 0x07060302' % sSelHi)
    p('s_mov_b32 s%d, 0' % sBi)
    if bal and not rt:
        p('s_xor_b32 s%d, s%d, 0x%x' % (sNx, sFix, mT[0]))
    p('s_mov_b32 s%d, %d' % (sCnt, IT))
    if not rt:
        p('; V lanes: (row = lane>>4, i = lane&15) read 16 B at row + 16 i')
        p('v_and_b32 v%d, 15, v0' % vLv)
        p('v_lshlrev_b32 v%d, 4, v%d' % (vLv, vLv))
        for k in range(2):
            p('v_bfe_i32 v%d, v0, %d, 1' % (vT1, 4 + k))
            p('v_and_b32 v%d, 0x%x, v%d' % (vT1, mL[k], vT1))
            p('v_xor_b32 v%d, v%d, v%d' % (vLv, vLv, vT1))
    p('s_lshl_b32 s%d, s%d, 16' % (sTmp, sW))
    p('v_lshl_add_u32 v%d, v0, 4, s%d' % (vSa, sTmp))
    p('v_mov_b32 v%d, 0xff800000' % vM)
    p('v_mov_b32 v%d, 0' % vL)
    if epi != 2:
        p('v_cndmask_b32 v%d, -1, 0, s[%d:%d]' % (vMA, sH, sH + 1))
        p('v_cndmask_b32 v%d, 0, -1, s[%d:%d]' % (vMB, sH, sH + 1))
    for i in range(32):
        p('v_mov_b32 v%d, 0' % (vO + i))
    if epi == 2:
        p('s_lshl_b32 s3, s%d, 11' % sW)
        p('s_add_u32 s3, s3, %d' % XB)
        p('v_lshl_add_u32 v%d, v0, 4, s3' % vEw)
        p('v_xor_b32 v%d, 0x800, v%d' % (vEr, vEw))
        p('v_and_b32 v%d, 7, v0' % vT0)
        p('s_lshl_b32 s3, s%d, 6' % sW)
        p('s_add_u32 s3, s3, %d' % ML)
        p('v_lshl_add_u32 v%d, v%d, 3, s3' % (vEm, vT0))
        p('v_xor_b32 v%d, 64, v%d' % (vEl, vEm))
        p('v_lshrrev_b32 v%d, 4, v0' % vT1)
        p('v_lshlrev_b32 v%d, 6, v%d' % (vT1, vT1))
        p('v_lshl_add_u32 v%d, v%d, 8, v%d' % (vEo, vT0, vT1))
        p('v_bfe_u32 v%d, v0, 3, 1' % vT1)
        p('v_lshl_add_u32 v%d, v%d, 4, v%d' % (vEo, vT1, vEo))
        p('s_lshl_b32 s3, s%d, 5' % sW)
        p('v_add_u32 v%d, s3, v%d' % (vEo, vEo))
    else:
        p('v_and_b32 v%d, 15, v0' % vT0)
        p('v_mul_u32_u24 v%d, %d, v%d' % (vEw, QS, vT0))
        p('v_lshrrev_b32 v%d, 4, v0' % vT1)
        p('v_lshl_add_u32 v%d, v%d, 4, v%d' % (vEw, vT1, vEw))
        p('v_add_u32 v%d, s%d, v%d' % (vEw, sTmp, vEw))
        p('s_lshl_b32 s3, s%d, 2' % sW)
        p('v_add_u32 v%d, s3, v%d' % (vT1, vT1))
        p('v_mul_u32_u24 v%d, %d, v%d' % (vEr, QS, vT1))
        p('v_lshl_add_u32 v%d, v%d, 2, v%d' % (vEr, vT0, vEr))
        p('v_add_u32 v%d, %d, v%d' % (vEr + 1, HS, vEr))
        p('v_add_u32 v%d, %d, v%d' % (vEr + 2, WS, vEr))
        p('v_add_u32 v%d, %d, v%d' % (vEr + 3, WS + HS, vEr))
        p('v_lshlrev_b32 v%d, 4, v%d' % (vEl, vT1))
        p('v_add_u32 v%d, %d, v%d' % (vEl, ML, vEl))
        p('v_lshlrev_b32 v%d, 8, v%d' % (vEo, vT1))
        p('v_lshl_add_u32 v%d, v%d, 4, v%d' % (vEo, vT0, vEo))
        p('v_and_b32 v%d, 7, v0' % vT0)
        p('s_lshl_b32 s3, s%d, 3' % sW)
        p('s_add_u32 s3, s3, %d' % ML)
        p('v_lshl_add_u32 v%d, v%d, 4, s3' % (vEm, vT0))
    if stamp == 2:
        p('s_waitcnt vmcnt(%d)' % (N - 1))
        mark(1)
        p('s_waitcnt lgkmcnt(0)')

    if qpos:
        p('s_waitcnt vmcnt(%d)' % (N - qpos))

    def ab(i):
        d, t = vD + 8 * (i & 1), vAB + 2 * (i & 1)
        p('v_add_f32 v%d, v%d, v%d' % (t, d + 0, d + 6))
        p('v_add_f32 v%d, v%d, v%d' % (t + 1, d + 1, d + 7))

    def dpp(i):
        t = vAB + 2 * (i & 1)
        if i < 8:
            p('v_add_f32_dpp v%d, v%d, v%d row_ror:8 row_mask:0xf bank_mask:0x3' % (vS + i, t + 1, t))
        else:
            p('v_add_f32_dpp v%d, v%d, v%d row_ror:8 row_mask:0xf bank_mask:0xc' % (vS + i - 8, t, t + 1))

    def cross(ph):
        p('s_cmp_eq_u32 s%d, 1' % sCnt)
        if ph == 'K':
            p('s_cselect_b32 s%d, s%d, s%d' % (sX, sVb, sX))
            p('s_cselect_b32 s%d, s%d, s%d' % (sX + 1, sVb + 1, sX + 1))
            p('s_cselect_b64 vcc, -1, 0')
            p('v_cndmask_b32 v%d, v%d, v%d, vcc' % (vLn, vLn, vLv))
        else:
            p('s_cselect_b32 s%d, 0, s%d' % (sX + 2, sX + 2))
        p('v_xor_b32 v%d, s%d, v%d' % (vBase, sNx, vLn))

    def nextoff(sreg):
        p('s_mov_b32 s%d, s%d' % (sNx, sFix))
        for k, m in enumerate(mT):
            p('s_bitcmp1_b32 s%d, %d' % (sreg, k))
            p('s_cselect_b32 s3, 0x%x, 0' % m)
            p('s_xor_b32 s%d, s%d, s3' % (sNx, sNx))

    def ahead():
        if bal and not rt:
            p('s_add_u32 s%d, s%d, 1' % (sTmp, sBi))
            nextoff(sTmp)

    def head(ph, n, i):
        f = fk if ph == 'K' else fv
        if i == 0:
            addr(n)
            p('s_waitcnt vmcnt(%d)' % (n - 1))
            load(n)
            p.label('L_%s%d_a' % (ph, n))
            if f:
                issue(n + 1)
            p('s_add_u32 s%d, s%d, 1' % (sBi, sBi))
            if rt:
                p('s_xor_b32 s%d, s%d, s80' % (sNx, sFix))
                p('s_lshl_b32 s3, s%d, 2' % sBi)
                p('s_add_u32 s3, s3, 0x1104')
                p('s_load_dword s80, s[46:47], s3')
            elif not bal:
                nextoff(sBi)
            return
        if f and i == f:
            p('s_waitcnt vmcnt(%d)' % n)
            return
        wide = 1 if i < f else 0
        j = i + n + wide
        if j == 16:
            cross(ph)
        addr(j)
        p('s_waitcnt vmcnt(%d)' % (n - 1 + wide))
        load(j)

    def decide(n):
        p('s_sub_u32 s%d, s%d, 1' % (sCnt, sCnt))
        if dyn:
            p('s_cmp_lt_u32 s%d, s%d' % (sBi, sTill))
            p('s_cselect_b32 s%d, s%d, %d' % (sGo, sMod, N))
            p('s_xor_b32 s%d, s%d, %d' % (sGo, sGo, n))
            p('s_cmp_eq_u32 s%d, 0' % sCnt)
            p('s_cselect_b32 s%d, 1, s%d' % (sGo, sGo))
            p('s_cmp_eq_u32 s%d, s%d' % (sBi, sEvt))
            p('s_cselect_b32 s%d, 1, s%d' % (sGo, sGo))

    def tail(ph, n, exit_label):
        if stamp == 3:
            p('s_memrealtime s[42:43]')
            p('s_waitcnt lgkmcnt(0)')
            p('s_sub_u32 s3, s%d, 1' % sBi)
            p('s_mov_b32 m0, s3')
            p('s_lshl_b32 s42, s42, 4')
            p('s_or_b32 s42, s42, %d' % n)
            p('v_writelane_b32 v190, s42, m0')
        if not dyn:
            p('s_cmp_lg_u32 s%d, 0' % sCnt)
            p('s_cbranch_scc1 L_%s%d' % (ph, n))
            p('s_branch %s' % exit_label)
            return
        p('s_cmp_eq_u32 s%d, 0' % sGo)
        p('s_cbranch_scc1 L_%s%d' % (ph, n))
        p('s_cmp_eq_u32 s%d, 0' % sCnt)
        if ph == 'V':
            p('s_cbranch_scc1 %s' % exit_label)
        p('s_cmp_lg_u32 s%d, s%d' % (sBi, sEvt))
        p('s_cbranch_scc1 L_%s%d_c' % (ph, n))
        p('s_call_b64 s[%d:%d], L_ctl' % (sRet, sRet + 1))
        p.label('L_%s%d_c' % (ph, n))
        if ph == 'K':
            p('s_cmp_eq_u32 s%d, 0' % sCnt)
            p('s_cbranch_scc1 %s' % exit_label)
        p('s_cmp_lt_u32 s%d, s%d' % (sBi, sTill))
        p('s_cselect_b32 s%d, s%d, %d' % (sTgt, sMod, N))
        if n < nhi:
            p('s_cmp_gt_u32 s%d, %d' % (sTgt, n))
            p('s_cbranch_scc1 L_%s%d_up' % (ph, n))
        if n > nlo:
            p('s_cmp_ge_u32 s%d, %d' % (sTgt, n))
            p('s_cbranch_scc1 L_%s%d' % (ph, n))
            p('s_waitcnt vmcnt(%d)' % (n - 1))
            p('s_branch L_%s%d_a' % (ph, n - 1))
        else:
            p('s_branch L_%s%d' % (ph, n))
        if n < nhi:
            p.label('L_%s%d_up' % (ph, n))
            issue(n)
            p('s_branch L_%s%d' % (ph, n + 1))

    def kbody(n):
        p('.p2align %d' % al)
        for _ in range(pad):
            p('s_nop 0')
        p.label('L_K%d' % n)
        p('; K tile, %d loads in flight' % n)
        for i in range(16):
            head('K', n, i)
            d = vD + 8 * (i & 1)
            p('v_mfma_f32_16x16x32_bf16 %s, %s, %s, 0' % (r4(d), r4(vR + 4 * i), r4(vQ)))
            p('v_mfma_f32_16x16x32_bf16 %s, %s, %s, 0' % (r4(d + 4), r4(vR + 4 * i), r4(vQ + 4)))
            if i >= 2:
                dpp(i - 2)
            if i >= 1:
                ab(i - 1)
            if i == 11:
                ahead()
            if i == 12:
                decide(n)
            if i == 14 and rt:
                p('s_waitcnt lgkmcnt(0)')
        dpp(14)
        ab(15)
        p('v_max3_f32 v%d, v%d, v%d, v%d' % (vM, vM, vS, vS + 1))
        p('v_max3_f32 v%d, v%d, v%d, v%d' % (vM, vM, vS + 2, vS + 3))
        dpp(15)
        p('ds_write_b128 v%d, %s' % (vSa, r4(vS)))
        p('v_max3_f32 v%d, v%d, v%d, v%d' % (vM, vM, vS + 4, vS + 5))
        p('v_max3_f32 v%d, v%d, v%d, v%d' % (vM, vM, vS + 6, vS + 7))
        p('ds_write_b128 v%d, %s offset:1024' % (vSa, r4(vS + 4)))
        p('v_add_u32 v%d, 2048, v%d' % (vSa, vSa))
        tail('K', n, 'L_T%d' % n)

    lw = 0 if rt else 1 + lw2

    def trans(n):
        p.label('L_T%d' % n)
        p('v_subrev_u32 v%d, %d, v%d' % (vSa, IT * 2048, vSa))
        mark(2)
        p('ds_read_b128 %s, v%d' % (r4(vS), vSa))
        p('ds_read_b128 %s, v%d offset:1024' % (r4(vS + 4), vSa))
        p('ds_read_b32 v%d, v%d' % (vDum, vSa))
        if lw2:
            p('ds_read_b32 v%d, v%d' % (vDum, vSa))
        p('v_max_f32_dpp v%d, v%d, v%d row_ror:8 row_mask:0xf bank_mask:0xf' % (vM, vM, vM))
        p('s_mov_b32 s%d, %d' % (sCnt, IT))
        p('v_mov_b32 v%d, v%d' % (vT1, vM))
        p('v_permlane32_swap_b32 v%d, v%d' % (vM, vT1))
        p('v_max_f32 v%d, v%d, v%d' % (vM, vM, vT1))
        p('v_mov_b32 v%d, v%d' % (vT1, vM))
        p('v_permlane16_swap_b32 v%d, v%d' % (vM, vT1))
        p('v_max_f32 v%d, v%d, v%d' % (vM, vM, vT1))
        p('s_waitcnt lgkmcnt(%d)' % (0 if stamp > 1 else lw))
        if bal:
            for x in scale():
                p(x)

    def scale():
        return (['v_sub_f32 v%d, v%d, v%d' % (vS + e, vS + e, vM) for e in range(8)] +
                ['v_mul_f32 v%d, s%d, v%d' % (vS + e, sC, vS + e) for e in range(8)])

    def vbody(n):
        extra = {i: [] for i in range(16)}
        if bal:
            extra[0] += ['v_exp_f32 v%d, v%d' % (vS + e, vS + e) for e in range(5)]
            extra[2] += ['v_exp_f32 v%d, v%d' % (vS + e, vS + e) for e in range(5, 8)]
        else:
            extra[0] += scale()
            extra[2] += ['v_exp_f32 v%d, v%d' % (vS + e, vS + e) for e in range(8)]
        extra[2] += ['v_add_f32 v%d, v%d, v%d' % (vT0, vS, vS + 1), 'v_add_f32 v%d, v%d, v%d' % (vT1, vS + 2, vS + 3)]
        if epi == 2:
            extra[4] += ['v_cvt_pk_bf16_f32 v%d, v%d, v%d' % (vQ + w, vS + 2 * w, vS + 2 * w + 1) for w in range(4)]
            extra[4] += ['v_cvt_pk_bf16_f32 v%d, v%d, v%d' % (vP + w, vS + 2 * w, vS + 2 * w + 1) for w in range(4)]
        else:
            extra[4] += ['v_cvt_pk_bf16_f32 v%d, v%d, v%d' % (vP + w, vS + 2 * w, vS + 2 * w + 1) for w in range(4)]
        extra[4] += ['v_add_f32 v%d, v%d, v%d' % (vT0, vT0, vS + 4), 'v_add_f32 v%d, v%d, v%d' % (vT1, vT1, vS + 5),
                     'v_add_f32 v%d, v%d, v%d' % (vT0, vT0, vS + 6), 'v_add_f32 v%d, v%d, v%d' % (vT1, vT1, vS + 7),
                     'v_add_f32 v%d, v%d, v%d' % (vL, vL, vT0), 'v_add_f32 v%d, v%d, v%d' % (vL, vL, vT1)]
        extra[6] += ['v_add_u32 v%d, 2048, v%d' % (vSa, vSa),
                     'ds_read_b128 %s, v%d' % (r4(vS), vSa),
                     'ds_read_b128 %s, v%d offset:1024' % (r4(vS + 4), vSa),
                     'ds_read_b32 v%d, v%d' % (vDum, vSa)] + ['ds_read_b32 v%d, v%d' % (vDum, vSa)] * lw2
        if epi == 2:
            extra[6] += ['v_mov_b32_dpp v%d, v%d row_ror:8 row_mask:0xf bank_mask:0xc' % (vQ + w, vQ + w) for w in range(4)]
            extra[10] += ['v_mov_b32_dpp v%d, v%d row_ror:8 row_mask:0xf bank_mask:0x3' % (vP + w, vP + w) for w in range(4)]
        else:
            extra[6] += ['v_and_b32 v%d, v%d, v%d' % (vQ + w, vMA, vP + w) for w in range(4)]
            extra[10] += ['v_and_b32 v%d, v%d, v%d' % (vQ + 4 + w, vMB, vP + w) for w in range(4)]
        extra[12] += ['s_cmp_lg_u32 s%d, 1' % sCnt, 's_cbranch_scc1 L_V%d_l' % n,
                      's_call_b64 s[%d:%d], L_sum' % (sRet, sRet + 1), 'L_V%d_l:' % n]
        extra[14] += ['s_waitcnt lgkmcnt(%d)' % lw] + (scale() if bal else [])

        def mf(pb, ms):
            return ['v_mfma_f32_16x16x32_bf16 %s, %s, %s, %s' % (r4(vO + 4 * m), r4(vVt + 4 * m), r4(pb), r4(vO + 4 * m))
                    for m in ms]
        extra[7] += mf(vQ, range(0, 4))
        extra[8] += mf(vQ, range(4, 8))
        extra[15] += mf(vP if epi == 2 else vQ + 4, range(0, 8))
        p('.p2align %d' % al)
        for _ in range(pad):
            p('s_nop 0')
        p.label('L_V%d' % n)
        p('; V tile, %d loads in flight' % n)
        for i in range(16):
            head('V', n, i)
            if i & 1:
                w = (i & 7) >> 1
                a = vR + 4 * (i - 1)
                for u in range(4):
                    p('v_perm_b32 v%d, v%d, v%d, s%d' % (vVt + 8 * u + w, a + 4 + u, a + u, sSelLo))
                    p('v_perm_b32 v%d, v%d, v%d, s%d' % (vVt + 8 * u + 4 + w, a + 4 + u, a + u, sSelHi))
            for x in extra[i]:
                p(x)
            if i == 10:
                ahead()
            if i == 12:
                decide(n)
        tail('V', n, 'L_epi')

    assert nhi + (1 if fk or fv else 0) <= 14 and nlo >= 7
    order = [N] + [n for n in range(nlo, nhi + 1) if n != N]
    for n in order:
        kbody(n)
    for n in order[::-1]:
        trans(n)
        vbody(n)

    p.label('L_epi')
    mark(3)
    if epi == 2:
        vSn, vKp, vRc, vA = vVt, vVt + 8, vVt + 16, vVt + 24
        p('; wave w keeps rows r = 2w + h of every 4-row group and hands the other pair to its partner')
        p('s_cmp_lg_u32 s%d, 0' % sW)
        p('s_cbranch_scc1 L_epi1')
        for w in range(2):
            if w:
                p.label('L_epi1')
            o, k = 2 * (1 - w), 2 * w
            for hb in range(2):
                for m in range(4 * hb, 4 * hb + 4):
                    p('v_cndmask_b32 v%d, v%d, v%d, s[%d:%d]' % (vSn + m, vO + 4 * m + o, vO + 4 * m + o + 1, sH, sH + 1))
                p('ds_write_b128 v%d, %s offset:%d' % (vEw, r4(vSn + 4 * hb), 1024 * hb))
            for m in range(8):
                p('v_cndmask_b32 v%d, v%d, v%d, s[%d:%d]' % (vKp + m, vO + 4 * m + k, vO + 4 * m + k + 1, sH, sH + 1))
            if not w:
                p('s_branch L_epi2')
        p.label('L_epi2')
        p('s_waitcnt lgkmcnt(0)')
        p('s_barrier')
        mark(4)
        p('ds_read_b64 v[%d:%d], v%d' % (vA, vA + 1, vEl))
        p('ds_read_b128 %s, v%d' % (r4(vRc), vEr))
        p('ds_read_b128 %s, v%d offset:1024' % (r4(vRc + 4), vEr))
        p('s_waitcnt lgkmcnt(%d)' % (0 if stamp == 2 else 2))
        p('v_max_f32 v%d, v%d, v%d' % (vT1, vA, vAB))
        p('v_sub_f32 v%d, v%d, v%d' % (vA, vA, vT1))
        p('v_sub_f32 v%d, v%d, v%d' % (vAB, vAB, vT1))
        p('v_mul_f32 v%d, s%d, v%d' % (vA, sC, vA))
        p('v_mul_f32 v%d, s%d, v%d' % (vAB, sC, vAB))
        p('v_exp_f32 v%d, v%d' % (vA, vA))
        p('v_exp_f32 v%d, v%d' % (vAB, vAB))
        p('v_mul_f32 v%d, v%d, v%d' % (vL, vA, vA + 1))
        p('v_fmac_f32 v%d, v%d, v%d' % (vL, vAB, vAB + 1))
        p('v_rcp_f32 v%d, v%d' % (vL, vL))
        p('v_mul_f32 v%d, v%d, v%d' % (vAB, vAB, vL))
        p('v_mul_f32 v%d, v%d, v%d' % (vA, vA, vL))
        for m in range(8):
            p('v_mul_f32 v%d, v%d, v%d' % (vKp + m, vAB, vKp + m))
        p('s_waitcnt lgkmcnt(0)')
        for m in range(8):
            p('v_fmac_f32 v%d, v%d, v%d' % (vKp + m, vA, vRc + m))
        for k in range(4):
            p('v_cvt_pk_bf16_f32 v%d, v%d, v%d' % (vS + k, vKp + 2 * k, vKp + 2 * k + 1))
        p('buffer_store_dwordx4 %s, v%d, s[%d:%d], 0 offen%s' % (r4(vS), vEo, sO, sO + 3, ofl))
    else:
        for m in range(8):
            p('ds_write_b128 v%d, %s offset:%d' % (vEw, r4(vO + 4 * m), m * MS))
        p('s_waitcnt lgkmcnt(0)')
        p('s_barrier')
        mark(4)
        vA, vRd = vVt, vO
        p('ds_read_b128 %s, v%d' % (r4(vA), vEl))
        for pp in range(4):
            for k in range(4):
                dst = vRd + pp * 8 + 2 * k
                p('ds_read2_b32 v[%d:%d], v%d offset0:%d offset1:%d' %
                  (dst, dst + 1, vEr + pp, 2 * k * MS // 4, (2 * k + 1) * MS // 4))
        p('s_waitcnt lgkmcnt(%d)' % (0 if stamp > 1 else 15))
        p('v_max_f32 v%d, v%d, v%d' % (vT1, vA, vA + 2))
        p('v_sub_f32 v%d, v%d, v%d' % (vA, vA, vT1))
        p('v_sub_f32 v%d, v%d, v%d' % (vA + 2, vA + 2, vT1))
        p('v_mul_f32 v%d, s%d, v%d' % (vA, sC, vA))
        p('v_mul_f32 v%d, s%d, v%d' % (vA + 2, sC, vA + 2))
        p('v_exp_f32 v%d, v%d' % (vA, vA))
        p('v_exp_f32 v%d, v%d' % (vA + 2, vA + 2))
        p('v_mul_f32 v%d, v%d, v%d' % (vL, vA, vA + 1))
        p('v_fmac_f32 v%d, v%d, v%d' % (vL, vA + 2, vA + 3))
        p('v_rcp_f32 v%d, v%d' % (vL, vL))
        p('s_waitcnt lgkmcnt(%d)' % (0 if stamp > 1 else 8))
        for k in range(8):
            p('v_add_f32 v%d, v%d, v%d' % (vRd + k, vRd + k, vRd + 8 + k))
        p('v_mul_f32 v%d, v%d, v%d' % (vA, vA, vL))
        p('v_mul_f32 v%d, v%d, v%d' % (vA + 2, vA + 2, vL))
        for k in range(8):
            p('v_mul_f32 v%d, v%d, v%d' % (vS + k, vA, vRd + k))
        p('s_waitcnt lgkmcnt(0)')
        for k in range(8):
            p('v_add_f32 v%d, v%d, v%d' % (vRd + 16 + k, vRd + 16 + k, vRd + 24 + k))
        for k in range(8):
            p('v_fmac_f32 v%d, v%d, v%d' % (vS + k, vA + 2, vRd + 16 + k))
        for k in range(4):
            p('v_cvt_pk_bf16_f32 v%d, v%d, v%d' % (vP + k, vS + 2 * k, vS + 2 * k + 1))
        p('buffer_store_dwordx4 %s, v%d, s[%d:%d], 0 offen%s' % (r4(vP), vEo, sO, sO + 3, ofl))
    if diag_hold:
        p.label('L_hold')
        p('s_sleep 1')
        p('s_memrealtime s[42:43]')
        p('s_waitcnt lgkmcnt(0)')
        p('s_sub_u32 s42, s42, s40')
        p('s_cmp_lt_u32 s42, %d' % (diag_hold * 100))
        p('s_cbranch_scc1 L_hold')
    if stamp:
        p('s_memrealtime s[42:43]')
        p('s_waitcnt lgkmcnt(0)')
        p('s_getreg_b32 s46, hwreg(HW_REG_XCC_ID)')
        p('s_lshl_b32 s%d, s2, 1' % sTmp)
        p('s_add_u32 s%d, s%d, s%d' % (sTmp, sTmp, sW))
        p('s_lshl_b32 s%d, s%d, 5' % (sTmp, sTmp))
        p('v_mov_b32 v%d, s%d' % (vT0, sTmp))
        for i, s in enumerate((40, 41, 42, 43)):
            p('v_mov_b32 v%d, s%d' % (vVt + i, s))
        p('v_mov_b32 v%d, s46' % (vVt + 4))
        p('v_mov_b32 v%d, %d' % (vVt + 5, W))
        if stamp == 3:
            p('s_lshl_b32 s3, s%d, 3' % sTmp)
            p('s_add_u32 s3, s3, 0x100000')
            p('v_lshl_add_u32 v%d, v0, 2, s3' % vT1)
            p('global_store_dword v%d, v190, s[%d:%d]' % (vT1, sWs, sWs + 1))
        p('s_mov_b64 exec, 1')
        p('global_store_dwordx4 v%d, %s, s[%d:%d]' % (vT0, r4(vVt), sWs, sWs + 1))
        p('global_store_dwordx2 v%d, v[%d:%d], s[%d:%d] offset:16' % (vT0, vVt + 4, vVt + 5, sWs, sWs + 1))
        if stamp == 2:
            p('v_lshlrev_b32 v%d, 2, v%d' % (vT0, vT0))
            p('v_add_u32 v%d, 0x100000, v%d' % (vT0, vT0))
            for k in range(5):
                p('v_mov_b32 v%d, s%d' % (vD + k, 90 + 2 * k))
            p('global_store_dwordx4 v%d, %s, s[%d:%d]' % (vT0, r4(vD), sWs, sWs + 1))
            p('global_store_dword v%d, v%d, s[%d:%d] offset:16' % (vT0, vD + 4, sWs, sWs + 1))
    p.label('L_end')
    p('s_endpgm')

    p.label('L_sum')
    p('s_nop 1')
    p('v_add_f32_dpp v%d, v%d, v%d row_ror:8 row_mask:0xf bank_mask:0xf' % (vL, vL, vL))
    p('v_mov_b32 v%d, v%d' % (vAB, vM))
    p('v_mov_b32 v%d, v%d' % (vT1, vL))
    p('v_permlane32_swap_b32 v%d, v%d' % (vL, vT1))
    p('v_add_f32 v%d, v%d, v%d' % (vL, vL, vT1))
    p('v_mov_b32 v%d, v%d' % (vT1, vL))
    p('v_permlane16_swap_b32 v%d, v%d' % (vL, vT1))
    p('v_add_f32 v%d, v%d, v%d' % (vAB + 1, vL, vT1))
    p('ds_write_b64 v%d, v[%d:%d]' % (vEm, vAB, vAB + 1))
    p('s_setpc_b64 s[%d:%d]' % (sRet, sRet + 1))

    if cps:
        p.label('L_ctl')
        p('s_add_u32 s%d, s%d, 1' % (sSt, sSt))
        if twarm > 0:
            p('s_cmp_lg_u32 s%d, 0' % sSt)
            p('s_cbranch_scc1 L_ctl_w')
            touch()
            p('s_mov_b32 s%d, %d' % (sEvt, cps[0][0]))
            p('s_setpc_b64 s[%d:%d]' % (sRet, sRet + 1))
            p.label('L_ctl_w')
        for ci, (kb, sc, cdn, cR) in enumerate(cps):
            end = (cps[ci + 1][0] if ci + 1 < len(cps) else TB - 1)
            p('s_cmp_lg_u32 s%d, %d' % (sSt, 2 * ci + 1))
            p('s_cbranch_scc1 L_ctl_a%d' % ci)
            p('s_mov_b32 s%d, 1' % sRk)
            if w0only:
                p('s_cmp_lg_u32 s%d, 0' % sW)
                p('s_cbranch_scc1 L_ctl_s%d' % ci)
            if not noat:
                p('s_atomic_add s%d, s[%d:%d], s%d glc' % (sRk, sWs, sWs + 1, sCw + 2 * ci))
            if w0only:
                p.label('L_ctl_s%d' % ci)
            p('s_mov_b32 s%d, %d' % (sEvt, kb + lag))
            p('s_setpc_b64 s[%d:%d]' % (sRet, sRet + 1))
            p.label('L_ctl_a%d' % ci)
            p('s_cmp_lg_u32 s%d, %d' % (sSt, 2 * ci + 2))
            p('s_cbranch_scc1 L_ctl_b%d' % ci)
            p('s_waitcnt lgkmcnt(0)')
            p('s_sub_u32 s%d, s%d, s%d' % (sRk, sRk, sCw + 2 * ci + 1))
            p('s_mov_b32 s%d, %d' % (sEvt, cps[ci + 1][0] if ci + 1 < len(cps) else 255))
            p('s_and_b32 s%d, s%d, 0xff' % (sRk, sRk))
            p('s_cmp_ge_u32 s%d, %d' % (sRk, G // 2))
            p('s_cselect_b32 s%d, %d, %d' % (sX3, 4 * sc, cdn * sc))
            p('s_mov_b32 s%d, %d' % (sRr, cR))
            p('s_mov_b32 s%d, %d' % (sTill, end))
            p('s_branch L_ctl_set')
            p.label('L_ctl_b%d' % ci)
        p('s_setpc_b64 s[%d:%d]' % (sRet, sRet + 1))
        p.label('L_ctl_set')
        zs = (0.165, 0.51, 0.93, 1.78) if G == 8 else (0.09, 0.26, 0.44, 0.64, 0.85, 1.11, 1.45, 2.05)
        wt = sum(int(round(16 * z)) << (8 * i) for i, z in enumerate(zs))
        p('s_min_u32 s%d, s%d, %d' % (sRk, sRk, G - 1))
        p('s_sub_i32 s%d, %d, s%d' % (sX1, G // 2 - 1, sRk))
        p('s_sub_i32 s%d, s%d, %d' % (sU, sRk, G // 2))
        p('s_max_i32 s%d, s%d, s%d' % (sU, sU, sX1))
        p('s_lshl_b32 s%d, s%d, 3' % (sU, sU))
        if G == 8:
            p('s_mov_b32 s%d, 0x%08x' % (sTmp, wt))
            p('s_lshr_b32 s%d, s%d, s%d' % (sU, sTmp, sU))
        else:
            p('s_mov_b32 s62, 0x%08x' % (wt & 0xffffffff))
            p('s_mov_b32 s63, 0x%08x' % (wt >> 32))
            p('s_lshr_b64 s[62:63], s[62:63], s%d' % sU)
            p('s_mov_b32 s%d, s62' % sU)
        p('s_and_b32 s%d, s%d, 0xff' % (sU, sU))
        p('s_mul_i32 s%d, s%d, s%d' % (sU, sU, sX3))
        p('s_cmp_ge_u32 s%d, %d' % (sRk, G // 2))
        p('s_cselect_b32 s%d, %d, %d' % (sX1, act, -act))
        p('s_add_u32 s%d, s%d, 32' % (sU, sU))
        p('s_lshr_b32 s%d, s%d, 6' % (sU, sU))
        if amp > 1:
            p('s_cmp_gt_u32 s%d, s%d' % (sU, sRr))
            p('s_cselect_b32 s%d, 1, 0' % sTmp)
            p('s_lshr_b32 s%d, s%d, s%d' % (sU, sU, sTmp))
            p('s_lshl_b32 s%d, s%d, s%d' % (sX1, sX1, sTmp))
        p('s_add_i32 s%d, s%d, %d' % (sMod, sX1, N))
        p('s_add_u32 s%d, s%d, s%d' % (sU, sU, sBi))
        p('s_min_u32 s%d, s%d, s%d' % (sTill, sTill, sU))
        p('s_setpc_b64 s[%d:%d]' % (sRet, sRet + 1))
    p.label('L_last')
    p.fix_hazards()
    mv, ma, ms = p.max_regs()
    nvg = mv + 1
    acc = min(256, (nvg + 3) // 4 * 4)
    txt = HEADER + '; @launch grid=(256,1,1) block=(128,1,1) lds=%d\n' % lds
    txt += '.amdgcn_target "amdgcn-amd-amdhsa--gfx950"\n.text\n.globl %s\n.p2align 8\n.type %s,@function\n%s:\n' % (
        KNAME, KNAME, KNAME)
    txt += p.text()
    txt += """.section .rodata,"a"
.p2align 6
.amdhsa_kernel %s
  .amdhsa_next_free_vgpr %d
  .amdhsa_next_free_sgpr %d
  .amdhsa_accum_offset %d
  .amdhsa_group_segment_fixed_size 0
  .amdhsa_kernarg_size 48
  .amdhsa_user_sgpr_count 2
  .amdhsa_user_sgpr_kernarg_segment_ptr 1
  .amdhsa_system_sgpr_workgroup_id_x 1
.end_amdhsa_kernel
""" % (KNAME, nvg, ms + 1, acc)
    return txt


if __name__ == '__main__':
    kw = {}
    for a in sys.argv[2:]:
        k, v = a.split('=')
        try:
            v = int(v, 0)
        except ValueError:
            pass
        kw[k] = v
    open(sys.argv[1], 'w').write(gen(**kw))
```

```python
import math
import sys
sys.path.insert(0, 'work')
from asmlib import Prog
from gen_attn import KNAME, f32bits

PATS = {
    'B': '100 200 400 800 1000 2000 4000 8000 10000 20000 40000 80000 0 0 0 0 0 0 0 0',
    'C2': '100 200 800 8000 1000 2000 4000 10000 20000 40000 80000 400 0 0 0 0 0 0 0 0',
    'S1': '2000 100 400 8100 1000 200 800 10200 80000 20000 40800 4000 0 0 0 0 0 0 0 0',
    'S2': '2000 4000 8100 200 1000 100 800 10000 80000 20000 400 40800 0 0 0 0 0 0 0 0',
    'F': '8800 a00 1ba00 8b00 72b00 12000 1e000 11300 c9200 4b000 9c900 43f00 70000 1c800 be000 6800 9d800 48000 b000 79800',
    'F3': 'a00 1b000 8b00 12000 72b00 1e000 8800 11300 c9200 4b000 94100 43f00 70000 18800 ac000 6800 95800 48000 b000 69000',
    'S3': '100 200 2000 8000 1000 400 800 10200 80000 20400 40000 4000 0 0 0 0 0 0 0 0',
    'S4': '4000 2000 1000 8100 100 800 200 10200 80000 40800 20400 400 0 0 0 0 0 0 0 0',
    'S5': 'a100 400 8100 11200 1600 9b00 a8100 10200 20000 100 43d00 84100 0 0 0 0 0 0 0 0',
    'F30': 'a00 1b000 8b00 12000 72b00 1e000 8800 11300 c9200 4b000 94100 43f00 0 0 0 0 0 0 0 0',
    'F2': 'a00 1b000 8b00 72b00 12000 1e000 8800 11300 c9200 4b000 94100 43f00 70000 18800 ac000 6800 95800 48000 b000 69000',
}

HEADER = """; GQA decode attention (B=16, Hq=32, Hkv=16, Sq=4, Sk=4096, D=128), bf16 in / bf16 out.
;
;   phase V : P = exp2((S - max) * log2e / sqrt(D)), V transposed in registers with v_perm,
; with seven peers and deepens (late) or shortens (early) its prefetch for a few tiles, so that all
"""


def dep(x, ms):
    r = 0
    for k, m in enumerate(ms):
        if x >> k & 1:
            r ^= m
    return r


def gen(N=10, amp=2, pol='nt', pat='F3', chk='24:8:2:6,35:8:2:12,50:6:2:5,57:6:2:5', R=12, dn=2, lag=1, act=1, wsoff=0,
        stamp=0, diag_hold=0, opol='', alt=0, noat=0, nobase=0, lw2=0, w0only=0, cstride=256, fk=4, fv=6, al=3, pad=0, cwarm=1, epi=2, m0early=0, qpos=2, G=8, bal=1, twarm=0, tw='vo', n0=0):
    W, IT = 2, 32
    TB = 2 * IT
    cps = [tuple(int(v) for v in e.split(':')) for e in chk.split(',') if e] if chk else []
    cps = [c + (dn, R)[len(c) - 2:] for c in cps]
    nlo = N - amp if cps else N
    nhi = N + amp if cps else N
    dyn = nhi > nlo
    rt = pat == 'rt'
    pm = [int(x, 16) for x in PATS.get('B' if rt else pat, pat.replace('_', ' ')).split()]
    mL, mW, mS = pm[0:2], pm[5:6], pm[12:20]
    seq = pm[2:5] + pm[6:12]
    mJ, mT = seq[:4], seq[4:]
    p = Prog()
    vLn, vLv, vT0, vT1, vM, vL, vSa = 1, 2, 3, 4, 5, 6, 7
    vAB = 8
    vP = 12
    vQ = 16
    vS = 24
    vD = 32
    vVt = 48
    vO = 80
    vR = 112
    vMA, vMB, vBase, vAd = 176, 177, 178, 179
    vEw, vEm, vEr, vEl, vEo, vDum = 181, 182, 184, 183, 188, 189
    sX, sQ, sO, sVb = 8, 16, 20, 12
    sCnt, sW, sC, sSelLo, sSelHi, sTmp, sTgt = 26, 27, 28, 29, 30, 31, 32
    sH = 34
    sFix, sNx, sBi = 24, 25, 33
    sEvt, sTill, sMod, sRk, sX1, sX3, sU, sSt = 50, 51, 52, 53, 54, 55, 56, 57
    sRet, sWs, sGo, sRr = 58, 48, 60, 61
    sCw = 82
    fl = (' ' + pol.replace('+', ' ')) if pol else ''
    ofl = (' ' + opol.replace('+', ' ')) if opol else ''
    QS, MS = 656, 80
    HS = 8 * QS
    WS = 65536
    ML = 131072 + 2048
    XB = ML + 2048 if epi == 2 else 0
    XB = (XB + 4095) // 4096 * 4096
    lds = XB + 4096 if epi == 2 else ML + 128

    def r4(b):
        return 'v[%d:%d]' % (b, b + 3)

    def mark(k):
        if stamp == 2:
            p('s_memrealtime s[%d:%d]' % (90 + 2 * k, 91 + 2 * k))

    def addr(j):
        c = dep(j % 16, mJ)
        if rt:
            p('v_xor_b32 v%d, s%d, v%d' % (vAd + (j & 1), 64 + j % 16, vBase))
        elif c:
            p('v_xor_b32 v%d, 0x%x, v%d' % (vAd + (j & 1), c, vBase))

    def load(j):
        va = vAd + (j & 1) if (rt or dep(j % 16, mJ)) else vBase
        p('buffer_load_dwordx4 %s, v%d, s[%d:%d], 0 offen%s' % (r4(vR + 4 * (j % 16)), va, sX, sX + 3, fl))

    def issue(j):
        addr(j)
        load(j)

    def touch():
        p('; address-translation warm-up for pages first used later (values are never read)')
        if 'v' in tw:
            p('s_load_dword s62, s[%d:%d], 0' % (sVb, sVb + 1))
        if 'o' in tw:
            p('s_load_dword s63, s[%d:%d], 0' % (sO, sO + 1))

    p('s_cmp_ge_u32 s2, 256')
    p('s_cbranch_scc1 L_end')
    p('s_load_dwordx4 s[4:7], s[0:1], 0')
    p('s_load_dwordx4 s[36:39], s[0:1], 16')
    if cps or stamp:
        p('s_load_dwordx2 s[%d:%d], s[0:1], 40' % (sWs, sWs + 1))
    if stamp or diag_hold:
        p('s_memrealtime s[40:41]')
    p('v_lshrrev_b32 v%d, 6, v0' % vT0)
    p('v_and_b32 v0, 63, v0')
    p('v_readfirstlane_b32 s%d, v%d' % (sW, vT0))
    p('v_lshrrev_b32 v%d, 4, v0' % vT0)
    p('v_lshlrev_b32 v%d, 6, v%d' % (vT0, vT0))
    p('v_and_b32 v%d, 3, v0' % vT1)
    p('v_lshl_add_u32 v%d, v%d, 4, v%d' % (vLn, vT1, vT0))
    for k in range(2):
        p('v_bfe_i32 v%d, v0, %d, 1' % (vT1, 2 + k))
        p('v_and_b32 v%d, 0x%x, v%d' % (vT1, mL[k], vT1))
        p('v_xor_b32 v%d, v%d, v%d' % (vLn, vLn, vT1))
    p('; Q lanes: (s, h = (lane>>3)&1, q = lane&7) read 16 B at q*256 + (4 s + h) * 16, and 32 B further')
    p('v_and_b32 v%d, 7, v0' % vT1)
    p('v_lshl_add_u32 v%d, v%d, 8, v%d' % (vT0, vT1, vT0))
    p('v_bfe_u32 v%d, v0, 3, 1' % vT1)
    p('v_lshl_add_u32 v%d, v%d, 4, v%d' % (vT0, vT1, vT0))
    p('v_cmp_ne_u32 s[%d:%d], 0, v%d' % (sH, sH + 1, vT1))
    p('s_mov_b32 s%d, 0' % sFix)
    for src, ms in ((sW, mW), (2, mS)):
        for k, m in enumerate(ms):
            if m:
                p('s_bitcmp1_b32 s%d, %d' % (src, k))
                p('s_cselect_b32 s3, 0x%x, 0' % m)
                p('s_xor_b32 s%d, s%d, s3' % (sFix, sFix))
    p('v_xor_b32 v%d, s%d, v%d' % (vBase, sFix, vLn))
    if cwarm:
        p('; pull a 512 B slice of this kernel text into L2 (value unused)')
        p('s_getpc_b64 s[62:63]')
        p.label('L_pc')
        p('s_lshr_b32 s3, s2, 3')
        p('s_lshl_b32 s3, s3, 1')
        p('s_add_u32 s3, s3, s%d' % sW)
        p('s_lshl_b32 s3, s3, 9')
        p('v_lshl_add_u32 v%d, v0, 3, s3' % vEr)
        p('v_min_u32 v%d, L_last-L_pc-8, v%d' % (vEr, vEr))
        p('v_mov_b32 v%d, s63' % (vEr + 1))
        p('v_add_co_u32 v%d, vcc, s62, v%d' % (vEr, vEr))
        p('v_addc_co_u32 v%d, vcc, 0, v%d, vcc' % (vEr + 1, vEr + 1))
        p('global_load_dword v%d, v[%d:%d], off' % (vDum, vEr, vEr + 1))
    p('s_lshl_b32 s%d, s2, 20' % sTmp)
    p('s_lshl_b32 s3, s2, 11')
    for s, n in ((sX, 0x100000), (sQ, 2048), (sO, 2048)):
        p('s_mov_b32 s%d, 0x%x' % (s + 2, n))
        p('s_mov_b32 s%d, 0x20000' % (s + 3))
    if m0early == 1:
        mark(0)
    p('s_waitcnt lgkmcnt(0)')
    if not m0early:
        mark(0)
    if rt:
        p('s_add_u32 s46, s%d, 0x200000' % sWs)
        p('s_addc_u32 s47, s%d, 0' % (sWs + 1))
        p('s_lshl_b32 s63, s2, 1')
        p('s_add_u32 s63, s63, s%d' % sW)
        p('s_lshl_b32 s63, s63, 2')
        p('s_load_dword s%d, s[46:47], s63' % sFix)
        p('s_load_dwordx16 s[64:79], s[46:47], 0x1000')
        p('s_load_dword s80, s[46:47], 0x1104')
        p('v_lshlrev_b32 v%d, 2, v0' % vT1)
        p('v_add_u32 v%d, 0x1800, v%d' % (vT1, vT1))
        p('global_load_dword v%d, v%d, s[46:47]' % (vLv, vT1))
        p('global_load_dword v%d, v%d, s[46:47] offset:256' % (vLn, vT1))
        p('s_waitcnt vmcnt(0) lgkmcnt(0)')
        p('s_memrealtime s[40:41]')
        p('v_xor_b32 v%d, s%d, v%d' % (vBase, sFix, vLn))
    p('s_add_u32 s%d, s6, s%d' % (sX, sTmp))
    p('s_addc_u32 s%d, s7, 0' % (sX + 1))
    for j in range(qpos):
        issue(j)
    p('s_add_u32 s%d, s4, s3' % sQ)
    p('s_addc_u32 s%d, s5, 0' % (sQ + 1))
    p('buffer_load_dwordx4 %s, v%d, s[%d:%d], 0 offen' % (r4(vQ), vT0, sQ, sQ + 3))
    p('buffer_load_dwordx4 %s, v%d, s[%d:%d], 0 offen offset:32' % (r4(vQ + 4), vT0, sQ, sQ + 3))
    n0 = n0 or N
    for j in range(qpos, n0):
        issue(j)
    if m0early == 2:
        mark(0)
    p('s_add_u32 s%d, s36, s%d' % (sVb, sTmp))
    p('s_addc_u32 s%d, s37, 0' % (sVb + 1))
    p('s_add_u32 s%d, s38, s3' % sO)
    p('s_addc_u32 s%d, s39, 0' % (sO + 1))
    if twarm < 0:
        touch()
    if cps:
        p('; rank counters: one word per (checkpoint, wave, group of 8 workgroups); entry value = base')
        for ci in range(len(cps)):
            mul = [0, 1, 4, 3, 5, 2, 7, 9][ci]
            p('s_and_b32 s%d, s2, 7' % sTmp)
            p('s_mul_i32 s%d, s%d, %d' % (sTmp, sTmp, mul))
            p('s_lshr_b32 s3, s2, 3')
            p('s_xor_b32 s3, s3, s%d' % sTmp)
            p('s_and_b32 s3, s3, 31')
            if G == 8:
                p('s_lshl_b32 s%d, s%d, 5' % (sTmp, sW))
                p('s_or_b32 s3, s3, s%d' % sTmp)
            p('s_mul_i32 s3, s3, %d' % cstride)
            p('s_add_u32 s%d, s3, 0x%x' % (sCw + 2 * ci, wsoff + ci * 64 * cstride))
            if nobase:
                p('s_mov_b32 s%d, 0' % (sCw + 2 * ci + 1))
            else:
                p('s_load_dword s%d, s[%d:%d], s%d glc' % (sCw + 2 * ci + 1, sWs, sWs + 1, sCw + 2 * ci))
        p('s_mov_b32 s%d, %d' % (sEvt, twarm if twarm > 0 else cps[0][0]))
        p('s_mov_b32 s%d, %d' % (sSt, -1 if twarm > 0 else 0))
        p('s_mov_b32 s%d, 0' % sTill)
        p('s_mov_b32 s%d, %d' % (sMod, N))
    c = math.log2(math.e) / math.sqrt(128.0)
    p('s_mov_b32 s%d, 0x%08x' % (sC, f32bits(c)))
    p('s_mov_b32 s%d, 0x05040100' % sSelLo)
    p('s_mov_b32 s%d, 0x07060302' % sSelHi)
    p('s_mov_b32 s%d, 0' % sBi)
    if bal and not rt:
        p('s_xor_b32 s%d, s%d, 0x%x' % (sNx, sFix, mT[0]))
    p('s_mov_b32 s%d, %d' % (sCnt, IT))
    if not rt:
        p('; V lanes: (row = lane>>4, i = lane&15) read 16 B at row + 16 i')
        p('v_and_b32 v%d, 15, v0' % vLv)
        p('v_lshlrev_b32 v%d, 4, v%d' % (vLv, vLv))
        for k in range(2):
            p('v_bfe_i32 v%d, v0, %d, 1' % (vT1, 4 + k))
            p('v_and_b32 v%d, 0x%x, v%d' % (vT1, mL[k], vT1))
            p('v_xor_b32 v%d, v%d, v%d' % (vLv, vLv, vT1))
    p('s_lshl_b32 s%d, s%d, 16' % (sTmp, sW))
    p('v_lshl_add_u32 v%d, v0, 4, s%d' % (vSa, sTmp))
    p('v_mov_b32 v%d, 0xff800000' % vM)
    p('v_mov_b32 v%d, 0' % vL)
    if epi != 2:
        p('v_cndmask_b32 v%d, -1, 0, s[%d:%d]' % (vMA, sH, sH + 1))
        p('v_cndmask_b32 v%d, 0, -1, s[%d:%d]' % (vMB, sH, sH + 1))
    for i in range(32):
        p('v_mov_b32 v%d, 0' % (vO + i))
    if epi == 2:
        p('s_lshl_b32 s3, s%d, 11' % sW)
        p('s_add_u32 s3, s3, %d' % XB)
        p('v_lshl_add_u32 v%d, v0, 4, s3' % vEw)
        p('v_xor_b32 v%d, 0x800, v%d' % (vEr, vEw))
        p('v_and_b32 v%d, 7, v0' % vT0)
        p('s_lshl_b32 s3, s%d, 6' % sW)
        p('s_add_u32 s3, s3, %d' % ML)
        p('v_lshl_add_u32 v%d, v%d, 3, s3' % (vEm, vT0))
        p('v_xor_b32 v%d, 64, v%d' % (vEl, vEm))
        p('v_lshrrev_b32 v%d, 4, v0' % vT1)
        p('v_lshlrev_b32 v%d, 6, v%d' % (vT1, vT1))
        p('v_lshl_add_u32 v%d, v%d, 8, v%d' % (vEo, vT0, vT1))
        p('v_bfe_u32 v%d, v0, 3, 1' % vT1)
        p('v_lshl_add_u32 v%d, v%d, 4, v%d' % (vEo, vT1, vEo))
        p('s_lshl_b32 s3, s%d, 5' % sW)
        p('v_add_u32 v%d, s3, v%d' % (vEo, vEo))
    else:
        p('v_and_b32 v%d, 15, v0' % vT0)
        p('v_mul_u32_u24 v%d, %d, v%d' % (vEw, QS, vT0))
        p('v_lshrrev_b32 v%d, 4, v0' % vT1)
        p('v_lshl_add_u32 v%d, v%d, 4, v%d' % (vEw, vT1, vEw))
        p('v_add_u32 v%d, s%d, v%d' % (vEw, sTmp, vEw))
        p('s_lshl_b32 s3, s%d, 2' % sW)
        p('v_add_u32 v%d, s3, v%d' % (vT1, vT1))
        p('v_mul_u32_u24 v%d, %d, v%d' % (vEr, QS, vT1))
        p('v_lshl_add_u32 v%d, v%d, 2, v%d' % (vEr, vT0, vEr))
        p('v_add_u32 v%d, %d, v%d' % (vEr + 1, HS, vEr))
        p('v_add_u32 v%d, %d, v%d' % (vEr + 2, WS, vEr))
        p('v_add_u32 v%d, %d, v%d' % (vEr + 3, WS + HS, vEr))
        p('v_lshlrev_b32 v%d, 4, v%d' % (vEl, vT1))
        p('v_add_u32 v%d, %d, v%d' % (vEl, ML, vEl))
        p('v_lshlrev_b32 v%d, 8, v%d' % (vEo, vT1))
        p('v_lshl_add_u32 v%d, v%d, 4, v%d' % (vEo, vT0, vEo))
        p('v_and_b32 v%d, 7, v0' % vT0)
        p('s_lshl_b32 s3, s%d, 3' % sW)
        p('s_add_u32 s3, s3, %d' % ML)
        p('v_lshl_add_u32 v%d, v%d, 4, s3' % (vEm, vT0))
    if stamp == 2:
        p('s_waitcnt vmcnt(%d)' % (N - 1))
        mark(1)
        p('s_waitcnt lgkmcnt(0)')

    if qpos:
        p('s_waitcnt vmcnt(%d)' % (n0 - qpos))
    if n0 != N:
        p('s_branch L_K%d' % n0)

    def ab(i):
        d, t = vD + 8 * (i & 1), vAB + 2 * (i & 1)
        p('v_add_f32 v%d, v%d, v%d' % (t, d + 0, d + 6))
        p('v_add_f32 v%d, v%d, v%d' % (t + 1, d + 1, d + 7))

    def dpp(i):
        t = vAB + 2 * (i & 1)
        if i < 8:
            p('v_add_f32_dpp v%d, v%d, v%d row_ror:8 row_mask:0xf bank_mask:0x3' % (vS + i, t + 1, t))
        else:
            p('v_add_f32_dpp v%d, v%d, v%d row_ror:8 row_mask:0xf bank_mask:0xc' % (vS + i - 8, t, t + 1))

    def cross(ph):
        p('s_cmp_eq_u32 s%d, 1' % sCnt)
        if ph == 'K':
            p('s_cselect_b32 s%d, s%d, s%d' % (sX, sVb, sX))
            p('s_cselect_b32 s%d, s%d, s%d' % (sX + 1, sVb + 1, sX + 1))
            p('s_cselect_b64 vcc, -1, 0')
            p('v_cndmask_b32 v%d, v%d, v%d, vcc' % (vLn, vLn, vLv))
        else:
            p('s_cselect_b32 s%d, 0, s%d' % (sX + 2, sX + 2))
        p('v_xor_b32 v%d, s%d, v%d' % (vBase, sNx, vLn))

    def nextoff(sreg):
        p('s_mov_b32 s%d, s%d' % (sNx, sFix))
        for k, m in enumerate(mT):
            p('s_bitcmp1_b32 s%d, %d' % (sreg, k))
            p('s_cselect_b32 s3, 0x%x, 0' % m)
            p('s_xor_b32 s%d, s%d, s3' % (sNx, sNx))

    def ahead():
        if bal and not rt:
            p('s_add_u32 s%d, s%d, 1' % (sTmp, sBi))
            nextoff(sTmp)

    def head(ph, n, i):
        f = fk if ph == 'K' else fv
        if i == 0:
            addr(n)
            p('s_waitcnt vmcnt(%d)' % (n - 1))
            load(n)
            p.label('L_%s%d_a' % (ph, n))
            if f:
                issue(n + 1)
            p('s_add_u32 s%d, s%d, 1' % (sBi, sBi))
            if rt:
                p('s_xor_b32 s%d, s%d, s80' % (sNx, sFix))
                p('s_lshl_b32 s3, s%d, 2' % sBi)
                p('s_add_u32 s3, s3, 0x1104')
                p('s_load_dword s80, s[46:47], s3')
            elif not bal:
                nextoff(sBi)
            return
        if f and i == f:
            p('s_waitcnt vmcnt(%d)' % n)
            return
        wide = 1 if i < f else 0
        j = i + n + wide
        if j == 16:
            cross(ph)
        addr(j)
        p('s_waitcnt vmcnt(%d)' % (n - 1 + wide))
        load(j)

    def decide(n):
        p('s_sub_u32 s%d, s%d, 1' % (sCnt, sCnt))
        if dyn:
            p('s_cmp_lt_u32 s%d, s%d' % (sBi, sTill))
            p('s_cselect_b32 s%d, s%d, %d' % (sGo, sMod, N))
            p('s_xor_b32 s%d, s%d, %d' % (sGo, sGo, n))
            p('s_cmp_eq_u32 s%d, 0' % sCnt)
            p('s_cselect_b32 s%d, 1, s%d' % (sGo, sGo))
            p('s_cmp_eq_u32 s%d, s%d' % (sBi, sEvt))
            p('s_cselect_b32 s%d, 1, s%d' % (sGo, sGo))

    def tail(ph, n, exit_label):
        if stamp == 3:
            p('s_memrealtime s[42:43]')
            p('s_waitcnt lgkmcnt(0)')
            p('s_sub_u32 s3, s%d, 1' % sBi)
            p('s_mov_b32 m0, s3')
            p('s_lshl_b32 s42, s42, 4')
            p('s_or_b32 s42, s42, %d' % n)
            p('v_writelane_b32 v190, s42, m0')
        if not dyn:
            p('s_cmp_lg_u32 s%d, 0' % sCnt)
            p('s_cbranch_scc1 L_%s%d' % (ph, n))
            p('s_branch %s' % exit_label)
            return
        p('s_cmp_eq_u32 s%d, 0' % sGo)
        p('s_cbranch_scc1 L_%s%d' % (ph, n))
        p('s_cmp_eq_u32 s%d, 0' % sCnt)
        if ph == 'V':
            p('s_cbranch_scc1 %s' % exit_label)
        p('s_cmp_lg_u32 s%d, s%d' % (sBi, sEvt))
        p('s_cbranch_scc1 L_%s%d_c' % (ph, n))
        p('s_call_b64 s[%d:%d], L_ctl' % (sRet, sRet + 1))
        p.label('L_%s%d_c' % (ph, n))
        if ph == 'K':
            p('s_cmp_eq_u32 s%d, 0' % sCnt)
            p('s_cbranch_scc1 %s' % exit_label)
        p('s_cmp_lt_u32 s%d, s%d' % (sBi, sTill))
        p('s_cselect_b32 s%d, s%d, %d' % (sTgt, sMod, N))
        if n < nhi:
            p('s_cmp_gt_u32 s%d, %d' % (sTgt, n))
            p('s_cbranch_scc1 L_%s%d_up' % (ph, n))
        if n > nlo:
            p('s_cmp_ge_u32 s%d, %d' % (sTgt, n))
            p('s_cbranch_scc1 L_%s%d' % (ph, n))
            p('s_waitcnt vmcnt(%d)' % (n - 1))
            p('s_branch L_%s%d_a' % (ph, n - 1))
        else:
            p('s_branch L_%s%d' % (ph, n))
        if n < nhi:
            p.label('L_%s%d_up' % (ph, n))
            issue(n)
            p('s_branch L_%s%d' % (ph, n + 1))

    def kbody(n):
        p('.p2align %d' % al)
        for _ in range(pad):
            p('s_nop 0')
        p.label('L_K%d' % n)
        p('; K tile, %d loads in flight' % n)
        for i in range(16):
            head('K', n, i)
            d = vD + 8 * (i & 1)
            p('v_mfma_f32_16x16x32_bf16 %s, %s, %s, 0' % (r4(d), r4(vR + 4 * i), r4(vQ)))
            p('v_mfma_f32_16x16x32_bf16 %s, %s, %s, 0' % (r4(d + 4), r4(vR + 4 * i), r4(vQ + 4)))
            if i >= 2:
                dpp(i - 2)
            if i >= 1:
                ab(i - 1)
            if i == 11:
                ahead()
            if i == 12:
                decide(n)
            if i == 14 and rt:
                p('s_waitcnt lgkmcnt(0)')
        dpp(14)
        ab(15)
        p('v_max3_f32 v%d, v%d, v%d, v%d' % (vM, vM, vS, vS + 1))
        p('v_max3_f32 v%d, v%d, v%d, v%d' % (vM, vM, vS + 2, vS + 3))
        dpp(15)
        p('ds_write_b128 v%d, %s' % (vSa, r4(vS)))
        p('v_max3_f32 v%d, v%d, v%d, v%d' % (vM, vM, vS + 4, vS + 5))
        p('v_max3_f32 v%d, v%d, v%d, v%d' % (vM, vM, vS + 6, vS + 7))
        p('ds_write_b128 v%d, %s offset:1024' % (vSa, r4(vS + 4)))
        p('v_add_u32 v%d, 2048, v%d' % (vSa, vSa))
        tail('K', n, 'L_T%d' % n)

    lw = 0 if rt else 1 + lw2

    def trans(n):
        p.label('L_T%d' % n)
        p('v_subrev_u32 v%d, %d, v%d' % (vSa, IT * 2048, vSa))
        mark(2)
        p('ds_read_b128 %s, v%d' % (r4(vS), vSa))
        p('ds_read_b128 %s, v%d offset:1024' % (r4(vS + 4), vSa))
        p('ds_read_b32 v%d, v%d' % (vDum, vSa))
        if lw2:
            p('ds_read_b32 v%d, v%d' % (vDum, vSa))
        p('v_max_f32_dpp v%d, v%d, v%d row_ror:8 row_mask:0xf bank_mask:0xf' % (vM, vM, vM))
        p('s_mov_b32 s%d, %d' % (sCnt, IT))
        p('v_mov_b32 v%d, v%d' % (vT1, vM))
        p('v_permlane32_swap_b32 v%d, v%d' % (vM, vT1))
        p('v_max_f32 v%d, v%d, v%d' % (vM, vM, vT1))
        p('v_mov_b32 v%d, v%d' % (vT1, vM))
        p('v_permlane16_swap_b32 v%d, v%d' % (vM, vT1))
        p('v_max_f32 v%d, v%d, v%d' % (vM, vM, vT1))
        p('s_waitcnt lgkmcnt(%d)' % (0 if stamp > 1 else lw))
        if bal:
            for x in scale():
                p(x)

    def scale():
        return (['v_sub_f32 v%d, v%d, v%d' % (vS + e, vS + e, vM) for e in range(8)] +
                ['v_mul_f32 v%d, s%d, v%d' % (vS + e, sC, vS + e) for e in range(8)])

    def vbody(n):
        extra = {i: [] for i in range(16)}
        if bal:
            extra[0] += ['v_exp_f32 v%d, v%d' % (vS + e, vS + e) for e in range(5)]
            extra[2] += ['v_exp_f32 v%d, v%d' % (vS + e, vS + e) for e in range(5, 8)]
        else:
            extra[0] += scale()
            extra[2] += ['v_exp_f32 v%d, v%d' % (vS + e, vS + e) for e in range(8)]
        extra[2] += ['v_add_f32 v%d, v%d, v%d' % (vT0, vS, vS + 1), 'v_add_f32 v%d, v%d, v%d' % (vT1, vS + 2, vS + 3)]
        if epi == 2:
            extra[4] += ['v_cvt_pk_bf16_f32 v%d, v%d, v%d' % (vQ + w, vS + 2 * w, vS + 2 * w + 1) for w in range(4)]
            extra[4] += ['v_cvt_pk_bf16_f32 v%d, v%d, v%d' % (vP + w, vS + 2 * w, vS + 2 * w + 1) for w in range(4)]
        else:
            extra[4] += ['v_cvt_pk_bf16_f32 v%d, v%d, v%d' % (vP + w, vS + 2 * w, vS + 2 * w + 1) for w in range(4)]
        extra[4] += ['v_add_f32 v%d, v%d, v%d' % (vT0, vT0, vS + 4), 'v_add_f32 v%d, v%d, v%d' % (vT1, vT1, vS + 5),
                     'v_add_f32 v%d, v%d, v%d' % (vT0, vT0, vS + 6), 'v_add_f32 v%d, v%d, v%d' % (vT1, vT1, vS + 7),
                     'v_add_f32 v%d, v%d, v%d' % (vL, vL, vT0), 'v_add_f32 v%d, v%d, v%d' % (vL, vL, vT1)]
        extra[6] += ['v_add_u32 v%d, 2048, v%d' % (vSa, vSa),
                     'ds_read_b128 %s, v%d' % (r4(vS), vSa),
                     'ds_read_b128 %s, v%d offset:1024' % (r4(vS + 4), vSa),
                     'ds_read_b32 v%d, v%d' % (vDum, vSa)] + ['ds_read_b32 v%d, v%d' % (vDum, vSa)] * lw2
        if epi == 2:
            extra[6] += ['v_mov_b32_dpp v%d, v%d row_ror:8 row_mask:0xf bank_mask:0xc' % (vQ + w, vQ + w) for w in range(4)]
            extra[10] += ['v_mov_b32_dpp v%d, v%d row_ror:8 row_mask:0xf bank_mask:0x3' % (vP + w, vP + w) for w in range(4)]
        else:
            extra[6] += ['v_and_b32 v%d, v%d, v%d' % (vQ + w, vMA, vP + w) for w in range(4)]
            extra[10] += ['v_and_b32 v%d, v%d, v%d' % (vQ + 4 + w, vMB, vP + w) for w in range(4)]
        extra[12] += ['s_cmp_lg_u32 s%d, 1' % sCnt, 's_cbranch_scc1 L_V%d_l' % n,
                      's_call_b64 s[%d:%d], L_sum' % (sRet, sRet + 1), 'L_V%d_l:' % n]
        extra[14] += ['s_waitcnt lgkmcnt(%d)' % lw] + (scale() if bal else [])

        def mf(pb, ms):
            return ['v_mfma_f32_16x16x32_bf16 %s, %s, %s, %s' % (r4(vO + 4 * m), r4(vVt + 4 * m), r4(pb), r4(vO + 4 * m))
                    for m in ms]
        extra[7] += mf(vQ, range(0, 4))
        extra[8] += mf(vQ, range(4, 8))
        extra[15] += mf(vP if epi == 2 else vQ + 4, range(0, 8))
        p('.p2align %d' % al)
        for _ in range(pad):
            p('s_nop 0')
        p.label('L_V%d' % n)
        p('; V tile, %d loads in flight' % n)
        for i in range(16):
            head('V', n, i)
            if i & 1:
                w = (i & 7) >> 1
                a = vR + 4 * (i - 1)
                for u in range(4):
                    p('v_perm_b32 v%d, v%d, v%d, s%d' % (vVt + 8 * u + w, a + 4 + u, a + u, sSelLo))
                    p('v_perm_b32 v%d, v%d, v%d, s%d' % (vVt + 8 * u + 4 + w, a + 4 + u, a + u, sSelHi))
            for x in extra[i]:
                p(x)
            if i == 10:
                ahead()
            if i == 12:
                decide(n)
        tail('V', n, 'L_epi')

    assert nhi + (1 if fk or fv else 0) <= 14 and nlo >= 7
    order = [N] + [n for n in range(nlo, nhi + 1) if n != N]
    for n in order:
        kbody(n)
    for n in order[::-1]:
        trans(n)
        vbody(n)

    p.label('L_epi')
    mark(3)
    if epi == 2:
        vSn, vKp, vRc, vA = vVt, vVt + 8, vVt + 16, vVt + 24
        p('; wave w keeps rows r = 2w + h of every 4-row group and hands the other pair to its partner')
        p('s_cmp_lg_u32 s%d, 0' % sW)
        p('s_cbranch_scc1 L_epi1')
        for w in range(2):
            if w:
                p.label('L_epi1')
            o, k = 2 * (1 - w), 2 * w
            for hb in range(2):
                for m in range(4 * hb, 4 * hb + 4):
                    p('v_cndmask_b32 v%d, v%d, v%d, s[%d:%d]' % (vSn + m, vO + 4 * m + o, vO + 4 * m + o + 1, sH, sH + 1))
                p('ds_write_b128 v%d, %s offset:%d' % (vEw, r4(vSn + 4 * hb), 1024 * hb))
            for m in range(8):
                p('v_cndmask_b32 v%d, v%d, v%d, s[%d:%d]' % (vKp + m, vO + 4 * m + k, vO + 4 * m + k + 1, sH, sH + 1))
            if not w:
                p('s_branch L_epi2')
        p.label('L_epi2')
        p('s_waitcnt lgkmcnt(0)')
        p('s_barrier')
        mark(4)
        p('ds_read_b64 v[%d:%d], v%d' % (vA, vA + 1, vEl))
        p('ds_read_b128 %s, v%d' % (r4(vRc), vEr))
        p('ds_read_b128 %s, v%d offset:1024' % (r4(vRc + 4), vEr))
        p('s_waitcnt lgkmcnt(%d)' % (0 if stamp == 2 else 2))
        p('v_max_f32 v%d, v%d, v%d' % (vT1, vA, vAB))
        p('v_sub_f32 v%d, v%d, v%d' % (vA, vA, vT1))
        p('v_sub_f32 v%d, v%d, v%d' % (vAB, vAB, vT1))
        p('v_mul_f32 v%d, s%d, v%d' % (vA, sC, vA))
        p('v_mul_f32 v%d, s%d, v%d' % (vAB, sC, vAB))
        p('v_exp_f32 v%d, v%d' % (vA, vA))
        p('v_exp_f32 v%d, v%d' % (vAB, vAB))
        p('v_mul_f32 v%d, v%d, v%d' % (vL, vA, vA + 1))
        p('v_fmac_f32 v%d, v%d, v%d' % (vL, vAB, vAB + 1))
        p('v_rcp_f32 v%d, v%d' % (vL, vL))
        p('v_mul_f32 v%d, v%d, v%d' % (vAB, vAB, vL))
        p('v_mul_f32 v%d, v%d, v%d' % (vA, vA, vL))
        for m in range(8):
            p('v_mul_f32 v%d, v%d, v%d' % (vKp + m, vAB, vKp + m))
        p('s_waitcnt lgkmcnt(0)')
        for m in range(8):
            p('v_fmac_f32 v%d, v%d, v%d' % (vKp + m, vA, vRc + m))
        for k in range(4):
            p('v_cvt_pk_bf16_f32 v%d, v%d, v%d' % (vS + k, vKp + 2 * k, vKp + 2 * k + 1))
        p('buffer_store_dwordx4 %s, v%d, s[%d:%d], 0 offen%s' % (r4(vS), vEo, sO, sO + 3, ofl))
    else:
        for m in range(8):
            p('ds_write_b128 v%d, %s offset:%d' % (vEw, r4(vO + 4 * m), m * MS))
        p('s_waitcnt lgkmcnt(0)')
        p('s_barrier')
        mark(4)
        vA, vRd = vVt, vO
        p('ds_read_b128 %s, v%d' % (r4(vA), vEl))
        for pp in range(4):
            for k in range(4):
                dst = vRd + pp * 8 + 2 * k
                p('ds_read2_b32 v[%d:%d], v%d offset0:%d offset1:%d' %
                  (dst, dst + 1, vEr + pp, 2 * k * MS // 4, (2 * k + 1) * MS // 4))
        p('s_waitcnt lgkmcnt(%d)' % (0 if stamp > 1 else 15))
        p('v_max_f32 v%d, v%d, v%d' % (vT1, vA, vA + 2))
        p('v_sub_f32 v%d, v%d, v%d' % (vA, vA, vT1))
        p('v_sub_f32 v%d, v%d, v%d' % (vA + 2, vA + 2, vT1))
        p('v_mul_f32 v%d, s%d, v%d' % (vA, sC, vA))
        p('v_mul_f32 v%d, s%d, v%d' % (vA + 2, sC, vA + 2))
        p('v_exp_f32 v%d, v%d' % (vA, vA))
        p('v_exp_f32 v%d, v%d' % (vA + 2, vA + 2))
        p('v_mul_f32 v%d, v%d, v%d' % (vL, vA, vA + 1))
        p('v_fmac_f32 v%d, v%d, v%d' % (vL, vA + 2, vA + 3))
        p('v_rcp_f32 v%d, v%d' % (vL, vL))
        p('s_waitcnt lgkmcnt(%d)' % (0 if stamp > 1 else 8))
        for k in range(8):
            p('v_add_f32 v%d, v%d, v%d' % (vRd + k, vRd + k, vRd + 8 + k))
        p('v_mul_f32 v%d, v%d, v%d' % (vA, vA, vL))
        p('v_mul_f32 v%d, v%d, v%d' % (vA + 2, vA + 2, vL))
        for k in range(8):
            p('v_mul_f32 v%d, v%d, v%d' % (vS + k, vA, vRd + k))
        p('s_waitcnt lgkmcnt(0)')
        for k in range(8):
            p('v_add_f32 v%d, v%d, v%d' % (vRd + 16 + k, vRd + 16 + k, vRd + 24 + k))
        for k in range(8):
            p('v_fmac_f32 v%d, v%d, v%d' % (vS + k, vA + 2, vRd + 16 + k))
        for k in range(4):
            p('v_cvt_pk_bf16_f32 v%d, v%d, v%d' % (vP + k, vS + 2 * k, vS + 2 * k + 1))
        p('buffer_store_dwordx4 %s, v%d, s[%d:%d], 0 offen%s' % (r4(vP), vEo, sO, sO + 3, ofl))
    if diag_hold:
        p.label('L_hold')
        p('s_sleep 1')
        p('s_memrealtime s[42:43]')
        p('s_waitcnt lgkmcnt(0)')
        p('s_sub_u32 s42, s42, s40')
        p('s_cmp_lt_u32 s42, %d' % (diag_hold * 100))
        p('s_cbranch_scc1 L_hold')
    if stamp:
        p('s_memrealtime s[42:43]')
        p('s_waitcnt lgkmcnt(0)')
        p('s_getreg_b32 s46, hwreg(HW_REG_XCC_ID)')
        p('s_lshl_b32 s%d, s2, 1' % sTmp)
        p('s_add_u32 s%d, s%d, s%d' % (sTmp, sTmp, sW))
        p('s_lshl_b32 s%d, s%d, 5' % (sTmp, sTmp))
        p('v_mov_b32 v%d, s%d' % (vT0, sTmp))
        for i, s in enumerate((40, 41, 42, 43)):
            p('v_mov_b32 v%d, s%d' % (vVt + i, s))
        p('v_mov_b32 v%d, s46' % (vVt + 4))
        p('v_mov_b32 v%d, %d' % (vVt + 5, W))
        if stamp == 3:
            p('s_lshl_b32 s3, s%d, 3' % sTmp)
            p('s_add_u32 s3, s3, 0x100000')
            p('v_lshl_add_u32 v%d, v0, 2, s3' % vT1)
            p('global_store_dword v%d, v190, s[%d:%d]' % (vT1, sWs, sWs + 1))
        p('s_mov_b64 exec, 1')
        p('global_store_dwordx4 v%d, %s, s[%d:%d]' % (vT0, r4(vVt), sWs, sWs + 1))
        p('global_store_dwordx2 v%d, v[%d:%d], s[%d:%d] offset:16' % (vT0, vVt + 4, vVt + 5, sWs, sWs + 1))
        if stamp == 2:
            p('v_lshlrev_b32 v%d, 2, v%d' % (vT0, vT0))
            p('v_add_u32 v%d, 0x100000, v%d' % (vT0, vT0))
            for k in range(5):
                p('v_mov_b32 v%d, s%d' % (vD + k, 90 + 2 * k))
            p('global_store_dwordx4 v%d, %s, s[%d:%d]' % (vT0, r4(vD), sWs, sWs + 1))
            p('global_store_dword v%d, v%d, s[%d:%d] offset:16' % (vT0, vD + 4, sWs, sWs + 1))
    p.label('L_end')
    p('s_endpgm')

    p.label('L_sum')
    p('s_nop 1')
    p('v_add_f32_dpp v%d, v%d, v%d row_ror:8 row_mask:0xf bank_mask:0xf' % (vL, vL, vL))
    p('v_mov_b32 v%d, v%d' % (vAB, vM))
    p('v_mov_b32 v%d, v%d' % (vT1, vL))
    p('v_permlane32_swap_b32 v%d, v%d' % (vL, vT1))
    p('v_add_f32 v%d, v%d, v%d' % (vL, vL, vT1))
    p('v_mov_b32 v%d, v%d' % (vT1, vL))
    p('v_permlane16_swap_b32 v%d, v%d' % (vL, vT1))
    p('v_add_f32 v%d, v%d, v%d' % (vAB + 1, vL, vT1))
    p('ds_write_b64 v%d, v[%d:%d]' % (vEm, vAB, vAB + 1))
    p('s_setpc_b64 s[%d:%d]' % (sRet, sRet + 1))

    if cps:
        p.label('L_ctl')
        p('s_add_u32 s%d, s%d, 1' % (sSt, sSt))
        if twarm > 0:
            p('s_cmp_lg_u32 s%d, 0' % sSt)
            p('s_cbranch_scc1 L_ctl_w')
            touch()
            p('s_mov_b32 s%d, %d' % (sEvt, cps[0][0]))
            p('s_setpc_b64 s[%d:%d]' % (sRet, sRet + 1))
            p.label('L_ctl_w')
        for ci, (kb, sc, cdn, cR) in enumerate(cps):
            end = (cps[ci + 1][0] if ci + 1 < len(cps) else TB - 1)
            p('s_cmp_lg_u32 s%d, %d' % (sSt, 2 * ci + 1))
            p('s_cbranch_scc1 L_ctl_a%d' % ci)
            p('s_mov_b32 s%d, 1' % sRk)
            if w0only:
                p('s_cmp_lg_u32 s%d, 0' % sW)
                p('s_cbranch_scc1 L_ctl_s%d' % ci)
            if not noat:
                p('s_atomic_add s%d, s[%d:%d], s%d glc' % (sRk, sWs, sWs + 1, sCw + 2 * ci))
            if w0only:
                p.label('L_ctl_s%d' % ci)
            p('s_mov_b32 s%d, %d' % (sEvt, kb + lag))
            p('s_setpc_b64 s[%d:%d]' % (sRet, sRet + 1))
            p.label('L_ctl_a%d' % ci)
            p('s_cmp_lg_u32 s%d, %d' % (sSt, 2 * ci + 2))
            p('s_cbranch_scc1 L_ctl_b%d' % ci)
            p('s_waitcnt lgkmcnt(0)')
            p('s_sub_u32 s%d, s%d, s%d' % (sRk, sRk, sCw + 2 * ci + 1))
            p('s_mov_b32 s%d, %d' % (sEvt, cps[ci + 1][0] if ci + 1 < len(cps) else 255))
            p('s_and_b32 s%d, s%d, 0xff' % (sRk, sRk))
            p('s_cmp_ge_u32 s%d, %d' % (sRk, G // 2))
            p('s_cselect_b32 s%d, %d, %d' % (sX3, 4 * sc, cdn * sc))
            p('s_mov_b32 s%d, %d' % (sRr, cR))
            p('s_mov_b32 s%d, %d' % (sTill, end))
            p('s_branch L_ctl_set')
            p.label('L_ctl_b%d' % ci)
        p('s_setpc_b64 s[%d:%d]' % (sRet, sRet + 1))
        p.label('L_ctl_set')
        zs = (0.165, 0.51, 0.93, 1.78) if G == 8 else (0.09, 0.26, 0.44, 0.64, 0.85, 1.11, 1.45, 2.05)
        wt = sum(int(round(16 * z)) << (8 * i) for i, z in enumerate(zs))
        p('s_min_u32 s%d, s%d, %d' % (sRk, sRk, G - 1))
        p('s_sub_i32 s%d, %d, s%d' % (sX1, G // 2 - 1, sRk))
        p('s_sub_i32 s%d, s%d, %d' % (sU, sRk, G // 2))
        p('s_max_i32 s%d, s%d, s%d' % (sU, sU, sX1))
        p('s_lshl_b32 s%d, s%d, 3' % (sU, sU))
        if G == 8:
            p('s_mov_b32 s%d, 0x%08x' % (sTmp, wt))
            p('s_lshr_b32 s%d, s%d, s%d' % (sU, sTmp, sU))
        else:
            p('s_mov_b32 s62, 0x%08x' % (wt & 0xffffffff))
            p('s_mov_b32 s63, 0x%08x' % (wt >> 32))
            p('s_lshr_b64 s[62:63], s[62:63], s%d' % sU)
            p('s_mov_b32 s%d, s62' % sU)
        p('s_and_b32 s%d, s%d, 0xff' % (sU, sU))
        p('s_mul_i32 s%d, s%d, s%d' % (sU, sU, sX3))
        p('s_cmp_ge_u32 s%d, %d' % (sRk, G // 2))
        p('s_cselect_b32 s%d, %d, %d' % (sX1, act, -act))
        p('s_add_u32 s%d, s%d, 32' % (sU, sU))
        p('s_lshr_b32 s%d, s%d, 6' % (sU, sU))
        if amp > 1:
            p('s_cmp_gt_u32 s%d, s%d' % (sU, sRr))
            p('s_cselect_b32 s%d, 1, 0' % sTmp)
            p('s_lshr_b32 s%d, s%d, s%d' % (sU, sU, sTmp))
            p('s_lshl_b32 s%d, s%d, s%d' % (sX1, sX1, sTmp))
        p('s_add_i32 s%d, s%d, %d' % (sMod, sX1, N))
        p('s_add_u32 s%d, s%d, s%d' % (sU, sU, sBi))
        p('s_min_u32 s%d, s%d, s%d' % (sTill, sTill, sU))
        p('s_setpc_b64 s[%d:%d]' % (sRet, sRet + 1))
    p.label('L_last')
    p.fix_hazards()
    mv, ma, ms = p.max_regs()
    nvg = mv + 1
    acc = min(256, (nvg + 3) // 4 * 4)
    txt = HEADER + '; @launch grid=(256,1,1) block=(128,1,1) lds=%d\n' % lds
    txt += '.amdgcn_target "amdgcn-amd-amdhsa--gfx950"\n.text\n.globl %s\n.p2align 8\n.type %s,@function\n%s:\n' % (
        KNAME, KNAME, KNAME)
    txt += p.text()
    txt += """.section .rodata,"a"
.p2align 6
.amdhsa_kernel %s
  .amdhsa_next_free_vgpr %d
  .amdhsa_next_free_sgpr %d
  .amdhsa_accum_offset %d
  .amdhsa_group_segment_fixed_size 0
  .amdhsa_kernarg_size 48
  .amdhsa_user_sgpr_count 2
  .amdhsa_user_sgpr_kernarg_segment_ptr 1
  .amdhsa_system_sgpr_workgroup_id_x 1
.end_amdhsa_kernel
""" % (KNAME, nvg, ms + 1, acc)
    return txt


if __name__ == '__main__':
    kw = {}
    for a in sys.argv[2:]:
        k, v = a.split('=')
        try:
            v = int(v, 0)
        except ValueError:
            pass
        kw[k] = v
    open(sys.argv[1], 'w').write(gen(**kw))
```

```python
import math
import sys
sys.path.insert(0, 'work')
from asmlib import Prog
from gen_attn import KNAME, f32bits

PATS = {
    'B': '100 200 400 800 1000 2000 4000 8000 10000 20000 40000 80000 0 0 0 0 0 0 0 0',
    'C2': '100 200 800 8000 1000 2000 4000 10000 20000 40000 80000 400 0 0 0 0 0 0 0 0',
    'S1': '2000 100 400 8100 1000 200 800 10200 80000 20000 40800 4000 0 0 0 0 0 0 0 0',
    'S2': '2000 4000 8100 200 1000 100 800 10000 80000 20000 400 40800 0 0 0 0 0 0 0 0',
    'F': '8800 a00 1ba00 8b00 72b00 12000 1e000 11300 c9200 4b000 9c900 43f00 70000 1c800 be000 6800 9d800 48000 b000 79800',
    'F3': 'a00 1b000 8b00 12000 72b00 1e000 8800 11300 c9200 4b000 94100 43f00 70000 18800 ac000 6800 95800 48000 b000 69000',
    'S3': '100 200 2000 8000 1000 400 800 10200 80000 20400 40000 4000 0 0 0 0 0 0 0 0',
    'S4': '4000 2000 1000 8100 100 800 200 10200 80000 40800 20400 400 0 0 0 0 0 0 0 0',
    'S5': 'a100 400 8100 11200 1600 9b00 a8100 10200 20000 100 43d00 84100 0 0 0 0 0 0 0 0',
    'F30': 'a00 1b000 8b00 12000 72b00 1e000 8800 11300 c9200 4b000 94100 43f00 0 0 0 0 0 0 0 0',
    'F2': 'a00 1b000 8b00 72b00 12000 1e000 8800 11300 c9200 4b000 94100 43f00 70000 18800 ac000 6800 95800 48000 b000 69000',
}

HEADER = """; GQA decode attention (B=16, Hq=32, Hkv=16, Sq=4, Sk=4096, D=128), bf16 in / bf16 out.
;
;   phase V : P = exp2((S - max) * log2e / sqrt(D)), V transposed in registers with v_perm,
; with seven peers and deepens (late) or shortens (early) its prefetch for a few tiles, so that all
"""


def dep(x, ms):
    r = 0
    for k, m in enumerate(ms):
        if x >> k & 1:
            r ^= m
    return r


def gen(N=10, amp=2, pol='nt', pat='F3', chk='24:8:2:6,35:8:2:12,50:6:2:5,57:6:2:5', R=12, dn=2, lag=1, act=1, wsoff=0,
        stamp=0, diag_hold=0, opol='', alt=0, noat=0, nobase=0, lw2=0, w0only=0, cstride=256, fk=4, fv=6, al=3, pad=0, cwarm=1, epi=2, m0early=0, qpos=2, G=8, bal=1, twarm=0, tw='vo', n0=0, sumfirst=1, scr='', hmap=''):
    W, IT = 2, 32
    TB = 2 * IT
    cps = [tuple(int(v) for v in e.split(':')) for e in chk.split(',') if e] if chk else []
    cps = [c + (dn, R)[len(c) - 2:] for c in cps]
    nlo = N - amp if cps else N
    nhi = N + amp if cps else N
    dyn = nhi > nlo
    rt = pat == 'rt'
    pm = [int(x, 16) for x in PATS.get('B' if rt else pat, pat.replace('_', ' ')).split()]
    mL, mW, mS = pm[0:2], pm[5:6], pm[12:20]
    hm = pm[20:28] if len(pm) >= 28 and pm[20:28] != [1 << k for k in range(8)] else []
    sHd = 81
    seq = pm[2:5] + pm[6:12]
    mJ, mT = seq[:4], seq[4:]
    p = Prog()
    vLn, vLv, vT0, vT1, vM, vL, vSa = 1, 2, 3, 4, 5, 6, 7
    vAB = 8
    vP = 12
    vQ = 16
    vS = 24
    vD = 32
    vVt = 48
    vO = 80
    vR = 112
    vMA, vMB, vBase, vAd = 176, 177, 178, 179
    vEw, vEm, vEr, vEl, vEo, vDum = 181, 182, 184, 183, 188, 189
    sX, sQ, sO, sVb = 8, 16, 20, 12
    sCnt, sW, sC, sSelLo, sSelHi, sTmp, sTgt = 26, 27, 28, 29, 30, 31, 32
    sH = 34
    sFix, sNx, sBi = 24, 25, 33
    sEvt, sTill, sMod, sRk, sX1, sX3, sU, sSt = 50, 51, 52, 53, 54, 55, 56, 57
    sRet, sWs, sGo, sRr = 58, 48, 60, 61
    sCw = 82
    fl = (' ' + pol.replace('+', ' ')) if pol else ''
    ofl = (' ' + opol.replace('+', ' ')) if opol else ''
    QS, MS = 656, 80
    HS = 8 * QS
    WS = 65536
    ML = 131072 + 2048
    XB = ML + 2048 if epi == 2 else 0
    XB = (XB + 4095) // 4096 * 4096
    lds = XB + 4096 if epi == 2 else ML + 128

    def r4(b):
        return 'v[%d:%d]' % (b, b + 3)

    def mark(k):
        if stamp == 2:
            p('s_memrealtime s[%d:%d]' % (90 + 2 * k, 91 + 2 * k))

    def addr(j):
        c = dep(j % 16, mJ)
        if rt:
            p('v_xor_b32 v%d, s%d, v%d' % (vAd + (j & 1), 64 + j % 16, vBase))
        elif c:
            p('v_xor_b32 v%d, 0x%x, v%d' % (vAd + (j & 1), c, vBase))

    def load(j):
        va = vAd + (j & 1) if (rt or dep(j % 16, mJ)) else vBase
        p('buffer_load_dwordx4 %s, v%d, s[%d:%d], 0 offen%s' % (r4(vR + 4 * (j % 16)), va, sX, sX + 3, fl))

    def issue(j):
        addr(j)
        load(j)

    def touch():
        p('; address-translation warm-up for pages first used later (values are never read)')
        if 'v' in tw:
            p('s_load_dword s62, s[%d:%d], 0' % (sVb, sVb + 1))
        if 'o' in tw:
            p('s_load_dword s63, s[%d:%d], 0' % (sO, sO + 1))

    p('s_cmp_ge_u32 s2, 256')
    p('s_cbranch_scc1 L_end')
    for e in (scr.split(',') if scr else []):
        bit, mask = e.split(':')
        p('s_bitcmp1_b32 s2, %s' % bit)
        p('s_cselect_b32 s3, 0x%s, 0' % mask)
        p('s_xor_b32 s2, s2, s3')
    p('s_load_dwordx4 s[4:7], s[0:1], 0')
    p('s_load_dwordx4 s[36:39], s[0:1], 16')
    if cps or stamp:
        p('s_load_dwordx2 s[%d:%d], s[0:1], 40' % (sWs, sWs + 1))
    if stamp or diag_hold:
        p('s_memrealtime s[40:41]')
    p('v_lshrrev_b32 v%d, 6, v0' % vT0)
    p('v_and_b32 v0, 63, v0')
    p('v_readfirstlane_b32 s%d, v%d' % (sW, vT0))
    p('v_lshrrev_b32 v%d, 4, v0' % vT0)
    p('v_lshlrev_b32 v%d, 6, v%d' % (vT0, vT0))
    p('v_and_b32 v%d, 3, v0' % vT1)
    p('v_lshl_add_u32 v%d, v%d, 4, v%d' % (vLn, vT1, vT0))
    for k in range(2):
        p('v_bfe_i32 v%d, v0, %d, 1' % (vT1, 2 + k))
        p('v_and_b32 v%d, 0x%x, v%d' % (vT1, mL[k], vT1))
        p('v_xor_b32 v%d, v%d, v%d' % (vLn, vLn, vT1))
    p('; Q lanes: (s, h = (lane>>3)&1, q = lane&7) read 16 B at q*256 + (4 s + h) * 16, and 32 B further')
    p('v_and_b32 v%d, 7, v0' % vT1)
    p('v_lshl_add_u32 v%d, v%d, 8, v%d' % (vT0, vT1, vT0))
    p('v_bfe_u32 v%d, v0, 3, 1' % vT1)
    p('v_lshl_add_u32 v%d, v%d, 4, v%d' % (vT0, vT1, vT0))
    p('v_cmp_ne_u32 s[%d:%d], 0, v%d' % (sH, sH + 1, vT1))
    p('s_mov_b32 s%d, 0' % sFix)
    if hm:
        p('; bits 20..27 accumulate the head index (a linear bijection of the workgroup id), lower bits the start row')
        mS = [m | (h << 20) for m, h in zip(mS, hm)]
    for src, ms in ((sW, mW), (2, mS)):
        for k, m in enumerate(ms):
            if m:
                p('s_bitcmp1_b32 s%d, %d' % (src, k))
                p('s_cselect_b32 s3, 0x%x, 0' % m)
                p('s_xor_b32 s%d, s%d, s3' % (sFix, sFix))
    if hm:
        p('s_mov_b32 s%d, s%d' % (sHd, sFix))
        p('s_and_b32 s%d, s%d, 0xfffff' % (sFix, sFix))
    p('v_xor_b32 v%d, s%d, v%d' % (vBase, sFix, vLn))
    if cwarm:
        p('; pull a 512 B slice of this kernel text into L2 (value unused)')
        p('s_getpc_b64 s[62:63]')
        p.label('L_pc')
        p('s_lshr_b32 s3, s2, 3')
        p('s_lshl_b32 s3, s3, 1')
        p('s_add_u32 s3, s3, s%d' % sW)
        p('s_lshl_b32 s3, s3, 9')
        p('v_lshl_add_u32 v%d, v0, 3, s3' % vEr)
        p('v_min_u32 v%d, L_last-L_pc-8, v%d' % (vEr, vEr))
        p('v_mov_b32 v%d, s63' % (vEr + 1))
        p('v_add_co_u32 v%d, vcc, s62, v%d' % (vEr, vEr))
        p('v_addc_co_u32 v%d, vcc, 0, v%d, vcc' % (vEr + 1, vEr + 1))
        p('global_load_dword v%d, v[%d:%d], off' % (vDum, vEr, vEr + 1))
    if hm:
        p('s_lshr_b32 s3, s%d, 20' % sHd)
        p('s_lshl_b32 s%d, s3, 20' % sTmp)
        p('s_lshl_b32 s3, s3, 11')
    else:
        p('s_lshl_b32 s%d, s2, 20' % sTmp)
        p('s_lshl_b32 s3, s2, 11')
    for s, n in ((sX, 0x100000), (sQ, 2048), (sO, 2048)):
        p('s_mov_b32 s%d, 0x%x' % (s + 2, n))
        p('s_mov_b32 s%d, 0x20000' % (s + 3))
    if m0early == 1:
        mark(0)
    p('s_waitcnt lgkmcnt(0)')
    if not m0early:
        mark(0)
    if rt:
        p('s_add_u32 s46, s%d, 0x200000' % sWs)
        p('s_addc_u32 s47, s%d, 0' % (sWs + 1))
        p('s_lshl_b32 s63, s2, 1')
        p('s_add_u32 s63, s63, s%d' % sW)
        p('s_lshl_b32 s63, s63, 2')
        p('s_load_dword s%d, s[46:47], s63' % sFix)
        p('s_load_dwordx16 s[64:79], s[46:47], 0x1000')
        p('s_load_dword s80, s[46:47], 0x1104')
        p('s_lshl_b32 s63, s2, 2')
        p('s_add_u32 s63, s63, 0x1c00')
        p('s_load_dword s81, s[46:47], s63')
        p('v_lshlrev_b32 v%d, 2, v0' % vT1)
        p('v_add_u32 v%d, 0x1800, v%d' % (vT1, vT1))
        p('global_load_dword v%d, v%d, s[46:47]' % (vLv, vT1))
        p('global_load_dword v%d, v%d, s[46:47] offset:256' % (vLn, vT1))
        p('s_waitcnt vmcnt(0) lgkmcnt(0)')
        p('s_memrealtime s[40:41]')
        p('v_xor_b32 v%d, s%d, v%d' % (vBase, sFix, vLn))
        p('s_and_b32 s81, s81, 255')
        p('s_lshl_b32 s%d, s81, 20' % sTmp)
        p('s_lshl_b32 s3, s81, 11')
    p('s_add_u32 s%d, s6, s%d' % (sX, sTmp))
    p('s_addc_u32 s%d, s7, 0' % (sX + 1))
    for j in range(qpos):
        issue(j)
    p('s_add_u32 s%d, s4, s3' % sQ)
    p('s_addc_u32 s%d, s5, 0' % (sQ + 1))
    p('buffer_load_dwordx4 %s, v%d, s[%d:%d], 0 offen' % (r4(vQ), vT0, sQ, sQ + 3))
    p('buffer_load_dwordx4 %s, v%d, s[%d:%d], 0 offen offset:32' % (r4(vQ + 4), vT0, sQ, sQ + 3))
    n0 = n0 or N
    for j in range(qpos, n0):
        issue(j)
    if m0early == 2:
        mark(0)
    p('s_add_u32 s%d, s36, s%d' % (sVb, sTmp))
    p('s_addc_u32 s%d, s37, 0' % (sVb + 1))
    p('s_add_u32 s%d, s38, s3' % sO)
    p('s_addc_u32 s%d, s39, 0' % (sO + 1))
    if twarm < 0:
        touch()
    if cps:
        p('; rank counters: one word per (checkpoint, wave, group of 8 workgroups); entry value = base')
        for ci in range(len(cps)):
            mul = [0, 1, 4, 3, 5, 2, 7, 9][ci]
            p('s_and_b32 s%d, s2, 7' % sTmp)
            p('s_mul_i32 s%d, s%d, %d' % (sTmp, sTmp, mul))
            p('s_lshr_b32 s3, s2, 3')
            p('s_xor_b32 s3, s3, s%d' % sTmp)
            p('s_and_b32 s3, s3, 31')
            if G == 8:
                p('s_lshl_b32 s%d, s%d, 5' % (sTmp, sW))
                p('s_or_b32 s3, s3, s%d' % sTmp)
            p('s_mul_i32 s3, s3, %d' % cstride)
            p('s_add_u32 s%d, s3, 0x%x' % (sCw + 2 * ci, wsoff + ci * 64 * cstride))
            if nobase:
                p('s_mov_b32 s%d, 0' % (sCw + 2 * ci + 1))
            else:
                p('s_load_dword s%d, s[%d:%d], s%d glc' % (sCw + 2 * ci + 1, sWs, sWs + 1, sCw + 2 * ci))
        p('s_mov_b32 s%d, %d' % (sEvt, twarm if twarm > 0 else cps[0][0]))
        p('s_mov_b32 s%d, %d' % (sSt, -1 if twarm > 0 else 0))
        p('s_mov_b32 s%d, 0' % sTill)
        p('s_mov_b32 s%d, %d' % (sMod, N))
    c = math.log2(math.e) / math.sqrt(128.0)
    p('s_mov_b32 s%d, 0x%08x' % (sC, f32bits(c)))
    p('s_mov_b32 s%d, 0x05040100' % sSelLo)
    p('s_mov_b32 s%d, 0x07060302' % sSelHi)
    p('s_mov_b32 s%d, 0' % sBi)
    if bal and not rt:
        p('s_xor_b32 s%d, s%d, 0x%x' % (sNx, sFix, mT[0]))
    p('s_mov_b32 s%d, %d' % (sCnt, IT))
    if not rt:
        p('; V lanes: (row = lane>>4, i = lane&15) read 16 B at row + 16 i')
        p('v_and_b32 v%d, 15, v0' % vLv)
        p('v_lshlrev_b32 v%d, 4, v%d' % (vLv, vLv))
        for k in range(2):
            p('v_bfe_i32 v%d, v0, %d, 1' % (vT1, 4 + k))
            p('v_and_b32 v%d, 0x%x, v%d' % (vT1, mL[k], vT1))
            p('v_xor_b32 v%d, v%d, v%d' % (vLv, vLv, vT1))
    p('s_lshl_b32 s%d, s%d, 16' % (sTmp, sW))
    p('v_lshl_add_u32 v%d, v0, 4, s%d' % (vSa, sTmp))
    p('v_mov_b32 v%d, 0xff800000' % vM)
    p('v_mov_b32 v%d, 0' % vL)
    if epi != 2:
        p('v_cndmask_b32 v%d, -1, 0, s[%d:%d]' % (vMA, sH, sH + 1))
        p('v_cndmask_b32 v%d, 0, -1, s[%d:%d]' % (vMB, sH, sH + 1))
    for i in range(32):
        p('v_mov_b32 v%d, 0' % (vO + i))
    if epi == 2:
        p('s_lshl_b32 s3, s%d, 11' % sW)
        p('s_add_u32 s3, s3, %d' % XB)
        p('v_lshl_add_u32 v%d, v0, 4, s3' % vEw)
        p('v_xor_b32 v%d, 0x800, v%d' % (vEr, vEw))
        p('v_and_b32 v%d, 7, v0' % vT0)
        p('s_lshl_b32 s3, s%d, 6' % sW)
        p('s_add_u32 s3, s3, %d' % ML)
        p('v_lshl_add_u32 v%d, v%d, 3, s3' % (vEm, vT0))
        p('v_xor_b32 v%d, 64, v%d' % (vEl, vEm))
        p('v_lshrrev_b32 v%d, 4, v0' % vT1)
        p('v_lshlrev_b32 v%d, 6, v%d' % (vT1, vT1))
        p('v_lshl_add_u32 v%d, v%d, 8, v%d' % (vEo, vT0, vT1))
        p('v_bfe_u32 v%d, v0, 3, 1' % vT1)
        p('v_lshl_add_u32 v%d, v%d, 4, v%d' % (vEo, vT1, vEo))
        p('s_lshl_b32 s3, s%d, 5' % sW)
        p('v_add_u32 v%d, s3, v%d' % (vEo, vEo))
    else:
        p('v_and_b32 v%d, 15, v0' % vT0)
        p('v_mul_u32_u24 v%d, %d, v%d' % (vEw, QS, vT0))
        p('v_lshrrev_b32 v%d, 4, v0' % vT1)
        p('v_lshl_add_u32 v%d, v%d, 4, v%d' % (vEw, vT1, vEw))
        p('v_add_u32 v%d, s%d, v%d' % (vEw, sTmp, vEw))
        p('s_lshl_b32 s3, s%d, 2' % sW)
        p('v_add_u32 v%d, s3, v%d' % (vT1, vT1))
        p('v_mul_u32_u24 v%d, %d, v%d' % (vEr, QS, vT1))
        p('v_lshl_add_u32 v%d, v%d, 2, v%d' % (vEr, vT0, vEr))
        p('v_add_u32 v%d, %d, v%d' % (vEr + 1, HS, vEr))
        p('v_add_u32 v%d, %d, v%d' % (vEr + 2, WS, vEr))
        p('v_add_u32 v%d, %d, v%d' % (vEr + 3, WS + HS, vEr))
        p('v_lshlrev_b32 v%d, 4, v%d' % (vEl, vT1))
        p('v_add_u32 v%d, %d, v%d' % (vEl, ML, vEl))
        p('v_lshlrev_b32 v%d, 8, v%d' % (vEo, vT1))
        p('v_lshl_add_u32 v%d, v%d, 4, v%d' % (vEo, vT0, vEo))
        p('v_and_b32 v%d, 7, v0' % vT0)
        p('s_lshl_b32 s3, s%d, 3' % sW)
        p('s_add_u32 s3, s3, %d' % ML)
        p('v_lshl_add_u32 v%d, v%d, 4, s3' % (vEm, vT0))
    if stamp == 2:
        p('s_waitcnt vmcnt(%d)' % (N - 1))
        mark(1)
        p('s_waitcnt lgkmcnt(0)')

    if qpos:
        p('s_waitcnt vmcnt(%d)' % (n0 - qpos))
    if n0 != N:
        p('s_branch L_K%d' % n0)

    def ab(i):
        d, t = vD + 8 * (i & 1), vAB + 2 * (i & 1)
        p('v_add_f32 v%d, v%d, v%d' % (t, d + 0, d + 6))
        p('v_add_f32 v%d, v%d, v%d' % (t + 1, d + 1, d + 7))

    def dpp(i):
        t = vAB + 2 * (i & 1)
        if i < 8:
            p('v_add_f32_dpp v%d, v%d, v%d row_ror:8 row_mask:0xf bank_mask:0x3' % (vS + i, t + 1, t))
        else:
            p('v_add_f32_dpp v%d, v%d, v%d row_ror:8 row_mask:0xf bank_mask:0xc' % (vS + i - 8, t, t + 1))

    def cross(ph):
        p('s_cmp_eq_u32 s%d, 1' % sCnt)
        if ph == 'K':
            p('s_cselect_b32 s%d, s%d, s%d' % (sX, sVb, sX))
            p('s_cselect_b32 s%d, s%d, s%d' % (sX + 1, sVb + 1, sX + 1))
            p('s_cselect_b64 vcc, -1, 0')
            p('v_cndmask_b32 v%d, v%d, v%d, vcc' % (vLn, vLn, vLv))
        else:
            p('s_cselect_b32 s%d, 0, s%d' % (sX + 2, sX + 2))
        p('v_xor_b32 v%d, s%d, v%d' % (vBase, sNx, vLn))

    def nextoff(sreg):
        p('s_mov_b32 s%d, s%d' % (sNx, sFix))
        for k, m in enumerate(mT):
            p('s_bitcmp1_b32 s%d, %d' % (sreg, k))
            p('s_cselect_b32 s3, 0x%x, 0' % m)
            p('s_xor_b32 s%d, s%d, s3' % (sNx, sNx))

    def ahead():
        if bal and not rt:
            p('s_add_u32 s%d, s%d, 1' % (sTmp, sBi))
            nextoff(sTmp)

    def head(ph, n, i):
        f = fk if ph == 'K' else fv
        if i == 0:
            addr(n)
            p('s_waitcnt vmcnt(%d)' % (n - 1))
            load(n)
            p.label('L_%s%d_a' % (ph, n))
            if f:
                issue(n + 1)
            p('s_add_u32 s%d, s%d, 1' % (sBi, sBi))
            if rt:
                p('s_xor_b32 s%d, s%d, s80' % (sNx, sFix))
                p('s_lshl_b32 s3, s%d, 2' % sBi)
                p('s_add_u32 s3, s3, 0x1104')
                p('s_load_dword s80, s[46:47], s3')
            elif not bal:
                nextoff(sBi)
            return
        if f and i == f:
            p('s_waitcnt vmcnt(%d)' % n)
            return
        wide = 1 if i < f else 0
        j = i + n + wide
        if j == 16:
            cross(ph)
        addr(j)
        p('s_waitcnt vmcnt(%d)' % (n - 1 + wide))
        load(j)

    def decide(n):
        p('s_sub_u32 s%d, s%d, 1' % (sCnt, sCnt))
        if dyn:
            p('s_cmp_lt_u32 s%d, s%d' % (sBi, sTill))
            p('s_cselect_b32 s%d, s%d, %d' % (sGo, sMod, N))
            p('s_xor_b32 s%d, s%d, %d' % (sGo, sGo, n))
            p('s_cmp_eq_u32 s%d, 0' % sCnt)
            p('s_cselect_b32 s%d, 1, s%d' % (sGo, sGo))
            p('s_cmp_eq_u32 s%d, s%d' % (sBi, sEvt))
            p('s_cselect_b32 s%d, 1, s%d' % (sGo, sGo))

    def tail(ph, n, exit_label):
        if stamp == 3:
            p('s_memrealtime s[42:43]')
            p('s_waitcnt lgkmcnt(0)')
            p('s_sub_u32 s3, s%d, 1' % sBi)
            p('s_mov_b32 m0, s3')
            p('s_lshl_b32 s42, s42, 4')
            p('s_or_b32 s42, s42, %d' % n)
            p('v_writelane_b32 v190, s42, m0')
        if not dyn:
            p('s_cmp_lg_u32 s%d, 0' % sCnt)
            p('s_cbranch_scc1 L_%s%d' % (ph, n))
            p('s_branch %s' % exit_label)
            return
        p('s_cmp_eq_u32 s%d, 0' % sGo)
        p('s_cbranch_scc1 L_%s%d' % (ph, n))
        p('s_cmp_eq_u32 s%d, 0' % sCnt)
        if ph == 'V':
            p('s_cbranch_scc1 %s' % exit_label)
        p('s_cmp_lg_u32 s%d, s%d' % (sBi, sEvt))
        p('s_cbranch_scc1 L_%s%d_c' % (ph, n))
        p('s_call_b64 s[%d:%d], L_ctl' % (sRet, sRet + 1))
        p.label('L_%s%d_c' % (ph, n))
        if ph == 'K':
            p('s_cmp_eq_u32 s%d, 0' % sCnt)
            p('s_cbranch_scc1 %s' % exit_label)
        p('s_cmp_lt_u32 s%d, s%d' % (sBi, sTill))
        p('s_cselect_b32 s%d, s%d, %d' % (sTgt, sMod, N))
        if n < nhi:
            p('s_cmp_gt_u32 s%d, %d' % (sTgt, n))
            p('s_cbranch_scc1 L_%s%d_up' % (ph, n))
        if n > nlo:
            p('s_cmp_ge_u32 s%d, %d' % (sTgt, n))
            p('s_cbranch_scc1 L_%s%d' % (ph, n))
            p('s_waitcnt vmcnt(%d)' % (n - 1))
            p('s_branch L_%s%d_a' % (ph, n - 1))
        else:
            p('s_branch L_%s%d' % (ph, n))
        if n < nhi:
            p.label('L_%s%d_up' % (ph, n))
            issue(n)
            p('s_branch L_%s%d' % (ph, n + 1))

    def kbody(n):
        p('.p2align %d' % al)
        for _ in range(pad):
            p('s_nop 0')
        p.label('L_K%d' % n)
        p('; K tile, %d loads in flight' % n)
        for i in range(16):
            head('K', n, i)
            d = vD + 8 * (i & 1)
            p('v_mfma_f32_16x16x32_bf16 %s, %s, %s, 0' % (r4(d), r4(vR + 4 * i), r4(vQ)))
            p('v_mfma_f32_16x16x32_bf16 %s, %s, %s, 0' % (r4(d + 4), r4(vR + 4 * i), r4(vQ + 4)))
            if i >= 2:
                dpp(i - 2)
            if i >= 1:
                ab(i - 1)
            if i == 11:
                ahead()
            if i == 12:
                decide(n)
            if i == 14 and rt:
                p('s_waitcnt lgkmcnt(0)')
        dpp(14)
        ab(15)
        p('v_max3_f32 v%d, v%d, v%d, v%d' % (vM, vM, vS, vS + 1))
        p('v_max3_f32 v%d, v%d, v%d, v%d' % (vM, vM, vS + 2, vS + 3))
        dpp(15)
        p('ds_write_b128 v%d, %s' % (vSa, r4(vS)))
        p('v_max3_f32 v%d, v%d, v%d, v%d' % (vM, vM, vS + 4, vS + 5))
        p('v_max3_f32 v%d, v%d, v%d, v%d' % (vM, vM, vS + 6, vS + 7))
        p('ds_write_b128 v%d, %s offset:1024' % (vSa, r4(vS + 4)))
        p('v_add_u32 v%d, 2048, v%d' % (vSa, vSa))
        tail('K', n, 'L_T%d' % n)

    lw = 0 if rt else 1 + lw2

    def trans(n):
        p.label('L_T%d' % n)
        p('v_subrev_u32 v%d, %d, v%d' % (vSa, IT * 2048, vSa))
        mark(2)
        p('ds_read_b128 %s, v%d' % (r4(vS), vSa))
        p('ds_read_b128 %s, v%d offset:1024' % (r4(vS + 4), vSa))
        p('ds_read_b32 v%d, v%d' % (vDum, vSa))
        if lw2:
            p('ds_read_b32 v%d, v%d' % (vDum, vSa))
        p('v_max_f32_dpp v%d, v%d, v%d row_ror:8 row_mask:0xf bank_mask:0xf' % (vM, vM, vM))
        p('s_mov_b32 s%d, %d' % (sCnt, IT))
        p('v_mov_b32 v%d, v%d' % (vT1, vM))
        p('v_permlane32_swap_b32 v%d, v%d' % (vM, vT1))
        p('v_max_f32 v%d, v%d, v%d' % (vM, vM, vT1))
        p('v_mov_b32 v%d, v%d' % (vT1, vM))
        p('v_permlane16_swap_b32 v%d, v%d' % (vM, vT1))
        p('v_max_f32 v%d, v%d, v%d' % (vM, vM, vT1))
        p('s_waitcnt lgkmcnt(%d)' % (0 if stamp > 1 else lw))
        if bal:
            for x in scale():
                p(x)

    def scale():
        return (['v_sub_f32 v%d, v%d, v%d' % (vS + e, vS + e, vM) for e in range(8)] +
                ['v_mul_f32 v%d, s%d, v%d' % (vS + e, sC, vS + e) for e in range(8)])

    def vbody(n):
        extra = {i: [] for i in range(16)}
        if bal:
            extra[0] += ['v_exp_f32 v%d, v%d' % (vS + e, vS + e) for e in range(5)]
            extra[2] += ['v_exp_f32 v%d, v%d' % (vS + e, vS + e) for e in range(5, 8)]
        else:
            extra[0] += scale()
            extra[2] += ['v_exp_f32 v%d, v%d' % (vS + e, vS + e) for e in range(8)]
        extra[2] += ['v_add_f32 v%d, v%d, v%d' % (vT0, vS, vS + 1), 'v_add_f32 v%d, v%d, v%d' % (vT1, vS + 2, vS + 3)]
        if epi == 2:
            extra[4] += ['v_cvt_pk_bf16_f32 v%d, v%d, v%d' % (vQ + w, vS + 2 * w, vS + 2 * w + 1) for w in range(4)]
            extra[4] += ['v_cvt_pk_bf16_f32 v%d, v%d, v%d' % (vP + w, vS + 2 * w, vS + 2 * w + 1) for w in range(4)]
        else:
            extra[4] += ['v_cvt_pk_bf16_f32 v%d, v%d, v%d' % (vP + w, vS + 2 * w, vS + 2 * w + 1) for w in range(4)]
        extra[4] += ['v_add_f32 v%d, v%d, v%d' % (vT0, vT0, vS + 4), 'v_add_f32 v%d, v%d, v%d' % (vT1, vT1, vS + 5),
                     'v_add_f32 v%d, v%d, v%d' % (vT0, vT0, vS + 6), 'v_add_f32 v%d, v%d, v%d' % (vT1, vT1, vS + 7),
                     'v_add_f32 v%d, v%d, v%d' % (vL, vL, vT0), 'v_add_f32 v%d, v%d, v%d' % (vL, vL, vT1)]
        extra[6] += ['v_add_u32 v%d, 2048, v%d' % (vSa, vSa),
                     'ds_read_b128 %s, v%d' % (r4(vS), vSa),
                     'ds_read_b128 %s, v%d offset:1024' % (r4(vS + 4), vSa),
                     'ds_read_b32 v%d, v%d' % (vDum, vSa)] + ['ds_read_b32 v%d, v%d' % (vDum, vSa)] * lw2
        if epi == 2:
            extra[6] += ['v_mov_b32_dpp v%d, v%d row_ror:8 row_mask:0xf bank_mask:0xc' % (vQ + w, vQ + w) for w in range(4)]
            extra[10] += ['v_mov_b32_dpp v%d, v%d row_ror:8 row_mask:0xf bank_mask:0x3' % (vP + w, vP + w) for w in range(4)]
        else:
            extra[6] += ['v_and_b32 v%d, v%d, v%d' % (vQ + w, vMA, vP + w) for w in range(4)]
            extra[10] += ['v_and_b32 v%d, v%d, v%d' % (vQ + 4 + w, vMB, vP + w) for w in range(4)]
        extra[12] += ['s_cmp_lg_u32 s%d, 1' % sCnt, 's_cbranch_scc1 L_V%d_l' % n,
                      's_call_b64 s[%d:%d], L_sum' % (sRet, sRet + 1), 'L_V%d_l:' % n]
        extra[14] += ['s_waitcnt lgkmcnt(%d)' % lw] + (scale() if bal else [])

        def mf(pb, ms):
            return ['v_mfma_f32_16x16x32_bf16 %s, %s, %s, %s' % (r4(vO + 4 * m), r4(vVt + 4 * m), r4(pb), r4(vO + 4 * m))
                    for m in ms]
        extra[7] += mf(vQ, range(0, 4))
        extra[8] += mf(vQ, range(4, 8))
        extra[15] += mf(vP if epi == 2 else vQ + 4, range(0, 8))
        p('.p2align %d' % al)
        for _ in range(pad):
            p('s_nop 0')
        p.label('L_V%d' % n)
        p('; V tile, %d loads in flight' % n)
        for i in range(16):
            head('V', n, i)
            if i & 1:
                w = (i & 7) >> 1
                a = vR + 4 * (i - 1)
                for u in range(4):
                    p('v_perm_b32 v%d, v%d, v%d, s%d' % (vVt + 8 * u + w, a + 4 + u, a + u, sSelLo))
                    p('v_perm_b32 v%d, v%d, v%d, s%d' % (vVt + 8 * u + 4 + w, a + 4 + u, a + u, sSelHi))
            for x in extra[i]:
                p(x)
            if i == 10:
                ahead()
            if i == 12:
                decide(n)
        tail('V', n, 'L_epi')

    assert nhi + (1 if fk or fv else 0) <= 14 and nlo >= 7
    order = [N] + [n for n in range(nlo, nhi + 1) if n != N]
    for n in order:
        kbody(n)
    for n in order[::-1]:
        trans(n)
        vbody(n)

    def lsum():
        p.label('L_sum')
        p('s_nop 1')
        p('v_add_f32_dpp v%d, v%d, v%d row_ror:8 row_mask:0xf bank_mask:0xf' % (vL, vL, vL))
        p('v_mov_b32 v%d, v%d' % (vAB, vM))
        p('v_mov_b32 v%d, v%d' % (vT1, vL))
        p('v_permlane32_swap_b32 v%d, v%d' % (vL, vT1))
        p('v_add_f32 v%d, v%d, v%d' % (vL, vL, vT1))
        p('v_mov_b32 v%d, v%d' % (vT1, vL))
        p('v_permlane16_swap_b32 v%d, v%d' % (vL, vT1))
        p('v_add_f32 v%d, v%d, v%d' % (vAB + 1, vL, vT1))
        p('ds_write_b64 v%d, v[%d:%d]' % (vEm, vAB, vAB + 1))
        p('s_setpc_b64 s[%d:%d]' % (sRet, sRet + 1))

    if sumfirst:
        lsum()
    p.label('L_epi')
    mark(3)
    if epi == 2:
        vSn, vKp, vRc, vA = vVt, vVt + 8, vVt + 16, vVt + 24
        p('; wave w keeps rows r = 2w + h of every 4-row group and hands the other pair to its partner')
        p('s_cmp_lg_u32 s%d, 0' % sW)
        p('s_cbranch_scc1 L_epi1')
        for w in range(2):
            if w:
                p.label('L_epi1')
            o, k = 2 * (1 - w), 2 * w
            for hb in range(2):
                for m in range(4 * hb, 4 * hb + 4):
                    p('v_cndmask_b32 v%d, v%d, v%d, s[%d:%d]' % (vSn + m, vO + 4 * m + o, vO + 4 * m + o + 1, sH, sH + 1))
                p('ds_write_b128 v%d, %s offset:%d' % (vEw, r4(vSn + 4 * hb), 1024 * hb))
            for m in range(8):
                p('v_cndmask_b32 v%d, v%d, v%d, s[%d:%d]' % (vKp + m, vO + 4 * m + k, vO + 4 * m + k + 1, sH, sH + 1))
            if not w:
                p('s_branch L_epi2')
        p.label('L_epi2')
        p('s_waitcnt lgkmcnt(0)')
        p('s_barrier')
        mark(4)
        p('ds_read_b64 v[%d:%d], v%d' % (vA, vA + 1, vEl))
        p('ds_read_b128 %s, v%d' % (r4(vRc), vEr))
        p('ds_read_b128 %s, v%d offset:1024' % (r4(vRc + 4), vEr))
        p('s_waitcnt lgkmcnt(%d)' % (0 if stamp == 2 else 2))
        p('v_max_f32 v%d, v%d, v%d' % (vT1, vA, vAB))
        p('v_sub_f32 v%d, v%d, v%d' % (vA, vA, vT1))
        p('v_sub_f32 v%d, v%d, v%d' % (vAB, vAB, vT1))
        p('v_mul_f32 v%d, s%d, v%d' % (vA, sC, vA))
        p('v_mul_f32 v%d, s%d, v%d' % (vAB, sC, vAB))
        p('v_exp_f32 v%d, v%d' % (vA, vA))
        p('v_exp_f32 v%d, v%d' % (vAB, vAB))
        p('v_mul_f32 v%d, v%d, v%d' % (vL, vA, vA + 1))
        p('v_fmac_f32 v%d, v%d, v%d' % (vL, vAB, vAB + 1))
        p('v_rcp_f32 v%d, v%d' % (vL, vL))
        p('v_mul_f32 v%d, v%d, v%d' % (vAB, vAB, vL))
        p('v_mul_f32 v%d, v%d, v%d' % (vA, vA, vL))
        for m in range(8):
            p('v_mul_f32 v%d, v%d, v%d' % (vKp + m, vAB, vKp + m))
        p('s_waitcnt lgkmcnt(0)')
        for m in range(8):
            p('v_fmac_f32 v%d, v%d, v%d' % (vKp + m, vA, vRc + m))
        for k in range(4):
            p('v_cvt_pk_bf16_f32 v%d, v%d, v%d' % (vS + k, vKp + 2 * k, vKp + 2 * k + 1))
        p('buffer_store_dwordx4 %s, v%d, s[%d:%d], 0 offen%s' % (r4(vS), vEo, sO, sO + 3, ofl))
    else:
        for m in range(8):
            p('ds_write_b128 v%d, %s offset:%d' % (vEw, r4(vO + 4 * m), m * MS))
        p('s_waitcnt lgkmcnt(0)')
        p('s_barrier')
        mark(4)
        vA, vRd = vVt, vO
        p('ds_read_b128 %s, v%d' % (r4(vA), vEl))
        for pp in range(4):
            for k in range(4):
                dst = vRd + pp * 8 + 2 * k
                p('ds_read2_b32 v[%d:%d], v%d offset0:%d offset1:%d' %
                  (dst, dst + 1, vEr + pp, 2 * k * MS // 4, (2 * k + 1) * MS // 4))
        p('s_waitcnt lgkmcnt(%d)' % (0 if stamp > 1 else 15))
        p('v_max_f32 v%d, v%d, v%d' % (vT1, vA, vA + 2))
        p('v_sub_f32 v%d, v%d, v%d' % (vA, vA, vT1))
        p('v_sub_f32 v%d, v%d, v%d' % (vA + 2, vA + 2, vT1))
        p('v_mul_f32 v%d, s%d, v%d' % (vA, sC, vA))
        p('v_mul_f32 v%d, s%d, v%d' % (vA + 2, sC, vA + 2))
        p('v_exp_f32 v%d, v%d' % (vA, vA))
        p('v_exp_f32 v%d, v%d' % (vA + 2, vA + 2))
        p('v_mul_f32 v%d, v%d, v%d' % (vL, vA, vA + 1))
        p('v_fmac_f32 v%d, v%d, v%d' % (vL, vA + 2, vA + 3))
        p('v_rcp_f32 v%d, v%d' % (vL, vL))
        p('s_waitcnt lgkmcnt(%d)' % (0 if stamp > 1 else 8))
        for k in range(8):
            p('v_add_f32 v%d, v%d, v%d' % (vRd + k, vRd + k, vRd + 8 + k))
        p('v_mul_f32 v%d, v%d, v%d' % (vA, vA, vL))
        p('v_mul_f32 v%d, v%d, v%d' % (vA + 2, vA + 2, vL))
        for k in range(8):
            p('v_mul_f32 v%d, v%d, v%d' % (vS + k, vA, vRd + k))
        p('s_waitcnt lgkmcnt(0)')
        for k in range(8):
            p('v_add_f32 v%d, v%d, v%d' % (vRd + 16 + k, vRd + 16 + k, vRd + 24 + k))
        for k in range(8):
            p('v_fmac_f32 v%d, v%d, v%d' % (vS + k, vA + 2, vRd + 16 + k))
        for k in range(4):
            p('v_cvt_pk_bf16_f32 v%d, v%d, v%d' % (vP + k, vS + 2 * k, vS + 2 * k + 1))
        p('buffer_store_dwordx4 %s, v%d, s[%d:%d], 0 offen%s' % (r4(vP), vEo, sO, sO + 3, ofl))
    if diag_hold:
        p.label('L_hold')
        p('s_sleep 1')
        p('s_memrealtime s[42:43]')
        p('s_waitcnt lgkmcnt(0)')
        p('s_sub_u32 s42, s42, s40')
        p('s_cmp_lt_u32 s42, %d' % (diag_hold * 100))
        p('s_cbranch_scc1 L_hold')
    if stamp:
        p('s_memrealtime s[42:43]')
        p('s_waitcnt lgkmcnt(0)')
        p('s_getreg_b32 s46, hwreg(HW_REG_XCC_ID)')
        p('s_lshl_b32 s%d, s2, 1' % sTmp)
        p('s_add_u32 s%d, s%d, s%d' % (sTmp, sTmp, sW))
        p('s_lshl_b32 s%d, s%d, 5' % (sTmp, sTmp))
        p('v_mov_b32 v%d, s%d' % (vT0, sTmp))
        for i, s in enumerate((40, 41, 42, 43)):
            p('v_mov_b32 v%d, s%d' % (vVt + i, s))
        p('v_mov_b32 v%d, s46' % (vVt + 4))
        p('v_mov_b32 v%d, %d' % (vVt + 5, W))
        if stamp == 3:
            p('s_lshl_b32 s3, s%d, 3' % sTmp)
            p('s_add_u32 s3, s3, 0x100000')
            p('v_lshl_add_u32 v%d, v0, 2, s3' % vT1)
            p('global_store_dword v%d, v190, s[%d:%d]' % (vT1, sWs, sWs + 1))
        p('s_mov_b64 exec, 1')
        p('global_store_dwordx4 v%d, %s, s[%d:%d]' % (vT0, r4(vVt), sWs, sWs + 1))
        p('global_store_dwordx2 v%d, v[%d:%d], s[%d:%d] offset:16' % (vT0, vVt + 4, vVt + 5, sWs, sWs + 1))
        if stamp == 2:
            p('v_lshlrev_b32 v%d, 2, v%d' % (vT0, vT0))
            p('v_add_u32 v%d, 0x100000, v%d' % (vT0, vT0))
            for k in range(5):
                p('v_mov_b32 v%d, s%d' % (vD + k, 90 + 2 * k))
            p('global_store_dwordx4 v%d, %s, s[%d:%d]' % (vT0, r4(vD), sWs, sWs + 1))
            p('global_store_dword v%d, v%d, s[%d:%d] offset:16' % (vT0, vD + 4, sWs, sWs + 1))
    p.label('L_end')
    p('s_endpgm')

    if not sumfirst:
        lsum()

    if cps:
        p.label('L_ctl')
        p('s_add_u32 s%d, s%d, 1' % (sSt, sSt))
        if twarm > 0:
            p('s_cmp_lg_u32 s%d, 0' % sSt)
            p('s_cbranch_scc1 L_ctl_w')
            touch()
            p('s_mov_b32 s%d, %d' % (sEvt, cps[0][0]))
            p('s_setpc_b64 s[%d:%d]' % (sRet, sRet + 1))
            p.label('L_ctl_w')
        for ci, (kb, sc, cdn, cR) in enumerate(cps):
            end = (cps[ci + 1][0] if ci + 1 < len(cps) else TB - 1)
            p('s_cmp_lg_u32 s%d, %d' % (sSt, 2 * ci + 1))
            p('s_cbranch_scc1 L_ctl_a%d' % ci)
            p('s_mov_b32 s%d, 1' % sRk)
            if w0only:
                p('s_cmp_lg_u32 s%d, 0' % sW)
                p('s_cbranch_scc1 L_ctl_s%d' % ci)
            if not noat:
                p('s_atomic_add s%d, s[%d:%d], s%d glc' % (sRk, sWs, sWs + 1, sCw + 2 * ci))
            if w0only:
                p.label('L_ctl_s%d' % ci)
            p('s_mov_b32 s%d, %d' % (sEvt, kb + lag))
            p('s_setpc_b64 s[%d:%d]' % (sRet, sRet + 1))
            p.label('L_ctl_a%d' % ci)
            p('s_cmp_lg_u32 s%d, %d' % (sSt, 2 * ci + 2))
            p('s_cbranch_scc1 L_ctl_b%d' % ci)
            p('s_waitcnt lgkmcnt(0)')
            p('s_sub_u32 s%d, s%d, s%d' % (sRk, sRk, sCw + 2 * ci + 1))
            p('s_mov_b32 s%d, %d' % (sEvt, cps[ci + 1][0] if ci + 1 < len(cps) else 255))
            p('s_and_b32 s%d, s%d, 0xff' % (sRk, sRk))
            p('s_cmp_ge_u32 s%d, %d' % (sRk, G // 2))
            p('s_cselect_b32 s%d, %d, %d' % (sX3, 4 * sc, cdn * sc))
            p('s_mov_b32 s%d, %d' % (sRr, cR))
            p('s_mov_b32 s%d, %d' % (sTill, end))
            p('s_branch L_ctl_set')
            p.label('L_ctl_b%d' % ci)
        p('s_setpc_b64 s[%d:%d]' % (sRet, sRet + 1))
        p.label('L_ctl_set')
        zs = (0.165, 0.51, 0.93, 1.78) if G == 8 else (0.09, 0.26, 0.44, 0.64, 0.85, 1.11, 1.45, 2.05)
        wt = sum(int(round(16 * z)) << (8 * i) for i, z in enumerate(zs))
        p('s_min_u32 s%d, s%d, %d' % (sRk, sRk, G - 1))
        p('s_sub_i32 s%d, %d, s%d' % (sX1, G // 2 - 1, sRk))
        p('s_sub_i32 s%d, s%d, %d' % (sU, sRk, G // 2))
        p('s_max_i32 s%d, s%d, s%d' % (sU, sU, sX1))
        p('s_lshl_b32 s%d, s%d, 3' % (sU, sU))
        if G == 8:
            p('s_mov_b32 s%d, 0x%08x' % (sTmp, wt))
            p('s_lshr_b32 s%d, s%d, s%d' % (sU, sTmp, sU))
        else:
            p('s_mov_b32 s62, 0x%08x' % (wt & 0xffffffff))
            p('s_mov_b32 s63, 0x%08x' % (wt >> 32))
            p('s_lshr_b64 s[62:63], s[62:63], s%d' % sU)
            p('s_mov_b32 s%d, s62' % sU)
        p('s_and_b32 s%d, s%d, 0xff' % (sU, sU))
        p('s_mul_i32 s%d, s%d, s%d' % (sU, sU, sX3))
        p('s_cmp_ge_u32 s%d, %d' % (sRk, G // 2))
        p('s_cselect_b32 s%d, %d, %d' % (sX1, act, -act))
        p('s_add_u32 s%d, s%d, 32' % (sU, sU))
        p('s_lshr_b32 s%d, s%d, 6' % (sU, sU))
        if amp > 1:
            p('s_cmp_gt_u32 s%d, s%d' % (sU, sRr))
            p('s_cselect_b32 s%d, 1, 0' % sTmp)
            p('s_lshr_b32 s%d, s%d, s%d' % (sU, sU, sTmp))
            p('s_lshl_b32 s%d, s%d, s%d' % (sX1, sX1, sTmp))
        p('s_add_i32 s%d, s%d, %d' % (sMod, sX1, N))
        p('s_add_u32 s%d, s%d, s%d' % (sU, sU, sBi))
        p('s_min_u32 s%d, s%d, s%d' % (sTill, sTill, sU))
        p('s_setpc_b64 s[%d:%d]' % (sRet, sRet + 1))
    p.label('L_last')
    p('s_endpgm')
    p.fix_hazards()
    mv, ma, ms = p.max_regs()
    nvg = mv + 1
    acc = min(256, (nvg + 3) // 4 * 4)
    txt = HEADER + '; @launch grid=(256,1,1) block=(128,1,1) lds=%d\n' % lds
    txt += '.amdgcn_target "amdgcn-amd-amdhsa--gfx950"\n.text\n.globl %s\n.p2align 8\n.type %s,@function\n%s:\n' % (
        KNAME, KNAME, KNAME)
    txt += p.text()
    txt += """.section .rodata,"a"
.p2align 6
.amdhsa_kernel %s
  .amdhsa_next_free_vgpr %d
  .amdhsa_next_free_sgpr %d
  .amdhsa_accum_offset %d
  .amdhsa_group_segment_fixed_size 0
  .amdhsa_kernarg_size 48
  .amdhsa_user_sgpr_count 2
  .amdhsa_user_sgpr_kernarg_segment_ptr 1
  .amdhsa_system_sgpr_workgroup_id_x 1
.end_amdhsa_kernel
""" % (KNAME, nvg, ms + 1, acc)
    return txt


if __name__ == '__main__':
    kw = {}
    for a in sys.argv[2:]:
        k, v = a.split('=')
        try:
            v = int(v, 0)
        except ValueError:
            pass
        kw[k] = v
    open(sys.argv[1], 'w').write(gen(**kw))
```

```python
import math
import sys
sys.path.insert(0, 'work')
from asmlib import Prog
from gen_attn import KNAME, f32bits

PATS = {
    'B': '100 200 400 800 1000 2000 4000 8000 10000 20000 40000 80000 0 0 0 0 0 0 0 0',
    'C2': '100 200 800 8000 1000 2000 4000 10000 20000 40000 80000 400 0 0 0 0 0 0 0 0',
    'S1': '2000 100 400 8100 1000 200 800 10200 80000 20000 40800 4000 0 0 0 0 0 0 0 0',
    'S2': '2000 4000 8100 200 1000 100 800 10000 80000 20000 400 40800 0 0 0 0 0 0 0 0',
    'F': '8800 a00 1ba00 8b00 72b00 12000 1e000 11300 c9200 4b000 9c900 43f00 70000 1c800 be000 6800 9d800 48000 b000 79800',
    'F3': 'a00 1b000 8b00 12000 72b00 1e000 8800 11300 c9200 4b000 94100 43f00 70000 18800 ac000 6800 95800 48000 b000 69000',
    'S3': '100 200 2000 8000 1000 400 800 10200 80000 20400 40000 4000 0 0 0 0 0 0 0 0',
    'S4': '4000 2000 1000 8100 100 800 200 10200 80000 40800 20400 400 0 0 0 0 0 0 0 0',
    'S5': 'a100 400 8100 11200 1600 9b00 a8100 10200 20000 100 43d00 84100 0 0 0 0 0 0 0 0',
    'F30': 'a00 1b000 8b00 12000 72b00 1e000 8800 11300 c9200 4b000 94100 43f00 0 0 0 0 0 0 0 0',
    'F2': 'a00 1b000 8b00 72b00 12000 1e000 8800 11300 c9200 4b000 94100 43f00 70000 18800 ac000 6800 95800 48000 b000 69000',
}

HEADER = """; GQA decode attention (B=16, Hq=32, Hkv=16, Sq=4, Sk=4096, D=128), bf16 in / bf16 out.
;
;   phase V : P = exp2((S - max) * log2e / sqrt(D)), V transposed in registers with v_perm,
; with seven peers and deepens (late) or shortens (early) its prefetch for a few tiles, so that all
"""


def dep(x, ms):
    r = 0
    for k, m in enumerate(ms):
        if x >> k & 1:
            r ^= m
    return r


def gen(N=10, amp=2, pol='nt', pat='F3', chk='24:8:2:6,35:8:2:12,50:6:2:5,57:6:2:5', R=12, dn=2, lag=1, act=1, wsoff=0,
        stamp=0, diag_hold=0, opol='', alt=0, noat=0, nobase=0, lw2=0, w0only=0, cstride=256, fk=4, fv=6, al=3, pad=0, cwarm=1, epi=2, m0early=0, qpos=2, G=8, bal=1, twarm=0, tw='vo', n0=0, sumfirst=1, scr='', hmap='', diag_map=0):
    W, IT = 2, 32
    TB = 2 * IT
    cps = [tuple(int(v) for v in e.split(':')) for e in chk.split(',') if e] if chk else []
    cps = [c + (dn, R)[len(c) - 2:] for c in cps]
    nlo = N - amp if cps else N
    nhi = N + amp if cps else N
    dyn = nhi > nlo
    rt = pat == 'rt'
    pm = [int(x, 16) for x in PATS.get('B' if rt else pat, pat.replace('_', ' ')).split()]
    mL, mW, mS = pm[0:2], pm[5:6], pm[12:20]
    hm = pm[20:28] if len(pm) >= 28 and pm[20:28] != [1 << k for k in range(8)] else []
    sHd = 81
    seq = pm[2:5] + pm[6:12]
    mJ, mT = seq[:4], seq[4:]
    p = Prog()
    vLn, vLv, vT0, vT1, vM, vL, vSa = 1, 2, 3, 4, 5, 6, 7
    vAB = 8
    vP = 12
    vQ = 16
    vS = 24
    vD = 32
    vVt = 48
    vO = 80
    vR = 112
    vMA, vMB, vBase, vAd = 176, 177, 178, 179
    vEw, vEm, vEr, vEl, vEo, vDum = 181, 182, 184, 183, 188, 189
    sX, sQ, sO, sVb = 8, 16, 20, 12
    sCnt, sW, sC, sSelLo, sSelHi, sTmp, sTgt = 26, 27, 28, 29, 30, 31, 32
    sH = 34
    sFix, sNx, sBi = 24, 25, 33
    sEvt, sTill, sMod, sRk, sX1, sX3, sU, sSt = 50, 51, 52, 53, 54, 55, 56, 57
    sRet, sWs, sGo, sRr = 58, 48, 60, 61
    sCw = 82
    fl = (' ' + pol.replace('+', ' ')) if pol else ''
    ofl = (' ' + opol.replace('+', ' ')) if opol else ''
    QS, MS = 656, 80
    HS = 8 * QS
    WS = 65536
    ML = 131072 + 2048
    XB = ML + 2048 if epi == 2 else 0
    XB = (XB + 4095) // 4096 * 4096
    lds = XB + 4096 if epi == 2 else ML + 128

    def r4(b):
        return 'v[%d:%d]' % (b, b + 3)

    def mark(k):
        if stamp == 2:
            p('s_memrealtime s[%d:%d]' % (90 + 2 * k, 91 + 2 * k))

    def addr(j):
        c = dep(j % 16, mJ)
        if rt:
            p('v_xor_b32 v%d, s%d, v%d' % (vAd + (j & 1), 64 + j % 16, vBase))
        elif c:
            p('v_xor_b32 v%d, 0x%x, v%d' % (vAd + (j & 1), c, vBase))

    def load(j):
        va = vAd + (j & 1) if (rt or dep(j % 16, mJ)) else vBase
        p('buffer_load_dwordx4 %s, v%d, s[%d:%d], 0 offen%s' % (r4(vR + 4 * (j % 16)), va, sX, sX + 3, fl))

    def issue(j):
        addr(j)
        load(j)

    def touch():
        p('; address-translation warm-up for pages first used later (values are never read)')
        if 'v' in tw:
            p('s_load_dword s62, s[%d:%d], 0' % (sVb, sVb + 1))
        if 'o' in tw:
            p('s_load_dword s63, s[%d:%d], 0' % (sO, sO + 1))

    p('s_cmp_ge_u32 s2, 256')
    p('s_cbranch_scc1 L_end')
    for e in (scr.split(',') if scr else []):
        bit, mask = e.split(':')
        p('s_bitcmp1_b32 s2, %s' % bit)
        p('s_cselect_b32 s3, 0x%s, 0' % mask)
        p('s_xor_b32 s2, s2, s3')
    p('s_load_dwordx4 s[4:7], s[0:1], 0')
    p('s_load_dwordx4 s[36:39], s[0:1], 16')
    if cps or stamp:
        p('s_load_dwordx2 s[%d:%d], s[0:1], 40' % (sWs, sWs + 1))
    if diag_map:
        p('s_load_dwordx2 s[44:45], s[0:1], 32')
    if stamp or diag_hold:
        p('s_memrealtime s[40:41]')
    p('v_lshrrev_b32 v%d, 6, v0' % vT0)
    p('v_and_b32 v0, 63, v0')
    p('v_readfirstlane_b32 s%d, v%d' % (sW, vT0))
    p('v_lshrrev_b32 v%d, 4, v0' % vT0)
    p('v_lshlrev_b32 v%d, 6, v%d' % (vT0, vT0))
    p('v_and_b32 v%d, 3, v0' % vT1)
    p('v_lshl_add_u32 v%d, v%d, 4, v%d' % (vLn, vT1, vT0))
    for k in range(2):
        p('v_bfe_i32 v%d, v0, %d, 1' % (vT1, 2 + k))
        p('v_and_b32 v%d, 0x%x, v%d' % (vT1, mL[k], vT1))
        p('v_xor_b32 v%d, v%d, v%d' % (vLn, vLn, vT1))
    p('; Q lanes: (s, h = (lane>>3)&1, q = lane&7) read 16 B at q*256 + (4 s + h) * 16, and 32 B further')
    p('v_and_b32 v%d, 7, v0' % vT1)
    p('v_lshl_add_u32 v%d, v%d, 8, v%d' % (vT0, vT1, vT0))
    p('v_bfe_u32 v%d, v0, 3, 1' % vT1)
    p('v_lshl_add_u32 v%d, v%d, 4, v%d' % (vT0, vT1, vT0))
    p('v_cmp_ne_u32 s[%d:%d], 0, v%d' % (sH, sH + 1, vT1))
    p('s_mov_b32 s%d, 0' % sFix)
    if hm:
        p('; bits 20..27 accumulate the head index (a linear bijection of the workgroup id), lower bits the start row')
        mS = [m | (h << 20) for m, h in zip(mS, hm)]
    for src, ms in ((sW, mW), (2, mS)):
        for k, m in enumerate(ms):
            if m:
                p('s_bitcmp1_b32 s%d, %d' % (src, k))
                p('s_cselect_b32 s3, 0x%x, 0' % m)
                p('s_xor_b32 s%d, s%d, s3' % (sFix, sFix))
    if hm:
        p('s_mov_b32 s%d, s%d' % (sHd, sFix))
        p('s_and_b32 s%d, s%d, 0xfffff' % (sFix, sFix))
    p('v_xor_b32 v%d, s%d, v%d' % (vBase, sFix, vLn))
    if cwarm:
        p('; pull a 512 B slice of this kernel text into L2 (value unused)')
        p('s_getpc_b64 s[62:63]')
        p.label('L_pc')
        p('s_lshr_b32 s3, s2, 3')
        p('s_lshl_b32 s3, s3, 1')
        p('s_add_u32 s3, s3, s%d' % sW)
        p('s_lshl_b32 s3, s3, 9')
        p('v_lshl_add_u32 v%d, v0, 3, s3' % vEr)
        p('v_min_u32 v%d, L_last-L_pc-8, v%d' % (vEr, vEr))
        p('v_mov_b32 v%d, s63' % (vEr + 1))
        p('v_add_co_u32 v%d, vcc, s62, v%d' % (vEr, vEr))
        p('v_addc_co_u32 v%d, vcc, 0, v%d, vcc' % (vEr + 1, vEr + 1))
        p('global_load_dword v%d, v[%d:%d], off' % (vDum, vEr, vEr + 1))
    if hm:
        p('s_lshr_b32 s3, s%d, 20' % sHd)
        p('s_lshl_b32 s%d, s3, 20' % sTmp)
        p('s_lshl_b32 s3, s3, 11')
    else:
        p('s_lshl_b32 s%d, s2, 20' % sTmp)
        p('s_lshl_b32 s3, s2, 11')
    for s, n in ((sX, 0x100000), (sQ, 2048), (sO, 2048)):
        p('s_mov_b32 s%d, 0x%x' % (s + 2, n))
        p('s_mov_b32 s%d, 0x20000' % (s + 3))
    if m0early == 1:
        mark(0)
    p('s_waitcnt lgkmcnt(0)')
    if not m0early:
        mark(0)
    if rt:
        p('s_add_u32 s46, s%d, 0x200000' % sWs)
        p('s_addc_u32 s47, s%d, 0' % (sWs + 1))
        p('s_lshl_b32 s63, s2, 1')
        p('s_add_u32 s63, s63, s%d' % sW)
        p('s_lshl_b32 s63, s63, 2')
        p('s_load_dword s%d, s[46:47], s63' % sFix)
        p('s_load_dwordx16 s[64:79], s[46:47], 0x1000')
        p('s_load_dword s80, s[46:47], 0x1104')
        p('s_lshl_b32 s63, s2, 2')
        p('s_add_u32 s63, s63, 0x1c00')
        p('s_load_dword s81, s[46:47], s63')
        p('v_lshlrev_b32 v%d, 2, v0' % vT1)
        p('v_add_u32 v%d, 0x1800, v%d' % (vT1, vT1))
        p('global_load_dword v%d, v%d, s[46:47]' % (vLv, vT1))
        p('global_load_dword v%d, v%d, s[46:47] offset:256' % (vLn, vT1))
        p('s_waitcnt vmcnt(0) lgkmcnt(0)')
        p('s_memrealtime s[40:41]')
        p('v_xor_b32 v%d, s%d, v%d' % (vBase, sFix, vLn))
        p('s_and_b32 s81, s81, 255')
        p('s_lshl_b32 s%d, s81, 20' % sTmp)
        p('s_lshl_b32 s3, s81, 11')
    p('s_add_u32 s%d, s6, s%d' % (sX, sTmp))
    p('s_addc_u32 s%d, s7, 0' % (sX + 1))
    for j in range(qpos):
        issue(j)
    p('s_add_u32 s%d, s4, s3' % sQ)
    p('s_addc_u32 s%d, s5, 0' % (sQ + 1))
    p('buffer_load_dwordx4 %s, v%d, s[%d:%d], 0 offen' % (r4(vQ), vT0, sQ, sQ + 3))
    p('buffer_load_dwordx4 %s, v%d, s[%d:%d], 0 offen offset:32' % (r4(vQ + 4), vT0, sQ, sQ + 3))
    n0 = n0 or N
    for j in range(qpos, n0):
        issue(j)
    if m0early == 2:
        mark(0)
    p('s_add_u32 s%d, s36, s%d' % (sVb, sTmp))
    p('s_addc_u32 s%d, s37, 0' % (sVb + 1))
    p('s_add_u32 s%d, s38, s3' % sO)
    p('s_addc_u32 s%d, s39, 0' % (sO + 1))
    if diag_map:
        p('s_getreg_b32 s46, hwreg(HW_REG_XCC_ID)')
        p('s_sub_u32 s46, s46, s2')
        p('s_and_b32 s46, s46, 7')
        p('s_lshl_b32 s46, 1, s46')
        p('s_atomic_or s46, s[44:45], 0x0')
    if twarm < 0:
        touch()
    if cps:
        p('; rank counters: one word per (checkpoint, wave, group of 8 workgroups); entry value = base')
        for ci in range(len(cps)):
            mul = [0, 1, 4, 3, 5, 2, 7, 9][ci]
            p('s_and_b32 s%d, s2, 7' % sTmp)
            p('s_mul_i32 s%d, s%d, %d' % (sTmp, sTmp, mul))
            p('s_lshr_b32 s3, s2, 3')
            p('s_xor_b32 s3, s3, s%d' % sTmp)
            p('s_and_b32 s3, s3, 31')
            if G == 8:
                p('s_lshl_b32 s%d, s%d, 5' % (sTmp, sW))
                p('s_or_b32 s3, s3, s%d' % sTmp)
            p('s_mul_i32 s3, s3, %d' % cstride)
            p('s_add_u32 s%d, s3, 0x%x' % (sCw + 2 * ci, wsoff + ci * 64 * cstride))
            if nobase:
                p('s_mov_b32 s%d, 0' % (sCw + 2 * ci + 1))
            else:
                p('s_load_dword s%d, s[%d:%d], s%d glc' % (sCw + 2 * ci + 1, sWs, sWs + 1, sCw + 2 * ci))
        p('s_mov_b32 s%d, %d' % (sEvt, twarm if twarm > 0 else cps[0][0]))
        p('s_mov_b32 s%d, %d' % (sSt, -1 if twarm > 0 else 0))
        p('s_mov_b32 s%d, 0' % sTill)
        p('s_mov_b32 s%d, %d' % (sMod, N))
    c = math.log2(math.e) / math.sqrt(128.0)
    p('s_mov_b32 s%d, 0x%08x' % (sC, f32bits(c)))
    p('s_mov_b32 s%d, 0x05040100' % sSelLo)
    p('s_mov_b32 s%d, 0x07060302' % sSelHi)
    p('s_mov_b32 s%d, 0' % sBi)
    if bal and not rt:
        p('s_xor_b32 s%d, s%d, 0x%x' % (sNx, sFix, mT[0]))
    p('s_mov_b32 s%d, %d' % (sCnt, IT))
    if not rt:
        p('; V lanes: (row = lane>>4, i = lane&15) read 16 B at row + 16 i')
        p('v_and_b32 v%d, 15, v0' % vLv)
        p('v_lshlrev_b32 v%d, 4, v%d' % (vLv, vLv))
        for k in range(2):
            p('v_bfe_i32 v%d, v0, %d, 1' % (vT1, 4 + k))
            p('v_and_b32 v%d, 0x%x, v%d' % (vT1, mL[k], vT1))
            p('v_xor_b32 v%d, v%d, v%d' % (vLv, vLv, vT1))
    p('s_lshl_b32 s%d, s%d, 16' % (sTmp, sW))
    p('v_lshl_add_u32 v%d, v0, 4, s%d' % (vSa, sTmp))
    p('v_mov_b32 v%d, 0xff800000' % vM)
    p('v_mov_b32 v%d, 0' % vL)
    if epi != 2:
        p('v_cndmask_b32 v%d, -1, 0, s[%d:%d]' % (vMA, sH, sH + 1))
        p('v_cndmask_b32 v%d, 0, -1, s[%d:%d]' % (vMB, sH, sH + 1))
    for i in range(32):
        p('v_mov_b32 v%d, 0' % (vO + i))
    if epi == 2:
        p('s_lshl_b32 s3, s%d, 11' % sW)
        p('s_add_u32 s3, s3, %d' % XB)
        p('v_lshl_add_u32 v%d, v0, 4, s3' % vEw)
        p('v_xor_b32 v%d, 0x800, v%d' % (vEr, vEw))
        p('v_and_b32 v%d, 7, v0' % vT0)
        p('s_lshl_b32 s3, s%d, 6' % sW)
        p('s_add_u32 s3, s3, %d' % ML)
        p('v_lshl_add_u32 v%d, v%d, 3, s3' % (vEm, vT0))
        p('v_xor_b32 v%d, 64, v%d' % (vEl, vEm))
        p('v_lshrrev_b32 v%d, 4, v0' % vT1)
        p('v_lshlrev_b32 v%d, 6, v%d' % (vT1, vT1))
        p('v_lshl_add_u32 v%d, v%d, 8, v%d' % (vEo, vT0, vT1))
        p('v_bfe_u32 v%d, v0, 3, 1' % vT1)
        p('v_lshl_add_u32 v%d, v%d, 4, v%d' % (vEo, vT1, vEo))
        p('s_lshl_b32 s3, s%d, 5' % sW)
        p('v_add_u32 v%d, s3, v%d' % (vEo, vEo))
    else:
        p('v_and_b32 v%d, 15, v0' % vT0)
        p('v_mul_u32_u24 v%d, %d, v%d' % (vEw, QS, vT0))
        p('v_lshrrev_b32 v%d, 4, v0' % vT1)
        p('v_lshl_add_u32 v%d, v%d, 4, v%d' % (vEw, vT1, vEw))
        p('v_add_u32 v%d, s%d, v%d' % (vEw, sTmp, vEw))
        p('s_lshl_b32 s3, s%d, 2' % sW)
        p('v_add_u32 v%d, s3, v%d' % (vT1, vT1))
        p('v_mul_u32_u24 v%d, %d, v%d' % (vEr, QS, vT1))
        p('v_lshl_add_u32 v%d, v%d, 2, v%d' % (vEr, vT0, vEr))
        p('v_add_u32 v%d, %d, v%d' % (vEr + 1, HS, vEr))
        p('v_add_u32 v%d, %d, v%d' % (vEr + 2, WS, vEr))
        p('v_add_u32 v%d, %d, v%d' % (vEr + 3, WS + HS, vEr))
        p('v_lshlrev_b32 v%d, 4, v%d' % (vEl, vT1))
        p('v_add_u32 v%d, %d, v%d' % (vEl, ML, vEl))
        p('v_lshlrev_b32 v%d, 8, v%d' % (vEo, vT1))
        p('v_lshl_add_u32 v%d, v%d, 4, v%d' % (vEo, vT0, vEo))
        p('v_and_b32 v%d, 7, v0' % vT0)
        p('s_lshl_b32 s3, s%d, 3' % sW)
        p('s_add_u32 s3, s3, %d' % ML)
        p('v_lshl_add_u32 v%d, v%d, 4, s3' % (vEm, vT0))
    if stamp == 2:
        p('s_waitcnt vmcnt(%d)' % (N - 1))
        mark(1)
        p('s_waitcnt lgkmcnt(0)')

    if qpos:
        p('s_waitcnt vmcnt(%d)' % (n0 - qpos))
    if n0 != N:
        p('s_branch L_K%d' % n0)

    def ab(i):
        d, t = vD + 8 * (i & 1), vAB + 2 * (i & 1)
        p('v_add_f32 v%d, v%d, v%d' % (t, d + 0, d + 6))
        p('v_add_f32 v%d, v%d, v%d' % (t + 1, d + 1, d + 7))

    def dpp(i):
        t = vAB + 2 * (i & 1)
        if i < 8:
            p('v_add_f32_dpp v%d, v%d, v%d row_ror:8 row_mask:0xf bank_mask:0x3' % (vS + i, t + 1, t))
        else:
            p('v_add_f32_dpp v%d, v%d, v%d row_ror:8 row_mask:0xf bank_mask:0xc' % (vS + i - 8, t, t + 1))

    def cross(ph):
        p('s_cmp_eq_u32 s%d, 1' % sCnt)
        if ph == 'K':
            p('s_cselect_b32 s%d, s%d, s%d' % (sX, sVb, sX))
            p('s_cselect_b32 s%d, s%d, s%d' % (sX + 1, sVb + 1, sX + 1))
            p('s_cselect_b64 vcc, -1, 0')
            p('v_cndmask_b32 v%d, v%d, v%d, vcc' % (vLn, vLn, vLv))
        else:
            p('s_cselect_b32 s%d, 0, s%d' % (sX + 2, sX + 2))
        p('v_xor_b32 v%d, s%d, v%d' % (vBase, sNx, vLn))

    def nextoff(sreg):
        p('s_mov_b32 s%d, s%d' % (sNx, sFix))
        for k, m in enumerate(mT):
            p('s_bitcmp1_b32 s%d, %d' % (sreg, k))
            p('s_cselect_b32 s3, 0x%x, 0' % m)
            p('s_xor_b32 s%d, s%d, s3' % (sNx, sNx))

    def ahead():
        if bal and not rt:
            p('s_add_u32 s%d, s%d, 1' % (sTmp, sBi))
            nextoff(sTmp)

    def head(ph, n, i):
        f = fk if ph == 'K' else fv
        if i == 0:
            addr(n)
            p('s_waitcnt vmcnt(%d)' % (n - 1))
            load(n)
            p.label('L_%s%d_a' % (ph, n))
            if f:
                issue(n + 1)
            p('s_add_u32 s%d, s%d, 1' % (sBi, sBi))
            if rt:
                p('s_xor_b32 s%d, s%d, s80' % (sNx, sFix))
                p('s_lshl_b32 s3, s%d, 2' % sBi)
                p('s_add_u32 s3, s3, 0x1104')
                p('s_load_dword s80, s[46:47], s3')
            elif not bal:
                nextoff(sBi)
            return
        if f and i == f:
            p('s_waitcnt vmcnt(%d)' % n)
            return
        wide = 1 if i < f else 0
        j = i + n + wide
        if j == 16:
            cross(ph)
        addr(j)
        p('s_waitcnt vmcnt(%d)' % (n - 1 + wide))
        load(j)

    def decide(n):
        p('s_sub_u32 s%d, s%d, 1' % (sCnt, sCnt))
        if dyn:
            p('s_cmp_lt_u32 s%d, s%d' % (sBi, sTill))
            p('s_cselect_b32 s%d, s%d, %d' % (sGo, sMod, N))
            p('s_xor_b32 s%d, s%d, %d' % (sGo, sGo, n))
            p('s_cmp_eq_u32 s%d, 0' % sCnt)
            p('s_cselect_b32 s%d, 1, s%d' % (sGo, sGo))
            p('s_cmp_eq_u32 s%d, s%d' % (sBi, sEvt))
            p('s_cselect_b32 s%d, 1, s%d' % (sGo, sGo))

    def tail(ph, n, exit_label):
        if stamp == 3:
            p('s_memrealtime s[42:43]')
            p('s_waitcnt lgkmcnt(0)')
            p('s_sub_u32 s3, s%d, 1' % sBi)
            p('s_mov_b32 m0, s3')
            p('s_lshl_b32 s42, s42, 4')
            p('s_or_b32 s42, s42, %d' % n)
            p('v_writelane_b32 v190, s42, m0')
        if not dyn:
            p('s_cmp_lg_u32 s%d, 0' % sCnt)
            p('s_cbranch_scc1 L_%s%d' % (ph, n))
            p('s_branch %s' % exit_label)
            return
        p('s_cmp_eq_u32 s%d, 0' % sGo)
        p('s_cbranch_scc1 L_%s%d' % (ph, n))
        p('s_cmp_eq_u32 s%d, 0' % sCnt)
        if ph == 'V':
            p('s_cbranch_scc1 %s' % exit_label)
        p('s_cmp_lg_u32 s%d, s%d' % (sBi, sEvt))
        p('s_cbranch_scc1 L_%s%d_c' % (ph, n))
        p('s_call_b64 s[%d:%d], L_ctl' % (sRet, sRet + 1))
        p.label('L_%s%d_c' % (ph, n))
        if ph == 'K':
            p('s_cmp_eq_u32 s%d, 0' % sCnt)
            p('s_cbranch_scc1 %s' % exit_label)
        p('s_cmp_lt_u32 s%d, s%d' % (sBi, sTill))
        p('s_cselect_b32 s%d, s%d, %d' % (sTgt, sMod, N))
        if n < nhi:
            p('s_cmp_gt_u32 s%d, %d' % (sTgt, n))
            p('s_cbranch_scc1 L_%s%d_up' % (ph, n))
        if n > nlo:
            p('s_cmp_ge_u32 s%d, %d' % (sTgt, n))
            p('s_cbranch_scc1 L_%s%d' % (ph, n))
            p('s_waitcnt vmcnt(%d)' % (n - 1))
            p('s_branch L_%s%d_a' % (ph, n - 1))
        else:
            p('s_branch L_%s%d' % (ph, n))
        if n < nhi:
            p.label('L_%s%d_up' % (ph, n))
            issue(n)
            p('s_branch L_%s%d' % (ph, n + 1))

    def kbody(n):
        p('.p2align %d' % al)
        for _ in range(pad):
            p('s_nop 0')
        p.label('L_K%d' % n)
        p('; K tile, %d loads in flight' % n)
        for i in range(16):
            head('K', n, i)
            d = vD + 8 * (i & 1)
            p('v_mfma_f32_16x16x32_bf16 %s, %s, %s, 0' % (r4(d), r4(vR + 4 * i), r4(vQ)))
            p('v_mfma_f32_16x16x32_bf16 %s, %s, %s, 0' % (r4(d + 4), r4(vR + 4 * i), r4(vQ + 4)))
            if i >= 2:
                dpp(i - 2)
            if i >= 1:
                ab(i - 1)
            if i == 11:
                ahead()
            if i == 12:
                decide(n)
            if i == 14 and rt:
                p('s_waitcnt lgkmcnt(0)')
        dpp(14)
        ab(15)
        p('v_max3_f32 v%d, v%d, v%d, v%d' % (vM, vM, vS, vS + 1))
        p('v_max3_f32 v%d, v%d, v%d, v%d' % (vM, vM, vS + 2, vS + 3))
        dpp(15)
        p('ds_write_b128 v%d, %s' % (vSa, r4(vS)))
        p('v_max3_f32 v%d, v%d, v%d, v%d' % (vM, vM, vS + 4, vS + 5))
        p('v_max3_f32 v%d, v%d, v%d, v%d' % (vM, vM, vS + 6, vS + 7))
        p('ds_write_b128 v%d, %s offset:1024' % (vSa, r4(vS + 4)))
        p('v_add_u32 v%d, 2048, v%d' % (vSa, vSa))
        tail('K', n, 'L_T%d' % n)

    lw = 0 if rt else 1 + lw2

    def trans(n):
        p.label('L_T%d' % n)
        p('v_subrev_u32 v%d, %d, v%d' % (vSa, IT * 2048, vSa))
        mark(2)
        p('ds_read_b128 %s, v%d' % (r4(vS), vSa))
        p('ds_read_b128 %s, v%d offset:1024' % (r4(vS + 4), vSa))
        p('ds_read_b32 v%d, v%d' % (vDum, vSa))
        if lw2:
            p('ds_read_b32 v%d, v%d' % (vDum, vSa))
        p('v_max_f32_dpp v%d, v%d, v%d row_ror:8 row_mask:0xf bank_mask:0xf' % (vM, vM, vM))
        p('s_mov_b32 s%d, %d' % (sCnt, IT))
        p('v_mov_b32 v%d, v%d' % (vT1, vM))
        p('v_permlane32_swap_b32 v%d, v%d' % (vM, vT1))
        p('v_max_f32 v%d, v%d, v%d' % (vM, vM, vT1))
        p('v_mov_b32 v%d, v%d' % (vT1, vM))
        p('v_permlane16_swap_b32 v%d, v%d' % (vM, vT1))
        p('v_max_f32 v%d, v%d, v%d' % (vM, vM, vT1))
        p('s_waitcnt lgkmcnt(%d)' % (0 if stamp > 1 else lw))
        if bal:
            for x in scale():
                p(x)

    def scale():
        return (['v_sub_f32 v%d, v%d, v%d' % (vS + e, vS + e, vM) for e in range(8)] +
                ['v_mul_f32 v%d, s%d, v%d' % (vS + e, sC, vS + e) for e in range(8)])

    def vbody(n):
        extra = {i: [] for i in range(16)}
        if bal:
            extra[0] += ['v_exp_f32 v%d, v%d' % (vS + e, vS + e) for e in range(5)]
            extra[2] += ['v_exp_f32 v%d, v%d' % (vS + e, vS + e) for e in range(5, 8)]
        else:
            extra[0] += scale()
            extra[2] += ['v_exp_f32 v%d, v%d' % (vS + e, vS + e) for e in range(8)]
        extra[2] += ['v_add_f32 v%d, v%d, v%d' % (vT0, vS, vS + 1), 'v_add_f32 v%d, v%d, v%d' % (vT1, vS + 2, vS + 3)]
        if epi == 2:
            extra[4] += ['v_cvt_pk_bf16_f32 v%d, v%d, v%d' % (vQ + w, vS + 2 * w, vS + 2 * w + 1) for w in range(4)]
            extra[4] += ['v_cvt_pk_bf16_f32 v%d, v%d, v%d' % (vP + w, vS + 2 * w, vS + 2 * w + 1) for w in range(4)]
        else:
            extra[4] += ['v_cvt_pk_bf16_f32 v%d, v%d, v%d' % (vP + w, vS + 2 * w, vS + 2 * w + 1) for w in range(4)]
        extra[4] += ['v_add_f32 v%d, v%d, v%d' % (vT0, vT0, vS + 4), 'v_add_f32 v%d, v%d, v%d' % (vT1, vT1, vS + 5),
                     'v_add_f32 v%d, v%d, v%d' % (vT0, vT0, vS + 6), 'v_add_f32 v%d, v%d, v%d' % (vT1, vT1, vS + 7),
                     'v_add_f32 v%d, v%d, v%d' % (vL, vL, vT0), 'v_add_f32 v%d, v%d, v%d' % (vL, vL, vT1)]
        extra[6] += ['v_add_u32 v%d, 2048, v%d' % (vSa, vSa),
                     'ds_read_b128 %s, v%d' % (r4(vS), vSa),
                     'ds_read_b128 %s, v%d offset:1024' % (r4(vS + 4), vSa),
                     'ds_read_b32 v%d, v%d' % (vDum, vSa)] + ['ds_read_b32 v%d, v%d' % (vDum, vSa)] * lw2
        if epi == 2:
            extra[6] += ['v_mov_b32_dpp v%d, v%d row_ror:8 row_mask:0xf bank_mask:0xc' % (vQ + w, vQ + w) for w in range(4)]
            extra[10] += ['v_mov_b32_dpp v%d, v%d row_ror:8 row_mask:0xf bank_mask:0x3' % (vP + w, vP + w) for w in range(4)]
        else:
            extra[6] += ['v_and_b32 v%d, v%d, v%d' % (vQ + w, vMA, vP + w) for w in range(4)]
            extra[10] += ['v_and_b32 v%d, v%d, v%d' % (vQ + 4 + w, vMB, vP + w) for w in range(4)]
        extra[12] += ['s_cmp_lg_u32 s%d, 1' % sCnt, 's_cbranch_scc1 L_V%d_l' % n,
                      's_call_b64 s[%d:%d], L_sum' % (sRet, sRet + 1), 'L_V%d_l:' % n]
        extra[14] += ['s_waitcnt lgkmcnt(%d)' % lw] + (scale() if bal else [])

        def mf(pb, ms):
            return ['v_mfma_f32_16x16x32_bf16 %s, %s, %s, %s' % (r4(vO + 4 * m), r4(vVt + 4 * m), r4(pb), r4(vO + 4 * m))
                    for m in ms]
        extra[7] += mf(vQ, range(0, 4))
        extra[8] += mf(vQ, range(4, 8))
        extra[15] += mf(vP if epi == 2 else vQ + 4, range(0, 8))
        p('.p2align %d' % al)
        for _ in range(pad):
            p('s_nop 0')
        p.label('L_V%d' % n)
        p('; V tile, %d loads in flight' % n)
        for i in range(16):
            head('V', n, i)
            if i & 1:
                w = (i & 7) >> 1
                a = vR + 4 * (i - 1)
                for u in range(4):
                    p('v_perm_b32 v%d, v%d, v%d, s%d' % (vVt + 8 * u + w, a + 4 + u, a + u, sSelLo))
                    p('v_perm_b32 v%d, v%d, v%d, s%d' % (vVt + 8 * u + 4 + w, a + 4 + u, a + u, sSelHi))
            for x in extra[i]:
                p(x)
            if i == 10:
                ahead()
            if i == 12:
                decide(n)
        tail('V', n, 'L_epi')

    assert nhi + (1 if fk or fv else 0) <= 14 and nlo >= 7
    order = [N] + [n for n in range(nlo, nhi + 1) if n != N]
    for n in order:
        kbody(n)
    for n in order[::-1]:
        trans(n)
        vbody(n)

    def lsum():
        p.label('L_sum')
        p('s_nop 1')
        p('v_add_f32_dpp v%d, v%d, v%d row_ror:8 row_mask:0xf bank_mask:0xf' % (vL, vL, vL))
        p('v_mov_b32 v%d, v%d' % (vAB, vM))
        p('v_mov_b32 v%d, v%d' % (vT1, vL))
        p('v_permlane32_swap_b32 v%d, v%d' % (vL, vT1))
        p('v_add_f32 v%d, v%d, v%d' % (vL, vL, vT1))
        p('v_mov_b32 v%d, v%d' % (vT1, vL))
        p('v_permlane16_swap_b32 v%d, v%d' % (vL, vT1))
        p('v_add_f32 v%d, v%d, v%d' % (vAB + 1, vL, vT1))
        p('ds_write_b64 v%d, v[%d:%d]' % (vEm, vAB, vAB + 1))
        p('s_setpc_b64 s[%d:%d]' % (sRet, sRet + 1))

    if sumfirst:
        lsum()
    p.label('L_epi')
    mark(3)
    if epi == 2:
        vSn, vKp, vRc, vA = vVt, vVt + 8, vVt + 16, vVt + 24
        p('; wave w keeps rows r = 2w + h of every 4-row group and hands the other pair to its partner')
        p('s_cmp_lg_u32 s%d, 0' % sW)
        p('s_cbranch_scc1 L_epi1')
        for w in range(2):
            if w:
                p.label('L_epi1')
            o, k = 2 * (1 - w), 2 * w
            for hb in range(2):
                for m in range(4 * hb, 4 * hb + 4):
                    p('v_cndmask_b32 v%d, v%d, v%d, s[%d:%d]' % (vSn + m, vO + 4 * m + o, vO + 4 * m + o + 1, sH, sH + 1))
                p('ds_write_b128 v%d, %s offset:%d' % (vEw, r4(vSn + 4 * hb), 1024 * hb))
            for m in range(8):
                p('v_cndmask_b32 v%d, v%d, v%d, s[%d:%d]' % (vKp + m, vO + 4 * m + k, vO + 4 * m + k + 1, sH, sH + 1))
            if not w:
                p('s_branch L_epi2')
        p.label('L_epi2')
        p('s_waitcnt lgkmcnt(0)')
        p('s_barrier')
        mark(4)
        p('ds_read_b64 v[%d:%d], v%d' % (vA, vA + 1, vEl))
        p('ds_read_b128 %s, v%d' % (r4(vRc), vEr))
        p('ds_read_b128 %s, v%d offset:1024' % (r4(vRc + 4), vEr))
        p('s_waitcnt lgkmcnt(%d)' % (0 if stamp == 2 else 2))
        p('v_max_f32 v%d, v%d, v%d' % (vT1, vA, vAB))
        p('v_sub_f32 v%d, v%d, v%d' % (vA, vA, vT1))
        p('v_sub_f32 v%d, v%d, v%d' % (vAB, vAB, vT1))
        p('v_mul_f32 v%d, s%d, v%d' % (vA, sC, vA))
        p('v_mul_f32 v%d, s%d, v%d' % (vAB, sC, vAB))
        p('v_exp_f32 v%d, v%d' % (vA, vA))
        p('v_exp_f32 v%d, v%d' % (vAB, vAB))
        p('v_mul_f32 v%d, v%d, v%d' % (vL, vA, vA + 1))
        p('v_fmac_f32 v%d, v%d, v%d' % (vL, vAB, vAB + 1))
        p('v_rcp_f32 v%d, v%d' % (vL, vL))
        p('v_mul_f32 v%d, v%d, v%d' % (vAB, vAB, vL))
        p('v_mul_f32 v%d, v%d, v%d' % (vA, vA, vL))
        for m in range(8):
            p('v_mul_f32 v%d, v%d, v%d' % (vKp + m, vAB, vKp + m))
        p('s_waitcnt lgkmcnt(0)')
        for m in range(8):
            p('v_fmac_f32 v%d, v%d, v%d' % (vKp + m, vA, vRc + m))
        for k in range(4):
            p('v_cvt_pk_bf16_f32 v%d, v%d, v%d' % (vS + k, vKp + 2 * k, vKp + 2 * k + 1))
        p('buffer_store_dwordx4 %s, v%d, s[%d:%d], 0 offen%s' % (r4(vS), vEo, sO, sO + 3, ofl))
    else:
        for m in range(8):
            p('ds_write_b128 v%d, %s offset:%d' % (vEw, r4(vO + 4 * m), m * MS))
        p('s_waitcnt lgkmcnt(0)')
        p('s_barrier')
        mark(4)
        vA, vRd = vVt, vO
        p('ds_read_b128 %s, v%d' % (r4(vA), vEl))
        for pp in range(4):
            for k in range(4):
                dst = vRd + pp * 8 + 2 * k
                p('ds_read2_b32 v[%d:%d], v%d offset0:%d offset1:%d' %
                  (dst, dst + 1, vEr + pp, 2 * k * MS // 4, (2 * k + 1) * MS // 4))
        p('s_waitcnt lgkmcnt(%d)' % (0 if stamp > 1 else 15))
        p('v_max_f32 v%d, v%d, v%d' % (vT1, vA, vA + 2))
        p('v_sub_f32 v%d, v%d, v%d' % (vA, vA, vT1))
        p('v_sub_f32 v%d, v%d, v%d' % (vA + 2, vA + 2, vT1))
        p('v_mul_f32 v%d, s%d, v%d' % (vA, sC, vA))
        p('v_mul_f32 v%d, s%d, v%d' % (vA + 2, sC, vA + 2))
        p('v_exp_f32 v%d, v%d' % (vA, vA))
        p('v_exp_f32 v%d, v%d' % (vA + 2, vA + 2))
        p('v_mul_f32 v%d, v%d, v%d' % (vL, vA, vA + 1))
        p('v_fmac_f32 v%d, v%d, v%d' % (vL, vA + 2, vA + 3))
        p('v_rcp_f32 v%d, v%d' % (vL, vL))
        p('s_waitcnt lgkmcnt(%d)' % (0 if stamp > 1 else 8))
        for k in range(8):
            p('v_add_f32 v%d, v%d, v%d' % (vRd + k, vRd + k, vRd + 8 + k))
        p('v_mul_f32 v%d, v%d, v%d' % (vA, vA, vL))
        p('v_mul_f32 v%d, v%d, v%d' % (vA + 2, vA + 2, vL))
        for k in range(8):
            p('v_mul_f32 v%d, v%d, v%d' % (vS + k, vA, vRd + k))
        p('s_waitcnt lgkmcnt(0)')
        for k in range(8):
            p('v_add_f32 v%d, v%d, v%d' % (vRd + 16 + k, vRd + 16 + k, vRd + 24 + k))
        for k in range(8):
            p('v_fmac_f32 v%d, v%d, v%d' % (vS + k, vA + 2, vRd + 16 + k))
        for k in range(4):
            p('v_cvt_pk_bf16_f32 v%d, v%d, v%d' % (vP + k, vS + 2 * k, vS + 2 * k + 1))
        p('buffer_store_dwordx4 %s, v%d, s[%d:%d], 0 offen%s' % (r4(vP), vEo, sO, sO + 3, ofl))
    if diag_map:
        p('s_mov_b32 s47, 0')
        p('s_atomic_or s47, s[44:45], 0x0 glc')
        p('s_waitcnt lgkmcnt(0)')
        p('s_bcnt1_i32_b32 s47, s47')
        p('s_cmp_le_u32 s47, 1')
        p('s_cbranch_scc1 L_end')
    if diag_hold:
        p.label('L_hold')
        p('s_sleep 1')
        p('s_memrealtime s[42:43]')
        p('s_waitcnt lgkmcnt(0)')
        p('s_sub_u32 s42, s42, s40')
        p('s_cmp_lt_u32 s42, %d' % (diag_hold * 100))
        p('s_cbranch_scc1 L_hold')
    if stamp:
        p('s_memrealtime s[42:43]')
        p('s_waitcnt lgkmcnt(0)')
        p('s_getreg_b32 s46, hwreg(HW_REG_XCC_ID)')
        p('s_lshl_b32 s%d, s2, 1' % sTmp)
        p('s_add_u32 s%d, s%d, s%d' % (sTmp, sTmp, sW))
        p('s_lshl_b32 s%d, s%d, 5' % (sTmp, sTmp))
        p('v_mov_b32 v%d, s%d' % (vT0, sTmp))
        for i, s in enumerate((40, 41, 42, 43)):
            p('v_mov_b32 v%d, s%d' % (vVt + i, s))
        p('v_mov_b32 v%d, s46' % (vVt + 4))
        p('v_mov_b32 v%d, %d' % (vVt + 5, W))
        if stamp == 3:
            p('s_lshl_b32 s3, s%d, 3' % sTmp)
            p('s_add_u32 s3, s3, 0x100000')
            p('v_lshl_add_u32 v%d, v0, 2, s3' % vT1)
            p('global_store_dword v%d, v190, s[%d:%d]' % (vT1, sWs, sWs + 1))
        p('s_mov_b64 exec, 1')
        p('global_store_dwordx4 v%d, %s, s[%d:%d]' % (vT0, r4(vVt), sWs, sWs + 1))
        p('global_store_dwordx2 v%d, v[%d:%d], s[%d:%d] offset:16' % (vT0, vVt + 4, vVt + 5, sWs, sWs + 1))
        if stamp == 2:
            p('v_lshlrev_b32 v%d, 2, v%d' % (vT0, vT0))
            p('v_add_u32 v%d, 0x100000, v%d' % (vT0, vT0))
            for k in range(5):
                p('v_mov_b32 v%d, s%d' % (vD + k, 90 + 2 * k))
            p('global_store_dwordx4 v%d, %s, s[%d:%d]' % (vT0, r4(vD), sWs, sWs + 1))
            p('global_store_dword v%d, v%d, s[%d:%d] offset:16' % (vT0, vD + 4, sWs, sWs + 1))
    p.label('L_end')
    p('s_endpgm')

    if not sumfirst:
        lsum()

    if cps:
        p.label('L_ctl')
        p('s_add_u32 s%d, s%d, 1' % (sSt, sSt))
        if twarm > 0:
            p('s_cmp_lg_u32 s%d, 0' % sSt)
            p('s_cbranch_scc1 L_ctl_w')
            touch()
            p('s_mov_b32 s%d, %d' % (sEvt, cps[0][0]))
            p('s_setpc_b64 s[%d:%d]' % (sRet, sRet + 1))
            p.label('L_ctl_w')
        for ci, (kb, sc, cdn, cR) in enumerate(cps):
            end = (cps[ci + 1][0] if ci + 1 < len(cps) else TB - 1)
            p('s_cmp_lg_u32 s%d, %d' % (sSt, 2 * ci + 1))
            p('s_cbranch_scc1 L_ctl_a%d' % ci)
            p('s_mov_b32 s%d, 1' % sRk)
            if w0only:
                p('s_cmp_lg_u32 s%d, 0' % sW)
                p('s_cbranch_scc1 L_ctl_s%d' % ci)
            if not noat:
                p('s_atomic_add s%d, s[%d:%d], s%d glc' % (sRk, sWs, sWs + 1, sCw + 2 * ci))
            if w0only:
                p.label('L_ctl_s%d' % ci)
            p('s_mov_b32 s%d, %d' % (sEvt, kb + lag))
            p('s_setpc_b64 s[%d:%d]' % (sRet, sRet + 1))
            p.label('L_ctl_a%d' % ci)
            p('s_cmp_lg_u32 s%d, %d' % (sSt, 2 * ci + 2))
            p('s_cbranch_scc1 L_ctl_b%d' % ci)
            p('s_waitcnt lgkmcnt(0)')
            p('s_sub_u32 s%d, s%d, s%d' % (sRk, sRk, sCw + 2 * ci + 1))
            p('s_mov_b32 s%d, %d' % (sEvt, cps[ci + 1][0] if ci + 1 < len(cps) else 255))
            p('s_and_b32 s%d, s%d, 0xff' % (sRk, sRk))
            p('s_cmp_ge_u32 s%d, %d' % (sRk, G // 2))
            p('s_cselect_b32 s%d, %d, %d' % (sX3, 4 * sc, cdn * sc))
            p('s_mov_b32 s%d, %d' % (sRr, cR))
            p('s_mov_b32 s%d, %d' % (sTill, end))
            p('s_branch L_ctl_set')
            p.label('L_ctl_b%d' % ci)
        p('s_setpc_b64 s[%d:%d]' % (sRet, sRet + 1))
        p.label('L_ctl_set')
        zs = (0.165, 0.51, 0.93, 1.78) if G == 8 else (0.09, 0.26, 0.44, 0.64, 0.85, 1.11, 1.45, 2.05)
        wt = sum(int(round(16 * z)) << (8 * i) for i, z in enumerate(zs))
        p('s_min_u32 s%d, s%d, %d' % (sRk, sRk, G - 1))
        p('s_sub_i32 s%d, %d, s%d' % (sX1, G // 2 - 1, sRk))
        p('s_sub_i32 s%d, s%d, %d' % (sU, sRk, G // 2))
        p('s_max_i32 s%d, s%d, s%d' % (sU, sU, sX1))
        p('s_lshl_b32 s%d, s%d, 3' % (sU, sU))
        if G == 8:
            p('s_mov_b32 s%d, 0x%08x' % (sTmp, wt))
            p('s_lshr_b32 s%d, s%d, s%d' % (sU, sTmp, sU))
        else:
            p('s_mov_b32 s62, 0x%08x' % (wt & 0xffffffff))
            p('s_mov_b32 s63, 0x%08x' % (wt >> 32))
            p('s_lshr_b64 s[62:63], s[62:63], s%d' % sU)
            p('s_mov_b32 s%d, s62' % sU)
        p('s_and_b32 s%d, s%d, 0xff' % (sU, sU))
        p('s_mul_i32 s%d, s%d, s%d' % (sU, sU, sX3))
        p('s_cmp_ge_u32 s%d, %d' % (sRk, G // 2))
        p('s_cselect_b32 s%d, %d, %d' % (sX1, act, -act))
        p('s_add_u32 s%d, s%d, 32' % (sU, sU))
        p('s_lshr_b32 s%d, s%d, 6' % (sU, sU))
        if amp > 1:
            p('s_cmp_gt_u32 s%d, s%d' % (sU, sRr))
            p('s_cselect_b32 s%d, 1, 0' % sTmp)
            p('s_lshr_b32 s%d, s%d, s%d' % (sU, sU, sTmp))
            p('s_lshl_b32 s%d, s%d, s%d' % (sX1, sX1, sTmp))
        p('s_add_i32 s%d, s%d, %d' % (sMod, sX1, N))
        p('s_add_u32 s%d, s%d, s%d' % (sU, sU, sBi))
        p('s_min_u32 s%d, s%d, s%d' % (sTill, sTill, sU))
        p('s_setpc_b64 s[%d:%d]' % (sRet, sRet + 1))
    p.label('L_last')
    p('s_endpgm')
    p.fix_hazards()
    mv, ma, ms = p.max_regs()
    nvg = mv + 1
    acc = min(256, (nvg + 3) // 4 * 4)
    txt = HEADER + '; @launch grid=(256,1,1) block=(128,1,1) lds=%d\n' % lds
    txt += '.amdgcn_target "amdgcn-amd-amdhsa--gfx950"\n.text\n.globl %s\n.p2align 8\n.type %s,@function\n%s:\n' % (
        KNAME, KNAME, KNAME)
    txt += p.text()
    txt += """.section .rodata,"a"
.p2align 6
.amdhsa_kernel %s
  .amdhsa_next_free_vgpr %d
  .amdhsa_next_free_sgpr %d
  .amdhsa_accum_offset %d
  .amdhsa_group_segment_fixed_size 0
  .amdhsa_kernarg_size 48
  .amdhsa_user_sgpr_count 2
  .amdhsa_user_sgpr_kernarg_segment_ptr 1
  .amdhsa_system_sgpr_workgroup_id_x 1
.end_amdhsa_kernel
""" % (KNAME, nvg, ms + 1, acc)
    return txt


if __name__ == '__main__':
    kw = {}
    for a in sys.argv[2:]:
        k, v = a.split('=')
        try:
            v = int(v, 0)
        except ValueError:
            pass
        kw[k] = v
    open(sys.argv[1], 'w').write(gen(**kw))
```

```python
import math
import sys
sys.path.insert(0, 'work')
from asmlib import Prog
from gen_attn import KNAME, f32bits

PATS = {
    'B': '100 200 400 800 1000 2000 4000 8000 10000 20000 40000 80000 0 0 0 0 0 0 0 0',
    'C2': '100 200 800 8000 1000 2000 4000 10000 20000 40000 80000 400 0 0 0 0 0 0 0 0',
    'S1': '2000 100 400 8100 1000 200 800 10200 80000 20000 40800 4000 0 0 0 0 0 0 0 0',
    'S2': '2000 4000 8100 200 1000 100 800 10000 80000 20000 400 40800 0 0 0 0 0 0 0 0',
    'F': '8800 a00 1ba00 8b00 72b00 12000 1e000 11300 c9200 4b000 9c900 43f00 70000 1c800 be000 6800 9d800 48000 b000 79800',
    'F3': 'a00 1b000 8b00 12000 72b00 1e000 8800 11300 c9200 4b000 94100 43f00 70000 18800 ac000 6800 95800 48000 b000 69000',
    'S3': '100 200 2000 8000 1000 400 800 10200 80000 20400 40000 4000 0 0 0 0 0 0 0 0',
    'S4': '4000 2000 1000 8100 100 800 200 10200 80000 40800 20400 400 0 0 0 0 0 0 0 0',
    'S5': 'a100 400 8100 11200 1600 9b00 a8100 10200 20000 100 43d00 84100 0 0 0 0 0 0 0 0',
    'F30': 'a00 1b000 8b00 12000 72b00 1e000 8800 11300 c9200 4b000 94100 43f00 0 0 0 0 0 0 0 0',
    'F2': 'a00 1b000 8b00 72b00 12000 1e000 8800 11300 c9200 4b000 94100 43f00 70000 18800 ac000 6800 95800 48000 b000 69000',
}

HEADER = """; GQA decode attention (B=16, Hq=32, Hkv=16, Sq=4, Sk=4096, D=128), bf16 in / bf16 out.
;
;   phase V : P = exp2((S - max) * log2e / sqrt(D)), V transposed in registers with v_perm,
; with seven peers and deepens (late) or shortens (early) its prefetch for a few tiles, so that all
"""


def dep(x, ms):
    r = 0
    for k, m in enumerate(ms):
        if x >> k & 1:
            r ^= m
    return r


def gen(N=10, amp=2, pol='nt', pat='F3', chk='24:8:2:6,35:8:2:12,50:6:2:5,57:6:2:5', R=12, dn=2, lag=1, act=1, wsoff=0,
        stamp=0, diag_hold=0, opol='', alt=0, noat=0, nobase=0, lw2=0, w0only=0, cstride=256, fk=4, fv=6, al=3, pad=0, cwarm=1, epi=2, m0early=0, qpos=2, G=8, bal=1, twarm=0, tw='vo', n0=0, sumfirst=1, scr='', hmap='', diag_map=0, rotb=0, xfix=0x43f00):
    W, IT = 2, 32
    TB = 2 * IT
    cps = [tuple(int(v) for v in e.split(':')) for e in chk.split(',') if e] if chk else []
    cps = [c + (dn, R)[len(c) - 2:] for c in cps]
    nlo = N - amp if cps else N
    nhi = N + amp if cps else N
    dyn = nhi > nlo
    rt = pat == 'rt'
    pm = [int(x, 16) for x in PATS.get('B' if rt else pat, pat.replace('_', ' ')).split()]
    mL, mW, mS = pm[0:2], pm[5:6], pm[12:20]
    hm = pm[20:28] if len(pm) >= 28 and pm[20:28] != [1 << k for k in range(8)] else []
    sHd = 81
    seq = pm[2:5] + pm[6:12]
    mJ, mT = seq[:4], seq[4:]
    p = Prog()
    vLn, vLv, vT0, vT1, vM, vL, vSa = 1, 2, 3, 4, 5, 6, 7
    vAB = 8
    vP = 12
    vQ = 16
    vS = 24
    vD = 32
    vVt = 48
    vO = 80
    vR = 112
    vMA, vMB, vBase, vAd = 176, 177, 178, 179
    vEw, vEm, vEr, vEl, vEo, vDum = 181, 182, 184, 183, 188, 189
    sX, sQ, sO, sVb = 8, 16, 20, 12
    sCnt, sW, sC, sSelLo, sSelHi, sTmp, sTgt = 26, 27, 28, 29, 30, 31, 32
    sH = 34
    sFix, sNx, sBi = 24, 25, 33
    sEvt, sTill, sMod, sRk, sX1, sX3, sU, sSt = 50, 51, 52, 53, 54, 55, 56, 57
    sRet, sWs, sGo, sRr = 58, 48, 60, 61
    sCw = 82
    fl = (' ' + pol.replace('+', ' ')) if pol else ''
    ofl = (' ' + opol.replace('+', ' ')) if opol else ''
    QS, MS = 656, 80
    HS = 8 * QS
    WS = 65536
    ML = 131072 + 2048
    XB = ML + 2048 if epi == 2 else 0
    XB = (XB + 4095) // 4096 * 4096
    lds = XB + 4096 if epi == 2 else ML + 128

    def r4(b):
        return 'v[%d:%d]' % (b, b + 3)

    def mark(k):
        if stamp == 2:
            p('s_memrealtime s[%d:%d]' % (90 + 2 * k, 91 + 2 * k))

    def addr(j):
        c = dep(j % 16, mJ)
        if rt:
            p('v_xor_b32 v%d, s%d, v%d' % (vAd + (j & 1), 64 + j % 16, vBase))
        elif c:
            p('v_xor_b32 v%d, 0x%x, v%d' % (vAd + (j & 1), c, vBase))

    def load(j):
        va = vAd + (j & 1) if (rt or dep(j % 16, mJ)) else vBase
        p('buffer_load_dwordx4 %s, v%d, s[%d:%d], 0 offen%s' % (r4(vR + 4 * (j % 16)), va, sX, sX + 3, fl))

    def issue(j):
        addr(j)
        load(j)

    def touch():
        p('; address-translation warm-up for pages first used later (values are never read)')
        if 'v' in tw:
            p('s_load_dword s62, s[%d:%d], 0' % (sVb, sVb + 1))
        if 'o' in tw:
            p('s_load_dword s63, s[%d:%d], 0' % (sO, sO + 1))

    p('s_cmp_ge_u32 s2, 256')
    p('s_cbranch_scc1 L_end')
    if rotb:
        p('s_sub_u32 s2, s2, %d' % rotb)
        p('s_and_b32 s2, s2, 255')
    for e in (scr.split(',') if scr else []):
        bit, mask = e.split(':')
        p('s_bitcmp1_b32 s2, %s' % bit)
        p('s_cselect_b32 s3, 0x%s, 0' % mask)
        p('s_xor_b32 s2, s2, s3')
    p('s_load_dwordx4 s[4:7], s[0:1], 0')
    p('s_load_dwordx4 s[36:39], s[0:1], 16')
    if cps or stamp:
        p('s_load_dwordx2 s[%d:%d], s[0:1], 40' % (sWs, sWs + 1))
    if diag_map:
        p('s_load_dwordx2 s[44:45], s[0:1], 32')
    if stamp or diag_hold:
        p('s_memrealtime s[40:41]')
    p('v_lshrrev_b32 v%d, 6, v0' % vT0)
    p('v_and_b32 v0, 63, v0')
    p('v_readfirstlane_b32 s%d, v%d' % (sW, vT0))
    p('v_lshrrev_b32 v%d, 4, v0' % vT0)
    p('v_lshlrev_b32 v%d, 6, v%d' % (vT0, vT0))
    p('v_and_b32 v%d, 3, v0' % vT1)
    p('v_lshl_add_u32 v%d, v%d, 4, v%d' % (vLn, vT1, vT0))
    for k in range(2):
        p('v_bfe_i32 v%d, v0, %d, 1' % (vT1, 2 + k))
        p('v_and_b32 v%d, 0x%x, v%d' % (vT1, mL[k], vT1))
        p('v_xor_b32 v%d, v%d, v%d' % (vLn, vLn, vT1))
    p('; Q lanes: (s, h = (lane>>3)&1, q = lane&7) read 16 B at q*256 + (4 s + h) * 16, and 32 B further')
    p('v_and_b32 v%d, 7, v0' % vT1)
    p('v_lshl_add_u32 v%d, v%d, 8, v%d' % (vT0, vT1, vT0))
    p('v_bfe_u32 v%d, v0, 3, 1' % vT1)
    p('v_lshl_add_u32 v%d, v%d, 4, v%d' % (vT0, vT1, vT0))
    p('v_cmp_ne_u32 s[%d:%d], 0, v%d' % (sH, sH + 1, vT1))
    p('s_mov_b32 s%d, 0' % sFix)
    if hm:
        p('; bits 20..27 accumulate the head index (a linear bijection of the workgroup id), lower bits the start row')
        mS = [m | (h << 20) for m, h in zip(mS, hm)]
    for src, ms in ((sW, mW), (2, mS)):
        for k, m in enumerate(ms):
            if m:
                p('s_bitcmp1_b32 s%d, %d' % (src, k))
                p('s_cselect_b32 s3, 0x%x, 0' % m)
                p('s_xor_b32 s%d, s%d, s3' % (sFix, sFix))
    if xfix:
        p('; start in the other half of the row order when the die half differs from head bit 2 (speed only)')
        p('s_getreg_b32 s3, hwreg(HW_REG_XCC_ID)')
        p('s_xor_b32 s3, s3, s2')
        p('s_bitcmp1_b32 s3, 2')
        p('s_cselect_b32 s3, 0x%x, 0' % xfix)
        p('s_xor_b32 s%d, s%d, s3' % (sFix, sFix))
    if hm:
        p('s_mov_b32 s%d, s%d' % (sHd, sFix))
        p('s_and_b32 s%d, s%d, 0xfffff' % (sFix, sFix))
    p('v_xor_b32 v%d, s%d, v%d' % (vBase, sFix, vLn))
    if cwarm:
        p('; pull a 512 B slice of this kernel text into L2 (value unused)')
        p('s_getpc_b64 s[62:63]')
        p.label('L_pc')
        p('s_lshr_b32 s3, s2, 3')
        p('s_lshl_b32 s3, s3, 1')
        p('s_add_u32 s3, s3, s%d' % sW)
        p('s_lshl_b32 s3, s3, 9')
        p('v_lshl_add_u32 v%d, v0, 3, s3' % vEr)
        p('v_min_u32 v%d, L_last-L_pc-8, v%d' % (vEr, vEr))
        p('v_mov_b32 v%d, s63' % (vEr + 1))
        p('v_add_co_u32 v%d, vcc, s62, v%d' % (vEr, vEr))
        p('v_addc_co_u32 v%d, vcc, 0, v%d, vcc' % (vEr + 1, vEr + 1))
        p('global_load_dword v%d, v[%d:%d], off' % (vDum, vEr, vEr + 1))
    if hm:
        p('s_lshr_b32 s3, s%d, 20' % sHd)
        p('s_lshl_b32 s%d, s3, 20' % sTmp)
        p('s_lshl_b32 s3, s3, 11')
    else:
        p('s_lshl_b32 s%d, s2, 20' % sTmp)
        p('s_lshl_b32 s3, s2, 11')
    for s, n in ((sX, 0x100000), (sQ, 2048), (sO, 2048)):
        p('s_mov_b32 s%d, 0x%x' % (s + 2, n))
        p('s_mov_b32 s%d, 0x20000' % (s + 3))
    if m0early == 1:
        mark(0)
    p('s_waitcnt lgkmcnt(0)')
    if not m0early:
        mark(0)
    if rt:
        p('s_add_u32 s46, s%d, 0x200000' % sWs)
        p('s_addc_u32 s47, s%d, 0' % (sWs + 1))
        p('s_lshl_b32 s63, s2, 1')
        p('s_add_u32 s63, s63, s%d' % sW)
        p('s_lshl_b32 s63, s63, 2')
        p('s_load_dword s%d, s[46:47], s63' % sFix)
        p('s_load_dwordx16 s[64:79], s[46:47], 0x1000')
        p('s_load_dword s80, s[46:47], 0x1104')
        p('s_lshl_b32 s63, s2, 2')
        p('s_add_u32 s63, s63, 0x1c00')
        p('s_load_dword s81, s[46:47], s63')
        p('v_lshlrev_b32 v%d, 2, v0' % vT1)
        p('v_add_u32 v%d, 0x1800, v%d' % (vT1, vT1))
        p('global_load_dword v%d, v%d, s[46:47]' % (vLv, vT1))
        p('global_load_dword v%d, v%d, s[46:47] offset:256' % (vLn, vT1))
        p('s_waitcnt vmcnt(0) lgkmcnt(0)')
        p('s_memrealtime s[40:41]')
        p('v_xor_b32 v%d, s%d, v%d' % (vBase, sFix, vLn))
        p('s_and_b32 s81, s81, 255')
        p('s_lshl_b32 s%d, s81, 20' % sTmp)
        p('s_lshl_b32 s3, s81, 11')
    p('s_add_u32 s%d, s6, s%d' % (sX, sTmp))
    p('s_addc_u32 s%d, s7, 0' % (sX + 1))
    for j in range(qpos):
        issue(j)
    p('s_add_u32 s%d, s4, s3' % sQ)
    p('s_addc_u32 s%d, s5, 0' % (sQ + 1))
    p('buffer_load_dwordx4 %s, v%d, s[%d:%d], 0 offen' % (r4(vQ), vT0, sQ, sQ + 3))
    p('buffer_load_dwordx4 %s, v%d, s[%d:%d], 0 offen offset:32' % (r4(vQ + 4), vT0, sQ, sQ + 3))
    n0 = n0 or N
    for j in range(qpos, n0):
        issue(j)
    if m0early == 2:
        mark(0)
    p('s_add_u32 s%d, s36, s%d' % (sVb, sTmp))
    p('s_addc_u32 s%d, s37, 0' % (sVb + 1))
    p('s_add_u32 s%d, s38, s3' % sO)
    p('s_addc_u32 s%d, s39, 0' % (sO + 1))
    if diag_map:
        p('s_getreg_b32 s46, hwreg(HW_REG_XCC_ID)')
        p('s_sub_u32 s46, s46, s2')
        p('s_and_b32 s46, s46, 7')
        p('s_lshl_b32 s46, 1, s46')
        p('s_atomic_or s46, s[44:45], 0x0')
    if twarm < 0:
        touch()
    if cps:
        p('; rank counters: one word per (checkpoint, wave, group of 8 workgroups); entry value = base')
        for ci in range(len(cps)):
            mul = [0, 1, 4, 3, 5, 2, 7, 9][ci]
            p('s_and_b32 s%d, s2, 7' % sTmp)
            p('s_mul_i32 s%d, s%d, %d' % (sTmp, sTmp, mul))
            p('s_lshr_b32 s3, s2, 3')
            p('s_xor_b32 s3, s3, s%d' % sTmp)
            p('s_and_b32 s3, s3, 31')
            if G == 8:
                p('s_lshl_b32 s%d, s%d, 5' % (sTmp, sW))
                p('s_or_b32 s3, s3, s%d' % sTmp)
            p('s_mul_i32 s3, s3, %d' % cstride)
            p('s_add_u32 s%d, s3, 0x%x' % (sCw + 2 * ci, wsoff + ci * 64 * cstride))
            if nobase:
                p('s_mov_b32 s%d, 0' % (sCw + 2 * ci + 1))
            else:
                p('s_load_dword s%d, s[%d:%d], s%d glc' % (sCw + 2 * ci + 1, sWs, sWs + 1, sCw + 2 * ci))
        p('s_mov_b32 s%d, %d' % (sEvt, twarm if twarm > 0 else cps[0][0]))
        p('s_mov_b32 s%d, %d' % (sSt, -1 if twarm > 0 else 0))
        p('s_mov_b32 s%d, 0' % sTill)
        p('s_mov_b32 s%d, %d' % (sMod, N))
    c = math.log2(math.e) / math.sqrt(128.0)
    p('s_mov_b32 s%d, 0x%08x' % (sC, f32bits(c)))
    p('s_mov_b32 s%d, 0x05040100' % sSelLo)
    p('s_mov_b32 s%d, 0x07060302' % sSelHi)
    p('s_mov_b32 s%d, 0' % sBi)
    if bal and not rt:
        p('s_xor_b32 s%d, s%d, 0x%x' % (sNx, sFix, mT[0]))
    p('s_mov_b32 s%d, %d' % (sCnt, IT))
    if not rt:
        p('; V lanes: (row = lane>>4, i = lane&15) read 16 B at row + 16 i')
        p('v_and_b32 v%d, 15, v0' % vLv)
        p('v_lshlrev_b32 v%d, 4, v%d' % (vLv, vLv))
        for k in range(2):
            p('v_bfe_i32 v%d, v0, %d, 1' % (vT1, 4 + k))
            p('v_and_b32 v%d, 0x%x, v%d' % (vT1, mL[k], vT1))
            p('v_xor_b32 v%d, v%d, v%d' % (vLv, vLv, vT1))
    p('s_lshl_b32 s%d, s%d, 16' % (sTmp, sW))
    p('v_lshl_add_u32 v%d, v0, 4, s%d' % (vSa, sTmp))
    p('v_mov_b32 v%d, 0xff800000' % vM)
    p('v_mov_b32 v%d, 0' % vL)
    if epi != 2:
        p('v_cndmask_b32 v%d, -1, 0, s[%d:%d]' % (vMA, sH, sH + 1))
        p('v_cndmask_b32 v%d, 0, -1, s[%d:%d]' % (vMB, sH, sH + 1))
    for i in range(32):
        p('v_mov_b32 v%d, 0' % (vO + i))
    if epi == 2:
        p('s_lshl_b32 s3, s%d, 11' % sW)
        p('s_add_u32 s3, s3, %d' % XB)
        p('v_lshl_add_u32 v%d, v0, 4, s3' % vEw)
        p('v_xor_b32 v%d, 0x800, v%d' % (vEr, vEw))
        p('v_and_b32 v%d, 7, v0' % vT0)
        p('s_lshl_b32 s3, s%d, 6' % sW)
        p('s_add_u32 s3, s3, %d' % ML)
        p('v_lshl_add_u32 v%d, v%d, 3, s3' % (vEm, vT0))
        p('v_xor_b32 v%d, 64, v%d' % (vEl, vEm))
        p('v_lshrrev_b32 v%d, 4, v0' % vT1)
        p('v_lshlrev_b32 v%d, 6, v%d' % (vT1, vT1))
        p('v_lshl_add_u32 v%d, v%d, 8, v%d' % (vEo, vT0, vT1))
        p('v_bfe_u32 v%d, v0, 3, 1' % vT1)
        p('v_lshl_add_u32 v%d, v%d, 4, v%d' % (vEo, vT1, vEo))
        p('s_lshl_b32 s3, s%d, 5' % sW)
        p('v_add_u32 v%d, s3, v%d' % (vEo, vEo))
    else:
        p('v_and_b32 v%d, 15, v0' % vT0)
        p('v_mul_u32_u24 v%d, %d, v%d' % (vEw, QS, vT0))
        p('v_lshrrev_b32 v%d, 4, v0' % vT1)
        p('v_lshl_add_u32 v%d, v%d, 4, v%d' % (vEw, vT1, vEw))
        p('v_add_u32 v%d, s%d, v%d' % (vEw, sTmp, vEw))
        p('s_lshl_b32 s3, s%d, 2' % sW)
        p('v_add_u32 v%d, s3, v%d' % (vT1, vT1))
        p('v_mul_u32_u24 v%d, %d, v%d' % (vEr, QS, vT1))
        p('v_lshl_add_u32 v%d, v%d, 2, v%d' % (vEr, vT0, vEr))
        p('v_add_u32 v%d, %d, v%d' % (vEr + 1, HS, vEr))
        p('v_add_u32 v%d, %d, v%d' % (vEr + 2, WS, vEr))
        p('v_add_u32 v%d, %d, v%d' % (vEr + 3, WS + HS, vEr))
        p('v_lshlrev_b32 v%d, 4, v%d' % (vEl, vT1))
        p('v_add_u32 v%d, %d, v%d' % (vEl, ML, vEl))
        p('v_lshlrev_b32 v%d, 8, v%d' % (vEo, vT1))
        p('v_lshl_add_u32 v%d, v%d, 4, v%d' % (vEo, vT0, vEo))
        p('v_and_b32 v%d, 7, v0' % vT0)
        p('s_lshl_b32 s3, s%d, 3' % sW)
        p('s_add_u32 s3, s3, %d' % ML)
        p('v_lshl_add_u32 v%d, v%d, 4, s3' % (vEm, vT0))
    if stamp == 2:
        p('s_waitcnt vmcnt(%d)' % (N - 1))
        mark(1)
        p('s_waitcnt lgkmcnt(0)')

    if qpos:
        p('s_waitcnt vmcnt(%d)' % (n0 - qpos))
    if n0 != N:
        p('s_branch L_K%d' % n0)

    def ab(i):
        d, t = vD + 8 * (i & 1), vAB + 2 * (i & 1)
        p('v_add_f32 v%d, v%d, v%d' % (t, d + 0, d + 6))
        p('v_add_f32 v%d, v%d, v%d' % (t + 1, d + 1, d + 7))

    def dpp(i):
        t = vAB + 2 * (i & 1)
        if i < 8:
            p('v_add_f32_dpp v%d, v%d, v%d row_ror:8 row_mask:0xf bank_mask:0x3' % (vS + i, t + 1, t))
        else:
            p('v_add_f32_dpp v%d, v%d, v%d row_ror:8 row_mask:0xf bank_mask:0xc' % (vS + i - 8, t, t + 1))

    def cross(ph):
        p('s_cmp_eq_u32 s%d, 1' % sCnt)
        if ph == 'K':
            p('s_cselect_b32 s%d, s%d, s%d' % (sX, sVb, sX))
            p('s_cselect_b32 s%d, s%d, s%d' % (sX + 1, sVb + 1, sX + 1))
            p('s_cselect_b64 vcc, -1, 0')
            p('v_cndmask_b32 v%d, v%d, v%d, vcc' % (vLn, vLn, vLv))
        else:
            p('s_cselect_b32 s%d, 0, s%d' % (sX + 2, sX + 2))
        p('v_xor_b32 v%d, s%d, v%d' % (vBase, sNx, vLn))

    def nextoff(sreg):
        p('s_mov_b32 s%d, s%d' % (sNx, sFix))
        for k, m in enumerate(mT):
            p('s_bitcmp1_b32 s%d, %d' % (sreg, k))
            p('s_cselect_b32 s3, 0x%x, 0' % m)
            p('s_xor_b32 s%d, s%d, s3' % (sNx, sNx))

    def ahead():
        if bal and not rt:
            p('s_add_u32 s%d, s%d, 1' % (sTmp, sBi))
            nextoff(sTmp)

    def head(ph, n, i):
        f = fk if ph == 'K' else fv
        if i == 0:
            addr(n)
            p('s_waitcnt vmcnt(%d)' % (n - 1))
            load(n)
            p.label('L_%s%d_a' % (ph, n))
            if f:
                issue(n + 1)
            p('s_add_u32 s%d, s%d, 1' % (sBi, sBi))
            if rt:
                p('s_xor_b32 s%d, s%d, s80' % (sNx, sFix))
                p('s_lshl_b32 s3, s%d, 2' % sBi)
                p('s_add_u32 s3, s3, 0x1104')
                p('s_load_dword s80, s[46:47], s3')
            elif not bal:
                nextoff(sBi)
            return
        if f and i == f:
            p('s_waitcnt vmcnt(%d)' % n)
            return
        wide = 1 if i < f else 0
        j = i + n + wide
        if j == 16:
            cross(ph)
        addr(j)
        p('s_waitcnt vmcnt(%d)' % (n - 1 + wide))
        load(j)

    def decide(n):
        p('s_sub_u32 s%d, s%d, 1' % (sCnt, sCnt))
        if dyn:
            p('s_cmp_lt_u32 s%d, s%d' % (sBi, sTill))
            p('s_cselect_b32 s%d, s%d, %d' % (sGo, sMod, N))
            p('s_xor_b32 s%d, s%d, %d' % (sGo, sGo, n))
            p('s_cmp_eq_u32 s%d, 0' % sCnt)
            p('s_cselect_b32 s%d, 1, s%d' % (sGo, sGo))
            p('s_cmp_eq_u32 s%d, s%d' % (sBi, sEvt))
            p('s_cselect_b32 s%d, 1, s%d' % (sGo, sGo))

    def tail(ph, n, exit_label):
        if stamp == 3:
            p('s_memrealtime s[42:43]')
            p('s_waitcnt lgkmcnt(0)')
            p('s_sub_u32 s3, s%d, 1' % sBi)
            p('s_mov_b32 m0, s3')
            p('s_lshl_b32 s42, s42, 4')
            p('s_or_b32 s42, s42, %d' % n)
            p('v_writelane_b32 v190, s42, m0')
        if not dyn:
            p('s_cmp_lg_u32 s%d, 0' % sCnt)
            p('s_cbranch_scc1 L_%s%d' % (ph, n))
            p('s_branch %s' % exit_label)
            return
        p('s_cmp_eq_u32 s%d, 0' % sGo)
        p('s_cbranch_scc1 L_%s%d' % (ph, n))
        p('s_cmp_eq_u32 s%d, 0' % sCnt)
        if ph == 'V':
            p('s_cbranch_scc1 %s' % exit_label)
        p('s_cmp_lg_u32 s%d, s%d' % (sBi, sEvt))
        p('s_cbranch_scc1 L_%s%d_c' % (ph, n))
        p('s_call_b64 s[%d:%d], L_ctl' % (sRet, sRet + 1))
        p.label('L_%s%d_c' % (ph, n))
        if ph == 'K':
            p('s_cmp_eq_u32 s%d, 0' % sCnt)
            p('s_cbranch_scc1 %s' % exit_label)
        p('s_cmp_lt_u32 s%d, s%d' % (sBi, sTill))
        p('s_cselect_b32 s%d, s%d, %d' % (sTgt, sMod, N))
        if n < nhi:
            p('s_cmp_gt_u32 s%d, %d' % (sTgt, n))
            p('s_cbranch_scc1 L_%s%d_up' % (ph, n))
        if n > nlo:
            p('s_cmp_ge_u32 s%d, %d' % (sTgt, n))
            p('s_cbranch_scc1 L_%s%d' % (ph, n))
            p('s_waitcnt vmcnt(%d)' % (n - 1))
            p('s_branch L_%s%d_a' % (ph, n - 1))
        else:
            p('s_branch L_%s%d' % (ph, n))
        if n < nhi:
            p.label('L_%s%d_up' % (ph, n))
            issue(n)
            p('s_branch L_%s%d' % (ph, n + 1))

    def kbody(n):
        p('.p2align %d' % al)
        for _ in range(pad):
            p('s_nop 0')
        p.label('L_K%d' % n)
        p('; K tile, %d loads in flight' % n)
        for i in range(16):
            head('K', n, i)
            d = vD + 8 * (i & 1)
            p('v_mfma_f32_16x16x32_bf16 %s, %s, %s, 0' % (r4(d), r4(vR + 4 * i), r4(vQ)))
            p('v_mfma_f32_16x16x32_bf16 %s, %s, %s, 0' % (r4(d + 4), r4(vR + 4 * i), r4(vQ + 4)))
            if i >= 2:
                dpp(i - 2)
            if i >= 1:
                ab(i - 1)
            if i == 11:
                ahead()
            if i == 12:
                decide(n)
            if i == 14 and rt:
                p('s_waitcnt lgkmcnt(0)')
        dpp(14)
        ab(15)
        p('v_max3_f32 v%d, v%d, v%d, v%d' % (vM, vM, vS, vS + 1))
        p('v_max3_f32 v%d, v%d, v%d, v%d' % (vM, vM, vS + 2, vS + 3))
        dpp(15)
        p('ds_write_b128 v%d, %s' % (vSa, r4(vS)))
        p('v_max3_f32 v%d, v%d, v%d, v%d' % (vM, vM, vS + 4, vS + 5))
        p('v_max3_f32 v%d, v%d, v%d, v%d' % (vM, vM, vS + 6, vS + 7))
        p('ds_write_b128 v%d, %s offset:1024' % (vSa, r4(vS + 4)))
        p('v_add_u32 v%d, 2048, v%d' % (vSa, vSa))
        tail('K', n, 'L_T%d' % n)

    lw = 0 if rt else 1 + lw2

    def trans(n):
        p.label('L_T%d' % n)
        p('v_subrev_u32 v%d, %d, v%d' % (vSa, IT * 2048, vSa))
        mark(2)
        p('ds_read_b128 %s, v%d' % (r4(vS), vSa))
        p('ds_read_b128 %s, v%d offset:1024' % (r4(vS + 4), vSa))
        p('ds_read_b32 v%d, v%d' % (vDum, vSa))
        if lw2:
            p('ds_read_b32 v%d, v%d' % (vDum, vSa))
        p('v_max_f32_dpp v%d, v%d, v%d row_ror:8 row_mask:0xf bank_mask:0xf' % (vM, vM, vM))
        p('s_mov_b32 s%d, %d' % (sCnt, IT))
        p('v_mov_b32 v%d, v%d' % (vT1, vM))
        p('v_permlane32_swap_b32 v%d, v%d' % (vM, vT1))
        p('v_max_f32 v%d, v%d, v%d' % (vM, vM, vT1))
        p('v_mov_b32 v%d, v%d' % (vT1, vM))
        p('v_permlane16_swap_b32 v%d, v%d' % (vM, vT1))
        p('v_max_f32 v%d, v%d, v%d' % (vM, vM, vT1))
        p('s_waitcnt lgkmcnt(%d)' % (0 if stamp > 1 else lw))
        if bal:
            for x in scale():
                p(x)

    def scale():
        return (['v_sub_f32 v%d, v%d, v%d' % (vS + e, vS + e, vM) for e in range(8)] +
                ['v_mul_f32 v%d, s%d, v%d' % (vS + e, sC, vS + e) for e in range(8)])

    def vbody(n):
        extra = {i: [] for i in range(16)}
        if bal:
            extra[0] += ['v_exp_f32 v%d, v%d' % (vS + e, vS + e) for e in range(5)]
            extra[2] += ['v_exp_f32 v%d, v%d' % (vS + e, vS + e) for e in range(5, 8)]
        else:
            extra[0] += scale()
            extra[2] += ['v_exp_f32 v%d, v%d' % (vS + e, vS + e) for e in range(8)]
        extra[2] += ['v_add_f32 v%d, v%d, v%d' % (vT0, vS, vS + 1), 'v_add_f32 v%d, v%d, v%d' % (vT1, vS + 2, vS + 3)]
        if epi == 2:
            extra[4] += ['v_cvt_pk_bf16_f32 v%d, v%d, v%d' % (vQ + w, vS + 2 * w, vS + 2 * w + 1) for w in range(4)]
            extra[4] += ['v_cvt_pk_bf16_f32 v%d, v%d, v%d' % (vP + w, vS + 2 * w, vS + 2 * w + 1) for w in range(4)]
        else:
            extra[4] += ['v_cvt_pk_bf16_f32 v%d, v%d, v%d' % (vP + w, vS + 2 * w, vS + 2 * w + 1) for w in range(4)]
        extra[4] += ['v_add_f32 v%d, v%d, v%d' % (vT0, vT0, vS + 4), 'v_add_f32 v%d, v%d, v%d' % (vT1, vT1, vS + 5),
                     'v_add_f32 v%d, v%d, v%d' % (vT0, vT0, vS + 6), 'v_add_f32 v%d, v%d, v%d' % (vT1, vT1, vS + 7),
                     'v_add_f32 v%d, v%d, v%d' % (vL, vL, vT0), 'v_add_f32 v%d, v%d, v%d' % (vL, vL, vT1)]
        extra[6] += ['v_add_u32 v%d, 2048, v%d' % (vSa, vSa),
                     'ds_read_b128 %s, v%d' % (r4(vS), vSa),
                     'ds_read_b128 %s, v%d offset:1024' % (r4(vS + 4), vSa),
                     'ds_read_b32 v%d, v%d' % (vDum, vSa)] + ['ds_read_b32 v%d, v%d' % (vDum, vSa)] * lw2
        if epi == 2:
            extra[6] += ['v_mov_b32_dpp v%d, v%d row_ror:8 row_mask:0xf bank_mask:0xc' % (vQ + w, vQ + w) for w in range(4)]
            extra[10] += ['v_mov_b32_dpp v%d, v%d row_ror:8 row_mask:0xf bank_mask:0x3' % (vP + w, vP + w) for w in range(4)]
        else:
            extra[6] += ['v_and_b32 v%d, v%d, v%d' % (vQ + w, vMA, vP + w) for w in range(4)]
            extra[10] += ['v_and_b32 v%d, v%d, v%d' % (vQ + 4 + w, vMB, vP + w) for w in range(4)]
        extra[12] += ['s_cmp_lg_u32 s%d, 1' % sCnt, 's_cbranch_scc1 L_V%d_l' % n,
                      's_call_b64 s[%d:%d], L_sum' % (sRet, sRet + 1), 'L_V%d_l:' % n]
        extra[14] += ['s_waitcnt lgkmcnt(%d)' % lw] + (scale() if bal else [])

        def mf(pb, ms):
            return ['v_mfma_f32_16x16x32_bf16 %s, %s, %s, %s' % (r4(vO + 4 * m), r4(vVt + 4 * m), r4(pb), r4(vO + 4 * m))
                    for m in ms]
        extra[7] += mf(vQ, range(0, 4))
        extra[8] += mf(vQ, range(4, 8))
        extra[15] += mf(vP if epi == 2 else vQ + 4, range(0, 8))
        p('.p2align %d' % al)
        for _ in range(pad):
            p('s_nop 0')
        p.label('L_V%d' % n)
        p('; V tile, %d loads in flight' % n)
        for i in range(16):
            head('V', n, i)
            if i & 1:
                w = (i & 7) >> 1
                a = vR + 4 * (i - 1)
                for u in range(4):
                    p('v_perm_b32 v%d, v%d, v%d, s%d' % (vVt + 8 * u + w, a + 4 + u, a + u, sSelLo))
                    p('v_perm_b32 v%d, v%d, v%d, s%d' % (vVt + 8 * u + 4 + w, a + 4 + u, a + u, sSelHi))
            for x in extra[i]:
                p(x)
            if i == 10:
                ahead()
            if i == 12:
                decide(n)
        tail('V', n, 'L_epi')

    assert nhi + (1 if fk or fv else 0) <= 14 and nlo >= 7
    order = [N] + [n for n in range(nlo, nhi + 1) if n != N]
    for n in order:
        kbody(n)
    for n in order[::-1]:
        trans(n)
        vbody(n)

    def lsum():
        p.label('L_sum')
        p('s_nop 1')
        p('v_add_f32_dpp v%d, v%d, v%d row_ror:8 row_mask:0xf bank_mask:0xf' % (vL, vL, vL))
        p('v_mov_b32 v%d, v%d' % (vAB, vM))
        p('v_mov_b32 v%d, v%d' % (vT1, vL))
        p('v_permlane32_swap_b32 v%d, v%d' % (vL, vT1))
        p('v_add_f32 v%d, v%d, v%d' % (vL, vL, vT1))
        p('v_mov_b32 v%d, v%d' % (vT1, vL))
        p('v_permlane16_swap_b32 v%d, v%d' % (vL, vT1))
        p('v_add_f32 v%d, v%d, v%d' % (vAB + 1, vL, vT1))
        p('ds_write_b64 v%d, v[%d:%d]' % (vEm, vAB, vAB + 1))
        p('s_setpc_b64 s[%d:%d]' % (sRet, sRet + 1))

    if sumfirst:
        lsum()
    p.label('L_epi')
    mark(3)
    if epi == 2:
        vSn, vKp, vRc, vA = vVt, vVt + 8, vVt + 16, vVt + 24
        p('; wave w keeps rows r = 2w + h of every 4-row group and hands the other pair to its partner')
        p('s_cmp_lg_u32 s%d, 0' % sW)
        p('s_cbranch_scc1 L_epi1')
        for w in range(2):
            if w:
                p.label('L_epi1')
            o, k = 2 * (1 - w), 2 * w
            for hb in range(2):
                for m in range(4 * hb, 4 * hb + 4):
                    p('v_cndmask_b32 v%d, v%d, v%d, s[%d:%d]' % (vSn + m, vO + 4 * m + o, vO + 4 * m + o + 1, sH, sH + 1))
                p('ds_write_b128 v%d, %s offset:%d' % (vEw, r4(vSn + 4 * hb), 1024 * hb))
            for m in range(8):
                p('v_cndmask_b32 v%d, v%d, v%d, s[%d:%d]' % (vKp + m, vO + 4 * m + k, vO + 4 * m + k + 1, sH, sH + 1))
            if not w:
                p('s_branch L_epi2')
        p.label('L_epi2')
        p('s_waitcnt lgkmcnt(0)')
        p('s_barrier')
        mark(4)
        p('ds_read_b64 v[%d:%d], v%d' % (vA, vA + 1, vEl))
        p('ds_read_b128 %s, v%d' % (r4(vRc), vEr))
        p('ds_read_b128 %s, v%d offset:1024' % (r4(vRc + 4), vEr))
        p('s_waitcnt lgkmcnt(%d)' % (0 if stamp == 2 else 2))
        p('v_max_f32 v%d, v%d, v%d' % (vT1, vA, vAB))
        p('v_sub_f32 v%d, v%d, v%d' % (vA, vA, vT1))
        p('v_sub_f32 v%d, v%d, v%d' % (vAB, vAB, vT1))
        p('v_mul_f32 v%d, s%d, v%d' % (vA, sC, vA))
        p('v_mul_f32 v%d, s%d, v%d' % (vAB, sC, vAB))
        p('v_exp_f32 v%d, v%d' % (vA, vA))
        p('v_exp_f32 v%d, v%d' % (vAB, vAB))
        p('v_mul_f32 v%d, v%d, v%d' % (vL, vA, vA + 1))
        p('v_fmac_f32 v%d, v%d, v%d' % (vL, vAB, vAB + 1))
        p('v_rcp_f32 v%d, v%d' % (vL, vL))
        p('v_mul_f32 v%d, v%d, v%d' % (vAB, vAB, vL))
        p('v_mul_f32 v%d, v%d, v%d' % (vA, vA, vL))
        for m in range(8):
            p('v_mul_f32 v%d, v%d, v%d' % (vKp + m, vAB, vKp + m))
        p('s_waitcnt lgkmcnt(0)')
        for m in range(8):
            p('v_fmac_f32 v%d, v%d, v%d' % (vKp + m, vA, vRc + m))
        for k in range(4):
            p('v_cvt_pk_bf16_f32 v%d, v%d, v%d' % (vS + k, vKp + 2 * k, vKp + 2 * k + 1))
        p('buffer_store_dwordx4 %s, v%d, s[%d:%d], 0 offen%s' % (r4(vS), vEo, sO, sO + 3, ofl))
    else:
        for m in range(8):
            p('ds_write_b128 v%d, %s offset:%d' % (vEw, r4(vO + 4 * m), m * MS))
        p('s_waitcnt lgkmcnt(0)')
        p('s_barrier')
        mark(4)
        vA, vRd = vVt, vO
        p('ds_read_b128 %s, v%d' % (r4(vA), vEl))
        for pp in range(4):
            for k in range(4):
                dst = vRd + pp * 8 + 2 * k
                p('ds_read2_b32 v[%d:%d], v%d offset0:%d offset1:%d' %
                  (dst, dst + 1, vEr + pp, 2 * k * MS // 4, (2 * k + 1) * MS // 4))
        p('s_waitcnt lgkmcnt(%d)' % (0 if stamp > 1 else 15))
        p('v_max_f32 v%d, v%d, v%d' % (vT1, vA, vA + 2))
        p('v_sub_f32 v%d, v%d, v%d' % (vA, vA, vT1))
        p('v_sub_f32 v%d, v%d, v%d' % (vA + 2, vA + 2, vT1))
        p('v_mul_f32 v%d, s%d, v%d' % (vA, sC, vA))
        p('v_mul_f32 v%d, s%d, v%d' % (vA + 2, sC, vA + 2))
        p('v_exp_f32 v%d, v%d' % (vA, vA))
        p('v_exp_f32 v%d, v%d' % (vA + 2, vA + 2))
        p('v_mul_f32 v%d, v%d, v%d' % (vL, vA, vA + 1))
        p('v_fmac_f32 v%d, v%d, v%d' % (vL, vA + 2, vA + 3))
        p('v_rcp_f32 v%d, v%d' % (vL, vL))
        p('s_waitcnt lgkmcnt(%d)' % (0 if stamp > 1 else 8))
        for k in range(8):
            p('v_add_f32 v%d, v%d, v%d' % (vRd + k, vRd + k, vRd + 8 + k))
        p('v_mul_f32 v%d, v%d, v%d' % (vA, vA, vL))
        p('v_mul_f32 v%d, v%d, v%d' % (vA + 2, vA + 2, vL))
        for k in range(8):
            p('v_mul_f32 v%d, v%d, v%d' % (vS + k, vA, vRd + k))
        p('s_waitcnt lgkmcnt(0)')
        for k in range(8):
            p('v_add_f32 v%d, v%d, v%d' % (vRd + 16 + k, vRd + 16 + k, vRd + 24 + k))
        for k in range(8):
            p('v_fmac_f32 v%d, v%d, v%d' % (vS + k, vA + 2, vRd + 16 + k))
        for k in range(4):
            p('v_cvt_pk_bf16_f32 v%d, v%d, v%d' % (vP + k, vS + 2 * k, vS + 2 * k + 1))
        p('buffer_store_dwordx4 %s, v%d, s[%d:%d], 0 offen%s' % (r4(vP), vEo, sO, sO + 3, ofl))
    if diag_map:
        p('s_mov_b32 s47, 0')
        p('s_atomic_or s47, s[44:45], 0x0 glc')
        p('s_waitcnt lgkmcnt(0)')
        p('s_bcnt1_i32_b32 s47, s47')
        p('s_cmp_le_u32 s47, 1')
        p('s_cbranch_scc1 L_end')
    if diag_hold:
        p.label('L_hold')
        p('s_sleep 1')
        p('s_memrealtime s[42:43]')
        p('s_waitcnt lgkmcnt(0)')
        p('s_sub_u32 s42, s42, s40')
        p('s_cmp_lt_u32 s42, %d' % (diag_hold * 100))
        p('s_cbranch_scc1 L_hold')
    if stamp:
        p('s_memrealtime s[42:43]')
        p('s_waitcnt lgkmcnt(0)')
        p('s_getreg_b32 s46, hwreg(HW_REG_XCC_ID)')
        p('s_lshl_b32 s%d, s2, 1' % sTmp)
        p('s_add_u32 s%d, s%d, s%d' % (sTmp, sTmp, sW))
        p('s_lshl_b32 s%d, s%d, 5' % (sTmp, sTmp))
        p('v_mov_b32 v%d, s%d' % (vT0, sTmp))
        for i, s in enumerate((40, 41, 42, 43)):
            p('v_mov_b32 v%d, s%d' % (vVt + i, s))
        p('v_mov_b32 v%d, s46' % (vVt + 4))
        p('v_mov_b32 v%d, %d' % (vVt + 5, W))
        if stamp == 3:
            p('s_lshl_b32 s3, s%d, 3' % sTmp)
            p('s_add_u32 s3, s3, 0x100000')
            p('v_lshl_add_u32 v%d, v0, 2, s3' % vT1)
            p('global_store_dword v%d, v190, s[%d:%d]' % (vT1, sWs, sWs + 1))
        p('s_mov_b64 exec, 1')
        p('global_store_dwordx4 v%d, %s, s[%d:%d]' % (vT0, r4(vVt), sWs, sWs + 1))
        p('global_store_dwordx2 v%d, v[%d:%d], s[%d:%d] offset:16' % (vT0, vVt + 4, vVt + 5, sWs, sWs + 1))
        if stamp == 2:
            p('v_lshlrev_b32 v%d, 2, v%d' % (vT0, vT0))
            p('v_add_u32 v%d, 0x100000, v%d' % (vT0, vT0))
            for k in range(5):
                p('v_mov_b32 v%d, s%d' % (vD + k, 90 + 2 * k))
            p('global_store_dwordx4 v%d, %s, s[%d:%d]' % (vT0, r4(vD), sWs, sWs + 1))
            p('global_store_dword v%d, v%d, s[%d:%d] offset:16' % (vT0, vD + 4, sWs, sWs + 1))
    p.label('L_end')
    p('s_endpgm')

    if not sumfirst:
        lsum()

    if cps:
        p.label('L_ctl')
        p('s_add_u32 s%d, s%d, 1' % (sSt, sSt))
        if twarm > 0:
            p('s_cmp_lg_u32 s%d, 0' % sSt)
            p('s_cbranch_scc1 L_ctl_w')
            touch()
            p('s_mov_b32 s%d, %d' % (sEvt, cps[0][0]))
            p('s_setpc_b64 s[%d:%d]' % (sRet, sRet + 1))
            p.label('L_ctl_w')
        for ci, (kb, sc, cdn, cR) in enumerate(cps):
            end = (cps[ci + 1][0] if ci + 1 < len(cps) else TB - 1)
            p('s_cmp_lg_u32 s%d, %d' % (sSt, 2 * ci + 1))
            p('s_cbranch_scc1 L_ctl_a%d' % ci)
            p('s_mov_b32 s%d, 1' % sRk)
            if w0only:
                p('s_cmp_lg_u32 s%d, 0' % sW)
                p('s_cbranch_scc1 L_ctl_s%d' % ci)
            if not noat:
                p('s_atomic_add s%d, s[%d:%d], s%d glc' % (sRk, sWs, sWs + 1, sCw + 2 * ci))
            if w0only:
                p.label('L_ctl_s%d' % ci)
            p('s_mov_b32 s%d, %d' % (sEvt, kb + lag))
            p('s_setpc_b64 s[%d:%d]' % (sRet, sRet + 1))
            p.label('L_ctl_a%d' % ci)
            p('s_cmp_lg_u32 s%d, %d' % (sSt, 2 * ci + 2))
            p('s_cbranch_scc1 L_ctl_b%d' % ci)
            p('s_waitcnt lgkmcnt(0)')
            p('s_sub_u32 s%d, s%d, s%d' % (sRk, sRk, sCw + 2 * ci + 1))
            p('s_mov_b32 s%d, %d' % (sEvt, cps[ci + 1][0] if ci + 1 < len(cps) else 255))
            p('s_and_b32 s%d, s%d, 0xff' % (sRk, sRk))
            p('s_cmp_ge_u32 s%d, %d' % (sRk, G // 2))
            p('s_cselect_b32 s%d, %d, %d' % (sX3, 4 * sc, cdn * sc))
            p('s_mov_b32 s%d, %d' % (sRr, cR))
            p('s_mov_b32 s%d, %d' % (sTill, end))
            p('s_branch L_ctl_set')
            p.label('L_ctl_b%d' % ci)
        p('s_setpc_b64 s[%d:%d]' % (sRet, sRet + 1))
        p.label('L_ctl_set')
        zs = (0.165, 0.51, 0.93, 1.78) if G == 8 else (0.09, 0.26, 0.44, 0.64, 0.85, 1.11, 1.45, 2.05)
        wt = sum(int(round(16 * z)) << (8 * i) for i, z in enumerate(zs))
        p('s_min_u32 s%d, s%d, %d' % (sRk, sRk, G - 1))
        p('s_sub_i32 s%d, %d, s%d' % (sX1, G // 2 - 1, sRk))
        p('s_sub_i32 s%d, s%d, %d' % (sU, sRk, G // 2))
        p('s_max_i32 s%d, s%d, s%d' % (sU, sU, sX1))
        p('s_lshl_b32 s%d, s%d, 3' % (sU, sU))
        if G == 8:
            p('s_mov_b32 s%d, 0x%08x' % (sTmp, wt))
            p('s_lshr_b32 s%d, s%d, s%d' % (sU, sTmp, sU))
        else:
            p('s_mov_b32 s62, 0x%08x' % (wt & 0xffffffff))
            p('s_mov_b32 s63, 0x%08x' % (wt >> 32))
            p('s_lshr_b64 s[62:63], s[62:63], s%d' % sU)
            p('s_mov_b32 s%d, s62' % sU)
        p('s_and_b32 s%d, s%d, 0xff' % (sU, sU))
        p('s_mul_i32 s%d, s%d, s%d' % (sU, sU, sX3))
        p('s_cmp_ge_u32 s%d, %d' % (sRk, G // 2))
        p('s_cselect_b32 s%d, %d, %d' % (sX1, act, -act))
        p('s_add_u32 s%d, s%d, 32' % (sU, sU))
        p('s_lshr_b32 s%d, s%d, 6' % (sU, sU))
        if amp > 1:
            p('s_cmp_gt_u32 s%d, s%d' % (sU, sRr))
            p('s_cselect_b32 s%d, 1, 0' % sTmp)
            p('s_lshr_b32 s%d, s%d, s%d' % (sU, sU, sTmp))
            p('s_lshl_b32 s%d, s%d, s%d' % (sX1, sX1, sTmp))
        p('s_add_i32 s%d, s%d, %d' % (sMod, sX1, N))
        p('s_add_u32 s%d, s%d, s%d' % (sU, sU, sBi))
        p('s_min_u32 s%d, s%d, s%d' % (sTill, sTill, sU))
        p('s_setpc_b64 s[%d:%d]' % (sRet, sRet + 1))
    p.label('L_last')
    p('s_endpgm')
    p.fix_hazards()
    mv, ma, ms = p.max_regs()
    nvg = mv + 1
    acc = min(256, (nvg + 3) // 4 * 4)
    txt = HEADER + '; @launch grid=(256,1,1) block=(128,1,1) lds=%d\n' % lds
    txt += '.amdgcn_target "amdgcn-amd-amdhsa--gfx950"\n.text\n.globl %s\n.p2align 8\n.type %s,@function\n%s:\n' % (
        KNAME, KNAME, KNAME)
    txt += p.text()
    txt += """.section .rodata,"a"
.p2align 6
.amdhsa_kernel %s
  .amdhsa_next_free_vgpr %d
  .amdhsa_next_free_sgpr %d
  .amdhsa_accum_offset %d
  .amdhsa_group_segment_fixed_size 0
  .amdhsa_kernarg_size 48
  .amdhsa_user_sgpr_count 2
  .amdhsa_user_sgpr_kernarg_segment_ptr 1
  .amdhsa_system_sgpr_workgroup_id_x 1
.end_amdhsa_kernel
""" % (KNAME, nvg, ms + 1, acc)
    return txt


if __name__ == '__main__':
    kw = {}
    for a in sys.argv[2:]:
        k, v = a.split('=')
        try:
            v = int(v, 0)
        except ValueError:
            pass
        kw[k] = v
    open(sys.argv[1], 'w').write(gen(**kw))
```

```python
import math
import sys
sys.path.insert(0, 'work')
from asmlib import Prog
from gen_attn import KNAME, f32bits

PATS = {
    'B': '100 200 400 800 1000 2000 4000 8000 10000 20000 40000 80000 0 0 0 0 0 0 0 0',
    'C2': '100 200 800 8000 1000 2000 4000 10000 20000 40000 80000 400 0 0 0 0 0 0 0 0',
    'S1': '2000 100 400 8100 1000 200 800 10200 80000 20000 40800 4000 0 0 0 0 0 0 0 0',
    'S2': '2000 4000 8100 200 1000 100 800 10000 80000 20000 400 40800 0 0 0 0 0 0 0 0',
    'F': '8800 a00 1ba00 8b00 72b00 12000 1e000 11300 c9200 4b000 9c900 43f00 70000 1c800 be000 6800 9d800 48000 b000 79800',
    'F3': 'a00 1b000 8b00 12000 72b00 1e000 8800 11300 c9200 4b000 94100 43f00 70000 18800 ac000 6800 95800 48000 b000 69000',
    'S3': '100 200 2000 8000 1000 400 800 10200 80000 20400 40000 4000 0 0 0 0 0 0 0 0',
    'S4': '4000 2000 1000 8100 100 800 200 10200 80000 40800 20400 400 0 0 0 0 0 0 0 0',
    'S5': 'a100 400 8100 11200 1600 9b00 a8100 10200 20000 100 43d00 84100 0 0 0 0 0 0 0 0',
    'F30': 'a00 1b000 8b00 12000 72b00 1e000 8800 11300 c9200 4b000 94100 43f00 0 0 0 0 0 0 0 0',
    'F2': 'a00 1b000 8b00 72b00 12000 1e000 8800 11300 c9200 4b000 94100 43f00 70000 18800 ac000 6800 95800 48000 b000 69000',
}

HEADER = """; GQA decode attention (B=16, Hq=32, Hkv=16, Sq=4, Sk=4096, D=128), bf16 in / bf16 out.
;
;   phase V : P = exp2((S - max) * log2e / sqrt(D)), V transposed in registers with v_perm,
; loop exists once per depth; at four checkpoints a wave takes a ticket from a counter in ws shared
; with seven peers and deepens (late) or shortens (early) its prefetch for a few tiles, so that all
"""


def dep(x, ms):
    r = 0
    for k, m in enumerate(ms):
        if x >> k & 1:
            r ^= m
    return r


def gen(N=10, amp=2, pol='nt', pat='F3', chk='24:8:2:6,35:8:2:12,50:6:2:5,57:6:2:5', R=12, dn=2, lag=1, act=1, wsoff=0,
        stamp=0, diag_hold=0, opol='', alt=0, noat=0, nobase=0, lw2=0, w0only=0, cstride=256, fk=4, fv=6, al=3, pad=0, cwarm=1, epi=2, m0early=0, qpos=2, G=8, bal=1, twarm=0, tw='vo', n0=0, sumfirst=1, scr='', hmap='', diag_map=0, rotb=0, xfix=0x43f00, inv=1):
    W, IT = 2, 32
    TB = 2 * IT
    cps = [tuple(int(v) for v in e.split(':')) for e in chk.split(',') if e] if chk else []
    cps = [c + (dn, R)[len(c) - 2:] for c in cps]
    nlo = N - amp if cps else N
    nhi = N + amp if cps else N
    dyn = nhi > nlo
    rt = pat == 'rt'
    pm = [int(x, 16) for x in PATS.get('B' if rt else pat, pat.replace('_', ' ')).split()]
    mL, mW, mS = pm[0:2], pm[5:6], pm[12:20]
    hm = pm[20:28] if len(pm) >= 28 and pm[20:28] != [1 << k for k in range(8)] else []
    sHd = 81
    seq = pm[2:5] + pm[6:12]
    mJ, mT = seq[:4], seq[4:]
    p = Prog()
    vLn, vLv, vT0, vT1, vM, vL, vSa = 1, 2, 3, 4, 5, 6, 7
    vAB = 8
    vP = 12
    vQ = 16
    vS = 24
    vD = 32
    vVt = 48
    vO = 80
    vR = 112
    vMA, vMB, vBase, vAd = 176, 177, 178, 179
    vEw, vEm, vEr, vEl, vEo, vDum = 181, 182, 184, 183, 188, 189
    vLs, vKs, vSs = 191, 192, 200
    inv = inv and bool(cps) and epi == 2
    HALF = IT + IT // 2
    sX, sQ, sO, sVb = 8, 16, 20, 12
    sCnt, sW, sC, sSelLo, sSelHi, sTmp, sTgt = 26, 27, 28, 29, 30, 31, 32
    sH = 34
    sFix, sNx, sBi = 24, 25, 33
    sEvt, sTill, sMod, sRk, sX1, sX3, sU, sSt = 50, 51, 52, 53, 54, 55, 56, 57
    sRet, sWs, sGo, sRr = 58, 48, 60, 61
    sCw = 82
    fl = (' ' + pol.replace('+', ' ')) if pol else ''
    ofl = (' ' + opol.replace('+', ' ')) if opol else ''
    QS, MS = 656, 80
    HS = 8 * QS
    WS = 65536
    ML = 131072 + 2048
    XB = ML + 2048 if epi == 2 else 0
    XB = (XB + 4095) // 4096 * 4096
    lds = XB + 4096 if epi == 2 else ML + 128

    def r4(b):
        return 'v[%d:%d]' % (b, b + 3)

    def mark(k):
        if stamp == 2:
            p('s_memrealtime s[%d:%d]' % (90 + 2 * k, 91 + 2 * k))

    def addr(j):
        c = dep(j % 16, mJ)
        if rt:
            p('v_xor_b32 v%d, s%d, v%d' % (vAd + (j & 1), 64 + j % 16, vBase))
        elif c:
            p('v_xor_b32 v%d, 0x%x, v%d' % (vAd + (j & 1), c, vBase))

    def load(j):
        va = vAd + (j & 1) if (rt or dep(j % 16, mJ)) else vBase
        p('buffer_load_dwordx4 %s, v%d, s[%d:%d], 0 offen%s' % (r4(vR + 4 * (j % 16)), va, sX, sX + 3, fl))

    def issue(j):
        addr(j)
        load(j)

    def touch():
        p('; address-translation warm-up for pages first used later (values are never read)')
        if 'v' in tw:
            p('s_load_dword s62, s[%d:%d], 0' % (sVb, sVb + 1))
        if 'o' in tw:
            p('s_load_dword s63, s[%d:%d], 0' % (sO, sO + 1))

    p('s_cmp_ge_u32 s2, 256')
    p('s_cbranch_scc1 L_end')
    if rotb:
        p('s_sub_u32 s2, s2, %d' % rotb)
        p('s_and_b32 s2, s2, 255')
    for e in (scr.split(',') if scr else []):
        bit, mask = e.split(':')
        p('s_bitcmp1_b32 s2, %s' % bit)
        p('s_cselect_b32 s3, 0x%s, 0' % mask)
        p('s_xor_b32 s2, s2, s3')
    p('s_load_dwordx4 s[4:7], s[0:1], 0')
    p('s_load_dwordx4 s[36:39], s[0:1], 16')
    if cps or stamp:
        p('s_load_dwordx2 s[%d:%d], s[0:1], 40' % (sWs, sWs + 1))
    if diag_map:
        p('s_load_dwordx2 s[44:45], s[0:1], 32')
    if stamp or diag_hold:
        p('s_memrealtime s[40:41]')
    p('v_lshrrev_b32 v%d, 6, v0' % vT0)
    p('v_and_b32 v0, 63, v0')
    p('v_readfirstlane_b32 s%d, v%d' % (sW, vT0))
    p('v_lshrrev_b32 v%d, 4, v0' % vT0)
    p('v_lshlrev_b32 v%d, 6, v%d' % (vT0, vT0))
    p('v_and_b32 v%d, 3, v0' % vT1)
    p('v_lshl_add_u32 v%d, v%d, 4, v%d' % (vLn, vT1, vT0))
    for k in range(2):
        p('v_bfe_i32 v%d, v0, %d, 1' % (vT1, 2 + k))
        p('v_and_b32 v%d, 0x%x, v%d' % (vT1, mL[k], vT1))
        p('v_xor_b32 v%d, v%d, v%d' % (vLn, vLn, vT1))
    p('; Q lanes: (s, h = (lane>>3)&1, q = lane&7) read 16 B at q*256 + (4 s + h) * 16, and 32 B further')
    p('v_and_b32 v%d, 7, v0' % vT1)
    p('v_lshl_add_u32 v%d, v%d, 8, v%d' % (vT0, vT1, vT0))
    p('v_bfe_u32 v%d, v0, 3, 1' % vT1)
    p('v_lshl_add_u32 v%d, v%d, 4, v%d' % (vT0, vT1, vT0))
    p('v_cmp_ne_u32 s[%d:%d], 0, v%d' % (sH, sH + 1, vT1))
    p('s_mov_b32 s%d, 0' % sFix)
    if hm:
        p('; bits 20..27 accumulate the head index (a linear bijection of the workgroup id), lower bits the start row')
        mS = [m | (h << 20) for m, h in zip(mS, hm)]
    for src, ms in ((sW, mW), (2, mS)):
        for k, m in enumerate(ms):
            if m:
                p('s_bitcmp1_b32 s%d, %d' % (src, k))
                p('s_cselect_b32 s3, 0x%x, 0' % m)
                p('s_xor_b32 s%d, s%d, s3' % (sFix, sFix))
    if xfix:
        p('; start in the other half of the row order when the die half differs from head bit 2 (speed only)')
        p('s_getreg_b32 s3, hwreg(HW_REG_XCC_ID)')
        p('s_xor_b32 s3, s3, s2')
        p('s_bitcmp1_b32 s3, 2')
        p('s_cselect_b32 s3, 0x%x, 0' % xfix)
        p('s_xor_b32 s%d, s%d, s3' % (sFix, sFix))
    if hm:
        p('s_mov_b32 s%d, s%d' % (sHd, sFix))
        p('s_and_b32 s%d, s%d, 0xfffff' % (sFix, sFix))
    p('v_xor_b32 v%d, s%d, v%d' % (vBase, sFix, vLn))
    if cwarm:
        p('; pull a 512 B slice of this kernel text into L2 (value unused)')
        p('s_getpc_b64 s[62:63]')
        p.label('L_pc')
        p('s_lshr_b32 s3, s2, 3')
        p('s_lshl_b32 s3, s3, 1')
        p('s_add_u32 s3, s3, s%d' % sW)
        p('s_lshl_b32 s3, s3, 9')
        p('v_lshl_add_u32 v%d, v0, 3, s3' % vEr)
        p('v_min_u32 v%d, L_last-L_pc-8, v%d' % (vEr, vEr))
        p('v_mov_b32 v%d, s63' % (vEr + 1))
        p('v_add_co_u32 v%d, vcc, s62, v%d' % (vEr, vEr))
        p('v_addc_co_u32 v%d, vcc, 0, v%d, vcc' % (vEr + 1, vEr + 1))
        p('global_load_dword v%d, v[%d:%d], off' % (vDum, vEr, vEr + 1))
    if hm:
        p('s_lshr_b32 s3, s%d, 20' % sHd)
        p('s_lshl_b32 s%d, s3, 20' % sTmp)
        p('s_lshl_b32 s3, s3, 11')
    else:
        p('s_lshl_b32 s%d, s2, 20' % sTmp)
        p('s_lshl_b32 s3, s2, 11')
    for s, n in ((sX, 0x100000), (sQ, 2048), (sO, 2048)):
        p('s_mov_b32 s%d, 0x%x' % (s + 2, n))
        p('s_mov_b32 s%d, 0x20000' % (s + 3))
    if m0early == 1:
        mark(0)
    p('s_waitcnt lgkmcnt(0)')
    if not m0early:
        mark(0)
    if rt:
        p('s_add_u32 s46, s%d, 0x200000' % sWs)
        p('s_addc_u32 s47, s%d, 0' % (sWs + 1))
        p('s_lshl_b32 s63, s2, 1')
        p('s_add_u32 s63, s63, s%d' % sW)
        p('s_lshl_b32 s63, s63, 2')
        p('s_load_dword s%d, s[46:47], s63' % sFix)
        p('s_load_dwordx16 s[64:79], s[46:47], 0x1000')
        p('s_load_dword s80, s[46:47], 0x1104')
        p('s_lshl_b32 s63, s2, 2')
        p('s_add_u32 s63, s63, 0x1c00')
        p('s_load_dword s81, s[46:47], s63')
        p('v_lshlrev_b32 v%d, 2, v0' % vT1)
        p('v_add_u32 v%d, 0x1800, v%d' % (vT1, vT1))
        p('global_load_dword v%d, v%d, s[46:47]' % (vLv, vT1))
        p('global_load_dword v%d, v%d, s[46:47] offset:256' % (vLn, vT1))
        p('s_waitcnt vmcnt(0) lgkmcnt(0)')
        p('s_memrealtime s[40:41]')
        p('v_xor_b32 v%d, s%d, v%d' % (vBase, sFix, vLn))
        p('s_and_b32 s81, s81, 255')
        p('s_lshl_b32 s%d, s81, 20' % sTmp)
        p('s_lshl_b32 s3, s81, 11')
    p('s_add_u32 s%d, s6, s%d' % (sX, sTmp))
    p('s_addc_u32 s%d, s7, 0' % (sX + 1))
    for j in range(qpos):
        issue(j)
    p('s_add_u32 s%d, s4, s3' % sQ)
    p('s_addc_u32 s%d, s5, 0' % (sQ + 1))
    p('buffer_load_dwordx4 %s, v%d, s[%d:%d], 0 offen' % (r4(vQ), vT0, sQ, sQ + 3))
    p('buffer_load_dwordx4 %s, v%d, s[%d:%d], 0 offen offset:32' % (r4(vQ + 4), vT0, sQ, sQ + 3))
    n0 = n0 or N
    for j in range(qpos, n0):
        issue(j)
    if m0early == 2:
        mark(0)
    p('s_add_u32 s%d, s36, s%d' % (sVb, sTmp))
    p('s_addc_u32 s%d, s37, 0' % (sVb + 1))
    p('s_add_u32 s%d, s38, s3' % sO)
    p('s_addc_u32 s%d, s39, 0' % (sO + 1))
    if diag_map:
        p('s_getreg_b32 s46, hwreg(HW_REG_XCC_ID)')
        p('s_sub_u32 s46, s46, s2')
        p('s_and_b32 s46, s46, 7')
        p('s_lshl_b32 s46, 1, s46')
        p('s_atomic_or s46, s[44:45], 0x0')
    if twarm < 0:
        touch()
    if cps:
        p('; rank counters: one word per (checkpoint, wave, group of 8 workgroups); entry value = base')
        for ci in range(len(cps)):
            mul = [0, 1, 4, 3, 5, 2, 7, 9][ci]
            p('s_and_b32 s%d, s2, 7' % sTmp)
            p('s_mul_i32 s%d, s%d, %d' % (sTmp, sTmp, mul))
            p('s_lshr_b32 s3, s2, 3')
            p('s_xor_b32 s3, s3, s%d' % sTmp)
            p('s_and_b32 s3, s3, 31')
            if G == 8:
                p('s_lshl_b32 s%d, s%d, 5' % (sTmp, sW))
                p('s_or_b32 s3, s3, s%d' % sTmp)
            p('s_mul_i32 s3, s3, %d' % cstride)
            p('s_add_u32 s%d, s3, 0x%x' % (sCw + 2 * ci, wsoff + ci * 64 * cstride))
            if nobase:
                p('s_mov_b32 s%d, 0' % (sCw + 2 * ci + 1))
            else:
                p('s_load_dword s%d, s[%d:%d], s%d glc' % (sCw + 2 * ci + 1, sWs, sWs + 1, sCw + 2 * ci))
        p('s_mov_b32 s%d, %d' % (sEvt, twarm if twarm > 0 else cps[0][0]))
        p('s_mov_b32 s%d, %d' % (sSt, -1 if twarm > 0 else 0))
        p('s_mov_b32 s%d, 0' % sTill)
        p('s_mov_b32 s%d, %d' % (sMod, N))
    c = math.log2(math.e) / math.sqrt(128.0)
    p('s_mov_b32 s%d, 0x%08x' % (sC, f32bits(c)))
    p('s_mov_b32 s%d, 0x05040100' % sSelLo)
    p('s_mov_b32 s%d, 0x07060302' % sSelHi)
    p('s_mov_b32 s%d, 0' % sBi)
    if bal and not rt:
        p('s_xor_b32 s%d, s%d, 0x%x' % (sNx, sFix, mT[0]))
    p('s_mov_b32 s%d, %d' % (sCnt, IT))
    if not rt:
        p('; V lanes: (row = lane>>4, i = lane&15) read 16 B at row + 16 i')
        p('v_and_b32 v%d, 15, v0' % vLv)
        p('v_lshlrev_b32 v%d, 4, v%d' % (vLv, vLv))
        for k in range(2):
            p('v_bfe_i32 v%d, v0, %d, 1' % (vT1, 4 + k))
            p('v_and_b32 v%d, 0x%x, v%d' % (vT1, mL[k], vT1))
            p('v_xor_b32 v%d, v%d, v%d' % (vLv, vLv, vT1))
    p('s_lshl_b32 s%d, s%d, 16' % (sTmp, sW))
    p('v_lshl_add_u32 v%d, v0, 4, s%d' % (vSa, sTmp))
    p('v_mov_b32 v%d, 0xff800000' % vM)
    p('v_mov_b32 v%d, 0' % vL)
    if epi != 2:
        p('v_cndmask_b32 v%d, -1, 0, s[%d:%d]' % (vMA, sH, sH + 1))
        p('v_cndmask_b32 v%d, 0, -1, s[%d:%d]' % (vMB, sH, sH + 1))
    for i in range(32):
        p('v_mov_b32 v%d, 0' % (vO + i))
    if epi == 2:
        p('s_lshl_b32 s3, s%d, 11' % sW)
        p('s_add_u32 s3, s3, %d' % XB)
        p('v_lshl_add_u32 v%d, v0, 4, s3' % vEw)
        p('v_xor_b32 v%d, 0x800, v%d' % (vEr, vEw))
        p('v_and_b32 v%d, 7, v0' % vT0)
        p('s_lshl_b32 s3, s%d, 6' % sW)
        p('s_add_u32 s3, s3, %d' % ML)
        p('v_lshl_add_u32 v%d, v%d, 3, s3' % (vEm, vT0))
        p('v_xor_b32 v%d, 64, v%d' % (vEl, vEm))
        p('v_lshrrev_b32 v%d, 4, v0' % vT1)
        p('v_lshlrev_b32 v%d, 6, v%d' % (vT1, vT1))
        p('v_lshl_add_u32 v%d, v%d, 8, v%d' % (vEo, vT0, vT1))
        p('v_bfe_u32 v%d, v0, 3, 1' % vT1)
        p('v_lshl_add_u32 v%d, v%d, 4, v%d' % (vEo, vT1, vEo))
        p('s_lshl_b32 s3, s%d, 5' % sW)
        p('v_add_u32 v%d, s3, v%d' % (vEo, vEo))
    else:
        p('v_and_b32 v%d, 15, v0' % vT0)
        p('v_mul_u32_u24 v%d, %d, v%d' % (vEw, QS, vT0))
        p('v_lshrrev_b32 v%d, 4, v0' % vT1)
        p('v_lshl_add_u32 v%d, v%d, 4, v%d' % (vEw, vT1, vEw))
        p('v_add_u32 v%d, s%d, v%d' % (vEw, sTmp, vEw))
        p('s_lshl_b32 s3, s%d, 2' % sW)
        p('v_add_u32 v%d, s3, v%d' % (vT1, vT1))
        p('v_mul_u32_u24 v%d, %d, v%d' % (vEr, QS, vT1))
        p('v_lshl_add_u32 v%d, v%d, 2, v%d' % (vEr, vT0, vEr))
        p('v_add_u32 v%d, %d, v%d' % (vEr + 1, HS, vEr))
        p('v_add_u32 v%d, %d, v%d' % (vEr + 2, WS, vEr))
        p('v_add_u32 v%d, %d, v%d' % (vEr + 3, WS + HS, vEr))
        p('v_lshlrev_b32 v%d, 4, v%d' % (vEl, vT1))
        p('v_add_u32 v%d, %d, v%d' % (vEl, ML, vEl))
        p('v_lshlrev_b32 v%d, 8, v%d' % (vEo, vT1))
        p('v_lshl_add_u32 v%d, v%d, 4, v%d' % (vEo, vT0, vEo))
        p('v_and_b32 v%d, 7, v0' % vT0)
        p('s_lshl_b32 s3, s%d, 3' % sW)
        p('s_add_u32 s3, s3, %d' % ML)
        p('v_lshl_add_u32 v%d, v%d, 4, s3' % (vEm, vT0))
    if stamp == 2:
        p('s_waitcnt vmcnt(%d)' % (N - 1))
        mark(1)
        p('s_waitcnt lgkmcnt(0)')

    if qpos:
        p('s_waitcnt vmcnt(%d)' % (n0 - qpos))
    if n0 != N:
        p('s_branch L_K%d' % n0)

    def ab(i):
        d, t = vD + 8 * (i & 1), vAB + 2 * (i & 1)
        p('v_add_f32 v%d, v%d, v%d' % (t, d + 0, d + 6))
        p('v_add_f32 v%d, v%d, v%d' % (t + 1, d + 1, d + 7))

    def dpp(i):
        t = vAB + 2 * (i & 1)
        if i < 8:
            p('v_add_f32_dpp v%d, v%d, v%d row_ror:8 row_mask:0xf bank_mask:0x3' % (vS + i, t + 1, t))
        else:
            p('v_add_f32_dpp v%d, v%d, v%d row_ror:8 row_mask:0xf bank_mask:0xc' % (vS + i - 8, t, t + 1))

    def cross(ph):
        p('s_cmp_eq_u32 s%d, 1' % sCnt)
        if ph == 'K':
            p('s_cselect_b32 s%d, s%d, s%d' % (sX, sVb, sX))
            p('s_cselect_b32 s%d, s%d, s%d' % (sX + 1, sVb + 1, sX + 1))
            p('s_cselect_b64 vcc, -1, 0')
            p('v_cndmask_b32 v%d, v%d, v%d, vcc' % (vLn, vLn, vLv))
        else:
            p('s_cselect_b32 s%d, 0, s%d' % (sX + 2, sX + 2))
        p('v_xor_b32 v%d, s%d, v%d' % (vBase, sNx, vLn))

    def nextoff(sreg):
        p('s_mov_b32 s%d, s%d' % (sNx, sFix))
        for k, m in enumerate(mT):
            p('s_bitcmp1_b32 s%d, %d' % (sreg, k))
            p('s_cselect_b32 s3, 0x%x, 0' % m)
            p('s_xor_b32 s%d, s%d, s3' % (sNx, sNx))

    def ahead():
        if bal and not rt:
            p('s_add_u32 s%d, s%d, 1' % (sTmp, sBi))
            nextoff(sTmp)

    def head(ph, n, i):
        f = fk if ph == 'K' else fv
        if i == 0:
            addr(n)
            p('s_waitcnt vmcnt(%d)' % (n - 1))
            load(n)
            p.label('L_%s%d_a' % (ph, n))
            if f:
                issue(n + 1)
            p('s_add_u32 s%d, s%d, 1' % (sBi, sBi))
            if rt:
                p('s_xor_b32 s%d, s%d, s80' % (sNx, sFix))
                p('s_lshl_b32 s3, s%d, 2' % sBi)
                p('s_add_u32 s3, s3, 0x1104')
                p('s_load_dword s80, s[46:47], s3')
            elif not bal:
                nextoff(sBi)
            return
        if f and i == f:
            p('s_waitcnt vmcnt(%d)' % n)
            return
        wide = 1 if i < f else 0
        j = i + n + wide
        if j == 16:
            cross(ph)
        addr(j)
        p('s_waitcnt vmcnt(%d)' % (n - 1 + wide))
        load(j)

    def decide(n):
        p('s_sub_u32 s%d, s%d, 1' % (sCnt, sCnt))
        if dyn:
            p('s_cmp_lt_u32 s%d, s%d' % (sBi, sTill))
            p('s_cselect_b32 s%d, s%d, %d' % (sGo, sMod, N))
            p('s_xor_b32 s%d, s%d, %d' % (sGo, sGo, n))
            p('s_cmp_eq_u32 s%d, 0' % sCnt)
            p('s_cselect_b32 s%d, 1, s%d' % (sGo, sGo))
            p('s_cmp_eq_u32 s%d, s%d' % (sBi, sEvt))
            p('s_cselect_b32 s%d, 1, s%d' % (sGo, sGo))

    def tail(ph, n, exit_label):
        if stamp == 3:
            p('s_memrealtime s[42:43]')
            p('s_waitcnt lgkmcnt(0)')
            p('s_sub_u32 s3, s%d, 1' % sBi)
            p('s_mov_b32 m0, s3')
            p('s_lshl_b32 s42, s42, 4')
            p('s_or_b32 s42, s42, %d' % n)
            p('v_writelane_b32 v190, s42, m0')
        if not dyn:
            p('s_cmp_lg_u32 s%d, 0' % sCnt)
            p('s_cbranch_scc1 L_%s%d' % (ph, n))
            p('s_branch %s' % exit_label)
            return
        p('s_cmp_eq_u32 s%d, 0' % sGo)
        p('s_cbranch_scc1 L_%s%d' % (ph, n))
        p('s_cmp_eq_u32 s%d, 0' % sCnt)
        if ph == 'V':
            p('s_cbranch_scc1 %s' % exit_label)
        p('s_cmp_lg_u32 s%d, s%d' % (sBi, sEvt))
        p('s_cbranch_scc1 L_%s%d_c' % (ph, n))
        p('s_call_b64 s[%d:%d], L_ctl' % (sRet, sRet + 1))
        p.label('L_%s%d_c' % (ph, n))
        if ph == 'K':
            p('s_cmp_eq_u32 s%d, 0' % sCnt)
            p('s_cbranch_scc1 %s' % exit_label)
        p('s_cmp_lt_u32 s%d, s%d' % (sBi, sTill))
        p('s_cselect_b32 s%d, s%d, %d' % (sTgt, sMod, N))
        if n < nhi:
            p('s_cmp_gt_u32 s%d, %d' % (sTgt, n))
            p('s_cbranch_scc1 L_%s%d_up' % (ph, n))
        if n > nlo:
            p('s_cmp_ge_u32 s%d, %d' % (sTgt, n))
            p('s_cbranch_scc1 L_%s%d' % (ph, n))
            p('s_waitcnt vmcnt(%d)' % (n - 1))
            p('s_branch L_%s%d_a' % (ph, n - 1))
        else:
            p('s_branch L_%s%d' % (ph, n))
        if n < nhi:
            p.label('L_%s%d_up' % (ph, n))
            issue(n)
            p('s_branch L_%s%d' % (ph, n + 1))

    def kbody(n):
        p('.p2align %d' % al)
        for _ in range(pad):
            p('s_nop 0')
        p.label('L_K%d' % n)
        p('; K tile, %d loads in flight' % n)
        for i in range(16):
            head('K', n, i)
            d = vD + 8 * (i & 1)
            p('v_mfma_f32_16x16x32_bf16 %s, %s, %s, 0' % (r4(d), r4(vR + 4 * i), r4(vQ)))
            p('v_mfma_f32_16x16x32_bf16 %s, %s, %s, 0' % (r4(d + 4), r4(vR + 4 * i), r4(vQ + 4)))
            if i >= 2:
                dpp(i - 2)
            if i >= 1:
                ab(i - 1)
            if i == 11:
                ahead()
            if i == 12:
                decide(n)
            if i == 14 and rt:
                p('s_waitcnt lgkmcnt(0)')
        dpp(14)
        ab(15)
        p('v_max3_f32 v%d, v%d, v%d, v%d' % (vM, vM, vS, vS + 1))
        p('v_max3_f32 v%d, v%d, v%d, v%d' % (vM, vM, vS + 2, vS + 3))
        dpp(15)
        p('ds_write_b128 v%d, %s' % (vSa, r4(vS)))
        p('v_max3_f32 v%d, v%d, v%d, v%d' % (vM, vM, vS + 4, vS + 5))
        p('v_max3_f32 v%d, v%d, v%d, v%d' % (vM, vM, vS + 6, vS + 7))
        p('ds_write_b128 v%d, %s offset:1024' % (vSa, r4(vS + 4)))
        p('v_add_u32 v%d, 2048, v%d' % (vSa, vSa))
        tail('K', n, 'L_T%d' % n)

    lw = 0 if rt else 1 + lw2

    def trans(n):
        p.label('L_T%d' % n)
        p('v_subrev_u32 v%d, %d, v%d' % (vSa, IT * 2048, vSa))
        mark(2)
        p('ds_read_b128 %s, v%d' % (r4(vS), vSa))
        p('ds_read_b128 %s, v%d offset:1024' % (r4(vS + 4), vSa))
        p('ds_read_b32 v%d, v%d' % (vDum, vSa))
        if lw2:
            p('ds_read_b32 v%d, v%d' % (vDum, vSa))
        p('v_max_f32_dpp v%d, v%d, v%d row_ror:8 row_mask:0xf bank_mask:0xf' % (vM, vM, vM))
        p('s_mov_b32 s%d, %d' % (sCnt, IT))
        p('v_mov_b32 v%d, v%d' % (vT1, vM))
        p('v_permlane32_swap_b32 v%d, v%d' % (vM, vT1))
        p('v_max_f32 v%d, v%d, v%d' % (vM, vM, vT1))
        p('v_mov_b32 v%d, v%d' % (vT1, vM))
        p('v_permlane16_swap_b32 v%d, v%d' % (vM, vT1))
        p('v_max_f32 v%d, v%d, v%d' % (vM, vM, vT1))
        p('s_waitcnt lgkmcnt(%d)' % (0 if stamp > 1 else lw))
        if bal:
            for x in scale():
                p(x)

    def scale():
        return (['v_sub_f32 v%d, v%d, v%d' % (vS + e, vS + e, vM) for e in range(8)] +
                ['v_mul_f32 v%d, s%d, v%d' % (vS + e, sC, vS + e) for e in range(8)])

    def vbody(n):
        extra = {i: [] for i in range(16)}
        if bal:
            extra[0] += ['v_exp_f32 v%d, v%d' % (vS + e, vS + e) for e in range(5)]
            extra[2] += ['v_exp_f32 v%d, v%d' % (vS + e, vS + e) for e in range(5, 8)]
        else:
            extra[0] += scale()
            extra[2] += ['v_exp_f32 v%d, v%d' % (vS + e, vS + e) for e in range(8)]
        extra[2] += ['v_add_f32 v%d, v%d, v%d' % (vT0, vS, vS + 1), 'v_add_f32 v%d, v%d, v%d' % (vT1, vS + 2, vS + 3)]
        if epi == 2:
            extra[4] += ['v_cvt_pk_bf16_f32 v%d, v%d, v%d' % (vQ + w, vS + 2 * w, vS + 2 * w + 1) for w in range(4)]
            extra[4] += ['v_cvt_pk_bf16_f32 v%d, v%d, v%d' % (vP + w, vS + 2 * w, vS + 2 * w + 1) for w in range(4)]
        else:
            extra[4] += ['v_cvt_pk_bf16_f32 v%d, v%d, v%d' % (vP + w, vS + 2 * w, vS + 2 * w + 1) for w in range(4)]
        extra[4] += ['v_add_f32 v%d, v%d, v%d' % (vT0, vT0, vS + 4), 'v_add_f32 v%d, v%d, v%d' % (vT1, vT1, vS + 5),
                     'v_add_f32 v%d, v%d, v%d' % (vT0, vT0, vS + 6), 'v_add_f32 v%d, v%d, v%d' % (vT1, vT1, vS + 7),
                     'v_add_f32 v%d, v%d, v%d' % (vL, vL, vT0), 'v_add_f32 v%d, v%d, v%d' % (vL, vL, vT1)]
        extra[6] += ['v_add_u32 v%d, 2048, v%d' % (vSa, vSa),
                     'ds_read_b128 %s, v%d' % (r4(vS), vSa),
                     'ds_read_b128 %s, v%d offset:1024' % (r4(vS + 4), vSa),
                     'ds_read_b32 v%d, v%d' % (vDum, vSa)] + ['ds_read_b32 v%d, v%d' % (vDum, vSa)] * lw2
        if epi == 2:
            extra[6] += ['v_mov_b32_dpp v%d, v%d row_ror:8 row_mask:0xf bank_mask:0xc' % (vQ + w, vQ + w) for w in range(4)]
            extra[10] += ['v_mov_b32_dpp v%d, v%d row_ror:8 row_mask:0xf bank_mask:0x3' % (vP + w, vP + w) for w in range(4)]
        else:
            extra[6] += ['v_and_b32 v%d, v%d, v%d' % (vQ + w, vMA, vP + w) for w in range(4)]
            extra[10] += ['v_and_b32 v%d, v%d, v%d' % (vQ + 4 + w, vMB, vP + w) for w in range(4)]
        extra[12] += ['s_cmp_lg_u32 s%d, 1' % sCnt, 's_cbranch_scc1 L_V%d_l' % n,
                      's_call_b64 s[%d:%d], L_sum' % (sRet, sRet + 1), 'L_V%d_l:' % n]
        extra[14] += ['s_waitcnt lgkmcnt(%d)' % lw] + (scale() if bal else [])

        def mf(pb, ms):
            return ['v_mfma_f32_16x16x32_bf16 %s, %s, %s, %s' % (r4(vO + 4 * m), r4(vVt + 4 * m), r4(pb), r4(vO + 4 * m))
                    for m in ms]
        extra[7] += mf(vQ, range(0, 4))
        extra[8] += mf(vQ, range(4, 8))
        extra[15] += mf(vP if epi == 2 else vQ + 4, range(0, 8))
        p('.p2align %d' % al)
        for _ in range(pad):
            p('s_nop 0')
        p.label('L_V%d' % n)
        p('; V tile, %d loads in flight' % n)
        for i in range(16):
            head('V', n, i)
            if i & 1:
                w = (i & 7) >> 1
                a = vR + 4 * (i - 1)
                for u in range(4):
                    p('v_perm_b32 v%d, v%d, v%d, s%d' % (vVt + 8 * u + w, a + 4 + u, a + u, sSelLo))
                    p('v_perm_b32 v%d, v%d, v%d, s%d' % (vVt + 8 * u + 4 + w, a + 4 + u, a + u, sSelHi))
            for x in extra[i]:
                p(x)
            if i == 10:
                ahead()
            if i == 12:
                decide(n)
        tail('V', n, 'L_epi')

    assert nhi + (1 if fk or fv else 0) <= 14 and nlo >= 7
    order = [N] + [n for n in range(nlo, nhi + 1) if n != N]
    for n in order:
        kbody(n)
    for n in order[::-1]:
        trans(n)
        vbody(n)

    def lsum():
        p.label('L_sum')
        if inv:
            p('v_add_f32 v%d, v%d, v%d' % (vL, vL, vLs))
        p('s_nop 1')
        p('v_add_f32_dpp v%d, v%d, v%d row_ror:8 row_mask:0xf bank_mask:0xf' % (vL, vL, vL))
        p('v_mov_b32 v%d, v%d' % (vAB, vM))
        p('v_mov_b32 v%d, v%d' % (vT1, vL))
        p('v_permlane32_swap_b32 v%d, v%d' % (vL, vT1))
        p('v_add_f32 v%d, v%d, v%d' % (vL, vL, vT1))
        p('v_mov_b32 v%d, v%d' % (vT1, vL))
        p('v_permlane16_swap_b32 v%d, v%d' % (vL, vT1))
        p('v_add_f32 v%d, v%d, v%d' % (vAB + 1, vL, vT1))
        p('ds_write_b64 v%d, v[%d:%d]' % (vEm, vAB, vAB + 1))
        p('s_setpc_b64 s[%d:%d]' % (sRet, sRet + 1))

    if sumfirst:
        lsum()
    p.label('L_epi')
    mark(3)
    if epi == 2:
        vSn, vKp, vRc, vA = vVt, vVt + 8, vVt + 16, vVt + 24
        p('; wave w keeps rows r = 2w + h of every 4-row group and hands the other pair to its partner')
        p('s_cmp_lg_u32 s%d, 0' % sW)
        p('s_cbranch_scc1 L_epi1')
        for w in range(2):
            if w:
                p.label('L_epi1')
            o, k = 2 * (1 - w), 2 * w
            for hb in range(2):
                for m in range(4 * hb, 4 * hb + 4):
                    p('v_cndmask_b32 v%d, v%d, v%d, s[%d:%d]' % (vSn + m, vO + 4 * m + o, vO + 4 * m + o + 1, sH, sH + 1))
                for m in range(4 * hb, 4 * hb + 4):
                    if inv:
                        p('v_add_f32 v%d, v%d, v%d' % (vSn + m, vSn + m, vSs + m))
                p('ds_write_b128 v%d, %s offset:%d' % (vEw, r4(vSn + 4 * hb), 1024 * hb))
            for m in range(8):
                p('v_cndmask_b32 v%d, v%d, v%d, s[%d:%d]' % (vKp + m, vO + 4 * m + k, vO + 4 * m + k + 1, sH, sH + 1))
            if not w:
                p('s_branch L_epi2')
        p.label('L_epi2')
        if inv:
            for m in range(8):
                p('v_add_f32 v%d, v%d, v%d' % (vKp + m, vKp + m, vKs + m))
        p('s_waitcnt lgkmcnt(0)')
        p('s_barrier')
        mark(4)
        p('ds_read_b64 v[%d:%d], v%d' % (vA, vA + 1, vEl))
        p('ds_read_b128 %s, v%d' % (r4(vRc), vEr))
        p('ds_read_b128 %s, v%d offset:1024' % (r4(vRc + 4), vEr))
        p('s_waitcnt lgkmcnt(%d)' % (0 if stamp == 2 else 2))
        p('v_max_f32 v%d, v%d, v%d' % (vT1, vA, vAB))
        p('v_sub_f32 v%d, v%d, v%d' % (vA, vA, vT1))
        p('v_sub_f32 v%d, v%d, v%d' % (vAB, vAB, vT1))
        p('v_mul_f32 v%d, s%d, v%d' % (vA, sC, vA))
        p('v_mul_f32 v%d, s%d, v%d' % (vAB, sC, vAB))
        p('v_exp_f32 v%d, v%d' % (vA, vA))
        p('v_exp_f32 v%d, v%d' % (vAB, vAB))
        p('v_mul_f32 v%d, v%d, v%d' % (vL, vA, vA + 1))
        p('v_fmac_f32 v%d, v%d, v%d' % (vL, vAB, vAB + 1))
        p('v_rcp_f32 v%d, v%d' % (vL, vL))
        p('v_mul_f32 v%d, v%d, v%d' % (vAB, vAB, vL))
        p('v_mul_f32 v%d, v%d, v%d' % (vA, vA, vL))
        for m in range(8):
            p('v_mul_f32 v%d, v%d, v%d' % (vKp + m, vAB, vKp + m))
        p('s_waitcnt lgkmcnt(0)')
        for m in range(8):
            p('v_fmac_f32 v%d, v%d, v%d' % (vKp + m, vA, vRc + m))
        for k in range(4):
            p('v_cvt_pk_bf16_f32 v%d, v%d, v%d' % (vS + k, vKp + 2 * k, vKp + 2 * k + 1))
        p('buffer_store_dwordx4 %s, v%d, s[%d:%d], 0 offen%s' % (r4(vS), vEo, sO, sO + 3, ofl))
    else:
        for m in range(8):
            p('ds_write_b128 v%d, %s offset:%d' % (vEw, r4(vO + 4 * m), m * MS))
        p('s_waitcnt lgkmcnt(0)')
        p('s_barrier')
        mark(4)
        vA, vRd = vVt, vO
        p('ds_read_b128 %s, v%d' % (r4(vA), vEl))
        for pp in range(4):
            for k in range(4):
                dst = vRd + pp * 8 + 2 * k
                p('ds_read2_b32 v[%d:%d], v%d offset0:%d offset1:%d' %
                  (dst, dst + 1, vEr + pp, 2 * k * MS // 4, (2 * k + 1) * MS // 4))
        p('s_waitcnt lgkmcnt(%d)' % (0 if stamp > 1 else 15))
        p('v_max_f32 v%d, v%d, v%d' % (vT1, vA, vA + 2))
        p('v_sub_f32 v%d, v%d, v%d' % (vA, vA, vT1))
        p('v_sub_f32 v%d, v%d, v%d' % (vA + 2, vA + 2, vT1))
        p('v_mul_f32 v%d, s%d, v%d' % (vA, sC, vA))
        p('v_mul_f32 v%d, s%d, v%d' % (vA + 2, sC, vA + 2))
        p('v_exp_f32 v%d, v%d' % (vA, vA))
        p('v_exp_f32 v%d, v%d' % (vA + 2, vA + 2))
        p('v_mul_f32 v%d, v%d, v%d' % (vL, vA, vA + 1))
        p('v_fmac_f32 v%d, v%d, v%d' % (vL, vA + 2, vA + 3))
        p('v_rcp_f32 v%d, v%d' % (vL, vL))
        p('s_waitcnt lgkmcnt(%d)' % (0 if stamp > 1 else 8))
        for k in range(8):
            p('v_add_f32 v%d, v%d, v%d' % (vRd + k, vRd + k, vRd + 8 + k))
        p('v_mul_f32 v%d, v%d, v%d' % (vA, vA, vL))
        p('v_mul_f32 v%d, v%d, v%d' % (vA + 2, vA + 2, vL))
        for k in range(8):
            p('v_mul_f32 v%d, v%d, v%d' % (vS + k, vA, vRd + k))
        p('s_waitcnt lgkmcnt(0)')
        for k in range(8):
            p('v_add_f32 v%d, v%d, v%d' % (vRd + 16 + k, vRd + 16 + k, vRd + 24 + k))
        for k in range(8):
            p('v_fmac_f32 v%d, v%d, v%d' % (vS + k, vA + 2, vRd + 16 + k))
        for k in range(4):
            p('v_cvt_pk_bf16_f32 v%d, v%d, v%d' % (vP + k, vS + 2 * k, vS + 2 * k + 1))
        p('buffer_store_dwordx4 %s, v%d, s[%d:%d], 0 offen%s' % (r4(vP), vEo, sO, sO + 3, ofl))
    if diag_map:
        p('s_mov_b32 s47, 0')
        p('s_atomic_or s47, s[44:45], 0x0 glc')
        p('s_waitcnt lgkmcnt(0)')
        p('s_bcnt1_i32_b32 s47, s47')
        p('s_cmp_le_u32 s47, 1')
        p('s_cbranch_scc1 L_end')
    if diag_hold:
        p.label('L_hold')
        p('s_sleep 1')
        p('s_memrealtime s[42:43]')
        p('s_waitcnt lgkmcnt(0)')
        p('s_sub_u32 s42, s42, s40')
        p('s_cmp_lt_u32 s42, %d' % (diag_hold * 100))
        p('s_cbranch_scc1 L_hold')
    if stamp:
        p('s_memrealtime s[42:43]')
        p('s_waitcnt lgkmcnt(0)')
        p('s_getreg_b32 s46, hwreg(HW_REG_XCC_ID)')
        p('s_lshl_b32 s%d, s2, 1' % sTmp)
        p('s_add_u32 s%d, s%d, s%d' % (sTmp, sTmp, sW))
        p('s_lshl_b32 s%d, s%d, 5' % (sTmp, sTmp))
        p('v_mov_b32 v%d, s%d' % (vT0, sTmp))
        for i, s in enumerate((40, 41, 42, 43)):
            p('v_mov_b32 v%d, s%d' % (vVt + i, s))
        p('v_mov_b32 v%d, s46' % (vVt + 4))
        p('v_mov_b32 v%d, %d' % (vVt + 5, W))
        if stamp == 3:
            p('s_lshl_b32 s3, s%d, 3' % sTmp)
            p('s_add_u32 s3, s3, 0x100000')
            p('v_lshl_add_u32 v%d, v0, 2, s3' % vT1)
            p('global_store_dword v%d, v190, s[%d:%d]' % (vT1, sWs, sWs + 1))
        p('s_mov_b64 exec, 1')
        p('global_store_dwordx4 v%d, %s, s[%d:%d]' % (vT0, r4(vVt), sWs, sWs + 1))
        p('global_store_dwordx2 v%d, v[%d:%d], s[%d:%d] offset:16' % (vT0, vVt + 4, vVt + 5, sWs, sWs + 1))
        if stamp == 2:
            p('v_lshlrev_b32 v%d, 2, v%d' % (vT0, vT0))
            p('v_add_u32 v%d, 0x100000, v%d' % (vT0, vT0))
            for k in range(5):
                p('v_mov_b32 v%d, s%d' % (vD + k, 90 + 2 * k))
            p('global_store_dwordx4 v%d, %s, s[%d:%d]' % (vT0, r4(vD), sWs, sWs + 1))
            p('global_store_dword v%d, v%d, s[%d:%d] offset:16' % (vT0, vD + 4, sWs, sWs + 1))
    p.label('L_end')
    p('s_endpgm')

    if not sumfirst:
        lsum()

    if cps:
        p.label('L_ctl')
        p('; event chain: take a ticket / turn the rank into a depth (s52) held until tile s51 / mid-phase hand-over')
        p('s_add_u32 s%d, s%d, 1' % (sSt, sSt))
        if twarm > 0:
            p('s_cmp_lg_u32 s%d, 0' % sSt)
            p('s_cbranch_scc1 L_ctl_w')
            touch()
            p('s_mov_b32 s%d, %d' % (sEvt, cps[0][0]))
            p('s_setpc_b64 s[%d:%d]' % (sRet, sRet + 1))
            p.label('L_ctl_w')
        ev = [(kb, 'take', ci) for ci, (kb, sc, cdn, cR) in enumerate(cps)]
        ev += [(kb + lag, 'set', ci) for ci, (kb, sc, cdn, cR) in enumerate(cps)]
        if inv:
            ev.append((HALF, 'half', 0))
        ev.sort()
        assert len({e[0] for e in ev}) == len(ev) and ev[0][1] == 'take'
        for k, (body, kind, ci) in enumerate(ev):
            nxt = ev[k + 1][0] if k + 1 < len(ev) else 255
            p('s_cmp_lg_u32 s%d, %d' % (sSt, k + 1))
            p('s_cbranch_scc1 L_ctl_%d' % k)
            p('s_mov_b32 s%d, %d' % (sEvt, nxt))
            if kind == 'take':
                p('s_mov_b32 s%d, 1' % sRk)
                if not noat:
                    p('s_atomic_add s%d, s[%d:%d], s%d glc' % (sRk, sWs, sWs + 1, sCw + 2 * ci))
                p('s_setpc_b64 s[%d:%d]' % (sRet, sRet + 1))
            elif kind == 'set':
                kb, sc, cdn, cR = cps[ci]
                end = (cps[ci + 1][0] if ci + 1 < len(cps) else TB - 1)
                p('s_waitcnt lgkmcnt(0)')
                p('s_sub_u32 s%d, s%d, s%d' % (sRk, sRk, sCw + 2 * ci + 1))
                p('s_and_b32 s%d, s%d, 0xff' % (sRk, sRk))
                p('s_cmp_ge_u32 s%d, %d' % (sRk, G // 2))
                p('s_cselect_b32 s%d, %d, %d' % (sX3, 4 * sc, cdn * sc))
                p('s_mov_b32 s%d, %d' % (sRr, cR))
                p('s_mov_b32 s%d, %d' % (sTill, end))
                p('s_branch L_ctl_set')
            else:
                p('s_branch L_half')
            p.label('L_ctl_%d' % k)
        p('s_setpc_b64 s[%d:%d]' % (sRet, sRet + 1))
        p.label('L_ctl_set')
        zs = (0.165, 0.51, 0.93, 1.78) if G == 8 else (0.09, 0.26, 0.44, 0.64, 0.85, 1.11, 1.45, 2.05)
        wt = sum(int(round(16 * z)) << (8 * i) for i, z in enumerate(zs))
        p('s_min_u32 s%d, s%d, %d' % (sRk, sRk, G - 1))
        p('s_sub_i32 s%d, %d, s%d' % (sX1, G // 2 - 1, sRk))
        p('s_sub_i32 s%d, s%d, %d' % (sU, sRk, G // 2))
        p('s_max_i32 s%d, s%d, s%d' % (sU, sU, sX1))
        p('s_lshl_b32 s%d, s%d, 3' % (sU, sU))
        if G == 8:
            p('s_mov_b32 s%d, 0x%08x' % (sTmp, wt))
            p('s_lshr_b32 s%d, s%d, s%d' % (sU, sTmp, sU))
        else:
            p('s_mov_b32 s62, 0x%08x' % (wt & 0xffffffff))
            p('s_mov_b32 s63, 0x%08x' % (wt >> 32))
            p('s_lshr_b64 s[62:63], s[62:63], s%d' % sU)
            p('s_mov_b32 s%d, s62' % sU)
        p('s_and_b32 s%d, s%d, 0xff' % (sU, sU))
        p('s_mul_i32 s%d, s%d, s%d' % (sU, sU, sX3))
        p('s_cmp_ge_u32 s%d, %d' % (sRk, G // 2))
        p('s_cselect_b32 s%d, %d, %d' % (sX1, act, -act))
        p('s_add_u32 s%d, s%d, 32' % (sU, sU))
        p('s_lshr_b32 s%d, s%d, 6' % (sU, sU))
        if amp > 1:
            p('s_cmp_gt_u32 s%d, s%d' % (sU, sRr))
            p('s_cselect_b32 s%d, 1, 0' % sTmp)
            p('s_lshr_b32 s%d, s%d, s%d' % (sU, sU, sTmp))
            p('s_lshl_b32 s%d, s%d, s%d' % (sX1, sX1, sTmp))
        p('s_add_i32 s%d, s%d, %d' % (sMod, sX1, N))
        p('s_add_u32 s%d, s%d, s%d' % (sU, sU, sBi))
        p('s_min_u32 s%d, s%d, s%d' % (sTill, sTill, sU))
        p('s_setpc_b64 s[%d:%d]' % (sRet, sRet + 1))
    if inv:
        p.label('L_half')
        p('; middle of phase V: set the first half aside so that the result does not depend on which half came first')
        p('s_cmp_lg_u32 s%d, 0' % sW)
        p('s_cbranch_scc1 L_half1')
        for w in range(2):
            if w:
                p.label('L_half1')
            for m in range(8):
                for dst, r in ((vSs, 2 * (1 - w)), (vKs, 2 * w)):
                    p('v_cndmask_b32 v%d, v%d, v%d, s[%d:%d]' % (dst + m, vO + 4 * m + r, vO + 4 * m + r + 1, sH, sH + 1))
            if not w:
                p('s_branch L_half2')
        p.label('L_half2')
        p('v_mov_b32 v%d, v%d' % (vLs, vL))
        p('v_mov_b32 v%d, 0' % vL)
        for i in range(32):
            p('v_mov_b32 v%d, 0' % (vO + i))
        p('s_setpc_b64 s[%d:%d]' % (sRet, sRet + 1))
    p.label('L_last')
    p('s_endpgm')
    p.fix_hazards()
    mv, ma, ms = p.max_regs()
    nvg = mv + 1
    acc = min(256, (nvg + 3) // 4 * 4)
    txt = HEADER + '; @launch grid=(256,1,1) block=(128,1,1) lds=%d\n' % lds
    txt += '.amdgcn_target "amdgcn-amd-amdhsa--gfx950"\n.text\n.globl %s\n.p2align 8\n.type %s,@function\n%s:\n' % (
        KNAME, KNAME, KNAME)
    txt += p.text()
    txt += """.section .rodata,"a"
.p2align 6
.amdhsa_kernel %s
  .amdhsa_next_free_vgpr %d
  .amdhsa_next_free_sgpr %d
  .amdhsa_accum_offset %d
  .amdhsa_group_segment_fixed_size 0
  .amdhsa_kernarg_size 48
  .amdhsa_user_sgpr_count 2
  .amdhsa_user_sgpr_kernarg_segment_ptr 1
  .amdhsa_system_sgpr_workgroup_id_x 1
.end_amdhsa_kernel
""" % (KNAME, nvg, ms + 1, acc)
    return txt


if __name__ == '__main__':
    kw = {}
    for a in sys.argv[2:]:
        k, v = a.split('=')
        try:
            v = int(v, 0)
        except ValueError:
            pass
        kw[k] = v
    open(sys.argv[1], 'w').write(gen(**kw))
```

```python
import math
import sys
sys.path.insert(0, 'work')
from asmlib import Prog
from gen_attn import KNAME, f32bits

PATS = {
    'B': '100 200 400 800 1000 2000 4000 8000 10000 20000 40000 80000 0 0 0 0 0 0 0 0',
    'C2': '100 200 800 8000 1000 2000 4000 10000 20000 40000 80000 400 0 0 0 0 0 0 0 0',
    'S1': '2000 100 400 8100 1000 200 800 10200 80000 20000 40800 4000 0 0 0 0 0 0 0 0',
    'S2': '2000 4000 8100 200 1000 100 800 10000 80000 20000 400 40800 0 0 0 0 0 0 0 0',
    'F': '8800 a00 1ba00 8b00 72b00 12000 1e000 11300 c9200 4b000 9c900 43f00 70000 1c800 be000 6800 9d800 48000 b000 79800',
    'F3': 'a00 1b000 8b00 12000 72b00 1e000 8800 11300 c9200 4b000 94100 43f00 70000 18800 ac000 6800 95800 48000 b000 69000',
    'S3': '100 200 2000 8000 1000 400 800 10200 80000 20400 40000 4000 0 0 0 0 0 0 0 0',
    'S4': '4000 2000 1000 8100 100 800 200 10200 80000 40800 20400 400 0 0 0 0 0 0 0 0',
    'S5': 'a100 400 8100 11200 1600 9b00 a8100 10200 20000 100 43d00 84100 0 0 0 0 0 0 0 0',
    'F30': 'a00 1b000 8b00 12000 72b00 1e000 8800 11300 c9200 4b000 94100 43f00 0 0 0 0 0 0 0 0',
    'F2': 'a00 1b000 8b00 72b00 12000 1e000 8800 11300 c9200 4b000 94100 43f00 70000 18800 ac000 6800 95800 48000 b000 69000',
}

HEADER = """; GQA decode attention (B=16, Hq=32, Hkv=16, Sq=4, Sk=4096, D=128), bf16 in / bf16 out.
;
;   phase V : P = exp2((S - max) * log2e / sqrt(D)), V transposed in registers with v_perm,
; loop exists once per depth; at four checkpoints a wave takes a ticket from a counter in ws shared
; with seven peers and deepens (late) or shortens (early) its prefetch for a few tiles, so that all
"""


def dep(x, ms):
    r = 0
    for k, m in enumerate(ms):
        if x >> k & 1:
            r ^= m
    return r


def gen(N=10, amp=2, pol='nt', pat='F3', chk='24:8:2:6,35:8:2:12,50:6:2:5,57:6:2:5', R=12, dn=2, lag=1, act=1, wsoff=0,
        stamp=0, diag_hold=0, opol='', alt=0, noat=0, nobase=0, lw2=0, w0only=0, cstride=256, fk=4, fv=6, al=3, pad=0, cwarm=1, epi=2, m0early=0, qpos=2, G=8, bal=1, twarm=0, tw='vo', n0=0, sumfirst=1, scr='', hmap='', diag_map=0, rotb=0, xfix=0x43f00, inv=1, diag_min=0):
    W, IT = 2, 32
    TB = 2 * IT
    cps = [tuple(int(v) for v in e.split(':')) for e in chk.split(',') if e] if chk else []
    cps = [c + (dn, R)[len(c) - 2:] for c in cps]
    nlo = N - amp if cps else N
    nhi = N + amp if cps else N
    dyn = nhi > nlo
    rt = pat == 'rt'
    pm = [int(x, 16) for x in PATS.get('B' if rt else pat, pat.replace('_', ' ')).split()]
    mL, mW, mS = pm[0:2], pm[5:6], pm[12:20]
    hm = pm[20:28] if len(pm) >= 28 and pm[20:28] != [1 << k for k in range(8)] else []
    sHd = 81
    seq = pm[2:5] + pm[6:12]
    mJ, mT = seq[:4], seq[4:]
    p = Prog()
    vLn, vLv, vT0, vT1, vM, vL, vSa = 1, 2, 3, 4, 5, 6, 7
    vAB = 8
    vP = 12
    vQ = 16
    vS = 24
    vD = 32
    vVt = 48
    vO = 80
    vR = 112
    vMA, vMB, vBase, vAd = 176, 177, 178, 179
    vEw, vEm, vEr, vEl, vEo, vDum = 181, 182, 184, 183, 188, 189
    vLs, vKs, vSs = 191, 192, 200
    inv = inv and bool(cps) and epi == 2
    HALF = IT + IT // 2
    sX, sQ, sO, sVb = 8, 16, 20, 12
    sCnt, sW, sC, sSelLo, sSelHi, sTmp, sTgt = 26, 27, 28, 29, 30, 31, 32
    sH = 34
    sFix, sNx, sBi = 24, 25, 33
    sEvt, sTill, sMod, sRk, sX1, sX3, sU, sSt = 50, 51, 52, 53, 54, 55, 56, 57
    sRet, sWs, sGo, sRr = 58, 48, 60, 61
    sCw = 82
    fl = (' ' + pol.replace('+', ' ')) if pol else ''
    ofl = (' ' + opol.replace('+', ' ')) if opol else ''
    QS, MS = 656, 80
    HS = 8 * QS
    WS = 65536
    ML = 131072 + 2048
    XB = ML + 2048 if epi == 2 else 0
    XB = (XB + 4095) // 4096 * 4096
    lds = XB + 4096 if epi == 2 else ML + 128

    def r4(b):
        return 'v[%d:%d]' % (b, b + 3)

    def mark(k):
        if stamp == 2:
            p('s_memrealtime s[%d:%d]' % (90 + 2 * k, 91 + 2 * k))

    def addr(j):
        c = dep(j % 16, mJ)
        if rt:
            p('v_xor_b32 v%d, s%d, v%d' % (vAd + (j & 1), 64 + j % 16, vBase))
        elif c:
            p('v_xor_b32 v%d, 0x%x, v%d' % (vAd + (j & 1), c, vBase))

    def load(j):
        va = vAd + (j & 1) if (rt or dep(j % 16, mJ)) else vBase
        p('buffer_load_dwordx4 %s, v%d, s[%d:%d], 0 offen%s' % (r4(vR + 4 * (j % 16)), va, sX, sX + 3, fl))

    def issue(j):
        addr(j)
        load(j)

    def touch():
        p('; address-translation warm-up for pages first used later (values are never read)')
        if 'v' in tw:
            p('s_load_dword s62, s[%d:%d], 0' % (sVb, sVb + 1))
        if 'o' in tw:
            p('s_load_dword s63, s[%d:%d], 0' % (sO, sO + 1))

    p('s_cmp_ge_u32 s2, 256')
    p('s_cbranch_scc1 L_end')
    if rotb:
        p('s_sub_u32 s2, s2, %d' % rotb)
        p('s_and_b32 s2, s2, 255')
    for e in (scr.split(',') if scr else []):
        bit, mask = e.split(':')
        p('s_bitcmp1_b32 s2, %s' % bit)
        p('s_cselect_b32 s3, 0x%s, 0' % mask)
        p('s_xor_b32 s2, s2, s3')
    p('s_load_dwordx4 s[4:7], s[0:1], 0')
    p('s_load_dwordx4 s[36:39], s[0:1], 16')
    if cps or stamp:
        p('s_load_dwordx2 s[%d:%d], s[0:1], 40' % (sWs, sWs + 1))
    if diag_map or diag_min:
        p('s_load_dwordx2 s[44:45], s[0:1], 32')
    if stamp or diag_hold:
        p('s_memrealtime s[40:41]')
    p('v_lshrrev_b32 v%d, 6, v0' % vT0)
    p('v_and_b32 v0, 63, v0')
    p('v_readfirstlane_b32 s%d, v%d' % (sW, vT0))
    p('v_lshrrev_b32 v%d, 4, v0' % vT0)
    p('v_lshlrev_b32 v%d, 6, v%d' % (vT0, vT0))
    p('v_and_b32 v%d, 3, v0' % vT1)
    p('v_lshl_add_u32 v%d, v%d, 4, v%d' % (vLn, vT1, vT0))
    for k in range(2):
        p('v_bfe_i32 v%d, v0, %d, 1' % (vT1, 2 + k))
        p('v_and_b32 v%d, 0x%x, v%d' % (vT1, mL[k], vT1))
        p('v_xor_b32 v%d, v%d, v%d' % (vLn, vLn, vT1))
    p('; Q lanes: (s, h = (lane>>3)&1, q = lane&7) read 16 B at q*256 + (4 s + h) * 16, and 32 B further')
    p('v_and_b32 v%d, 7, v0' % vT1)
    p('v_lshl_add_u32 v%d, v%d, 8, v%d' % (vT0, vT1, vT0))
    p('v_bfe_u32 v%d, v0, 3, 1' % vT1)
    p('v_lshl_add_u32 v%d, v%d, 4, v%d' % (vT0, vT1, vT0))
    p('v_cmp_ne_u32 s[%d:%d], 0, v%d' % (sH, sH + 1, vT1))
    p('s_mov_b32 s%d, 0' % sFix)
    if hm:
        p('; bits 20..27 accumulate the head index (a linear bijection of the workgroup id), lower bits the start row')
        mS = [m | (h << 20) for m, h in zip(mS, hm)]
    for src, ms in ((sW, mW), (2, mS)):
        for k, m in enumerate(ms):
            if m:
                p('s_bitcmp1_b32 s%d, %d' % (src, k))
                p('s_cselect_b32 s3, 0x%x, 0' % m)
                p('s_xor_b32 s%d, s%d, s3' % (sFix, sFix))
    if xfix:
        p('; start in the other half of the row order when the die half differs from head bit 2 (speed only)')
        p('s_getreg_b32 s3, hwreg(HW_REG_XCC_ID)')
        p('s_xor_b32 s3, s3, s2')
        p('s_bitcmp1_b32 s3, 2')
        p('s_cselect_b32 s3, 0x%x, 0' % xfix)
        p('s_xor_b32 s%d, s%d, s3' % (sFix, sFix))
    if hm:
        p('s_mov_b32 s%d, s%d' % (sHd, sFix))
        p('s_and_b32 s%d, s%d, 0xfffff' % (sFix, sFix))
    p('v_xor_b32 v%d, s%d, v%d' % (vBase, sFix, vLn))
    if cwarm:
        p('; pull a 512 B slice of this kernel text into L2 (value unused)')
        p('s_getpc_b64 s[62:63]')
        p.label('L_pc')
        p('s_lshr_b32 s3, s2, 3')
        p('s_lshl_b32 s3, s3, 1')
        p('s_add_u32 s3, s3, s%d' % sW)
        p('s_lshl_b32 s3, s3, 9')
        p('v_lshl_add_u32 v%d, v0, 3, s3' % vEr)
        p('v_min_u32 v%d, L_last-L_pc-8, v%d' % (vEr, vEr))
        p('v_mov_b32 v%d, s63' % (vEr + 1))
        p('v_add_co_u32 v%d, vcc, s62, v%d' % (vEr, vEr))
        p('v_addc_co_u32 v%d, vcc, 0, v%d, vcc' % (vEr + 1, vEr + 1))
        p('global_load_dword v%d, v[%d:%d], off' % (vDum, vEr, vEr + 1))
    if hm:
        p('s_lshr_b32 s3, s%d, 20' % sHd)
        p('s_lshl_b32 s%d, s3, 20' % sTmp)
        p('s_lshl_b32 s3, s3, 11')
    else:
        p('s_lshl_b32 s%d, s2, 20' % sTmp)
        p('s_lshl_b32 s3, s2, 11')
    for s, n in ((sX, 0x100000), (sQ, 2048), (sO, 2048)):
        p('s_mov_b32 s%d, 0x%x' % (s + 2, n))
        p('s_mov_b32 s%d, 0x20000' % (s + 3))
    if m0early == 1:
        mark(0)
    p('s_waitcnt lgkmcnt(0)')
    if not m0early:
        mark(0)
    if rt:
        p('s_add_u32 s46, s%d, 0x200000' % sWs)
        p('s_addc_u32 s47, s%d, 0' % (sWs + 1))
        p('s_lshl_b32 s63, s2, 1')
        p('s_add_u32 s63, s63, s%d' % sW)
        p('s_lshl_b32 s63, s63, 2')
        p('s_load_dword s%d, s[46:47], s63' % sFix)
        p('s_load_dwordx16 s[64:79], s[46:47], 0x1000')
        p('s_load_dword s80, s[46:47], 0x1104')
        p('s_lshl_b32 s63, s2, 2')
        p('s_add_u32 s63, s63, 0x1c00')
        p('s_load_dword s81, s[46:47], s63')
        p('v_lshlrev_b32 v%d, 2, v0' % vT1)
        p('v_add_u32 v%d, 0x1800, v%d' % (vT1, vT1))
        p('global_load_dword v%d, v%d, s[46:47]' % (vLv, vT1))
        p('global_load_dword v%d, v%d, s[46:47] offset:256' % (vLn, vT1))
        p('s_waitcnt vmcnt(0) lgkmcnt(0)')
        p('s_memrealtime s[40:41]')
        p('v_xor_b32 v%d, s%d, v%d' % (vBase, sFix, vLn))
        p('s_and_b32 s81, s81, 255')
        p('s_lshl_b32 s%d, s81, 20' % sTmp)
        p('s_lshl_b32 s3, s81, 11')
    p('s_add_u32 s%d, s6, s%d' % (sX, sTmp))
    p('s_addc_u32 s%d, s7, 0' % (sX + 1))
    for j in range(qpos):
        issue(j)
    p('s_add_u32 s%d, s4, s3' % sQ)
    p('s_addc_u32 s%d, s5, 0' % (sQ + 1))
    p('buffer_load_dwordx4 %s, v%d, s[%d:%d], 0 offen' % (r4(vQ), vT0, sQ, sQ + 3))
    p('buffer_load_dwordx4 %s, v%d, s[%d:%d], 0 offen offset:32' % (r4(vQ + 4), vT0, sQ, sQ + 3))
    n0 = n0 or N
    for j in range(qpos, n0):
        issue(j)
    if m0early == 2:
        mark(0)
    p('s_add_u32 s%d, s36, s%d' % (sVb, sTmp))
    p('s_addc_u32 s%d, s37, 0' % (sVb + 1))
    p('s_add_u32 s%d, s38, s3' % sO)
    p('s_addc_u32 s%d, s39, 0' % (sO + 1))
    if diag_map:
        p('s_getreg_b32 s46, hwreg(HW_REG_XCC_ID)')
        p('s_sub_u32 s46, s46, s2')
        p('s_and_b32 s46, s46, 7')
        p('s_lshl_b32 s46, 1, s46')
        p('s_atomic_or s46, s[44:45], 0x0')
    if diag_min:
        p('s_not_b32 s46, s40')
        p('s_atomic_umax s46, s[44:45], 0x0')
    if twarm < 0:
        touch()
    if cps:
        p('; rank counters: one word per (checkpoint, wave, group of 8 workgroups); entry value = base')
        for ci in range(len(cps)):
            mul = [0, 1, 4, 3, 5, 2, 7, 9][ci]
            p('s_and_b32 s%d, s2, 7' % sTmp)
            p('s_mul_i32 s%d, s%d, %d' % (sTmp, sTmp, mul))
            p('s_lshr_b32 s3, s2, 3')
            p('s_xor_b32 s3, s3, s%d' % sTmp)
            p('s_and_b32 s3, s3, 31')
            if G == 8:
                p('s_lshl_b32 s%d, s%d, 5' % (sTmp, sW))
                p('s_or_b32 s3, s3, s%d' % sTmp)
            p('s_mul_i32 s3, s3, %d' % cstride)
            p('s_add_u32 s%d, s3, 0x%x' % (sCw + 2 * ci, wsoff + ci * 64 * cstride))
            if nobase:
                p('s_mov_b32 s%d, 0' % (sCw + 2 * ci + 1))
            else:
                p('s_load_dword s%d, s[%d:%d], s%d glc' % (sCw + 2 * ci + 1, sWs, sWs + 1, sCw + 2 * ci))
        p('s_mov_b32 s%d, %d' % (sEvt, twarm if twarm > 0 else cps[0][0]))
        p('s_mov_b32 s%d, %d' % (sSt, -1 if twarm > 0 else 0))
        p('s_mov_b32 s%d, 0' % sTill)
        p('s_mov_b32 s%d, %d' % (sMod, N))
    c = math.log2(math.e) / math.sqrt(128.0)
    p('s_mov_b32 s%d, 0x%08x' % (sC, f32bits(c)))
    p('s_mov_b32 s%d, 0x05040100' % sSelLo)
    p('s_mov_b32 s%d, 0x07060302' % sSelHi)
    p('s_mov_b32 s%d, 0' % sBi)
    if bal and not rt:
        p('s_xor_b32 s%d, s%d, 0x%x' % (sNx, sFix, mT[0]))
    p('s_mov_b32 s%d, %d' % (sCnt, IT))
    if not rt:
        p('; V lanes: (row = lane>>4, i = lane&15) read 16 B at row + 16 i')
        p('v_and_b32 v%d, 15, v0' % vLv)
        p('v_lshlrev_b32 v%d, 4, v%d' % (vLv, vLv))
        for k in range(2):
            p('v_bfe_i32 v%d, v0, %d, 1' % (vT1, 4 + k))
            p('v_and_b32 v%d, 0x%x, v%d' % (vT1, mL[k], vT1))
            p('v_xor_b32 v%d, v%d, v%d' % (vLv, vLv, vT1))
    p('s_lshl_b32 s%d, s%d, 16' % (sTmp, sW))
    p('v_lshl_add_u32 v%d, v0, 4, s%d' % (vSa, sTmp))
    p('v_mov_b32 v%d, 0xff800000' % vM)
    p('v_mov_b32 v%d, 0' % vL)
    if epi != 2:
        p('v_cndmask_b32 v%d, -1, 0, s[%d:%d]' % (vMA, sH, sH + 1))
        p('v_cndmask_b32 v%d, 0, -1, s[%d:%d]' % (vMB, sH, sH + 1))
    for i in range(32):
        p('v_mov_b32 v%d, 0' % (vO + i))
    if epi == 2:
        p('s_lshl_b32 s3, s%d, 11' % sW)
        p('s_add_u32 s3, s3, %d' % XB)
        p('v_lshl_add_u32 v%d, v0, 4, s3' % vEw)
        p('v_xor_b32 v%d, 0x800, v%d' % (vEr, vEw))
        p('v_and_b32 v%d, 7, v0' % vT0)
        p('s_lshl_b32 s3, s%d, 6' % sW)
        p('s_add_u32 s3, s3, %d' % ML)
        p('v_lshl_add_u32 v%d, v%d, 3, s3' % (vEm, vT0))
        p('v_xor_b32 v%d, 64, v%d' % (vEl, vEm))
        p('v_lshrrev_b32 v%d, 4, v0' % vT1)
        p('v_lshlrev_b32 v%d, 6, v%d' % (vT1, vT1))
        p('v_lshl_add_u32 v%d, v%d, 8, v%d' % (vEo, vT0, vT1))
        p('v_bfe_u32 v%d, v0, 3, 1' % vT1)
        p('v_lshl_add_u32 v%d, v%d, 4, v%d' % (vEo, vT1, vEo))
        p('s_lshl_b32 s3, s%d, 5' % sW)
        p('v_add_u32 v%d, s3, v%d' % (vEo, vEo))
    else:
        p('v_and_b32 v%d, 15, v0' % vT0)
        p('v_mul_u32_u24 v%d, %d, v%d' % (vEw, QS, vT0))
        p('v_lshrrev_b32 v%d, 4, v0' % vT1)
        p('v_lshl_add_u32 v%d, v%d, 4, v%d' % (vEw, vT1, vEw))
        p('v_add_u32 v%d, s%d, v%d' % (vEw, sTmp, vEw))
        p('s_lshl_b32 s3, s%d, 2' % sW)
        p('v_add_u32 v%d, s3, v%d' % (vT1, vT1))
        p('v_mul_u32_u24 v%d, %d, v%d' % (vEr, QS, vT1))
        p('v_lshl_add_u32 v%d, v%d, 2, v%d' % (vEr, vT0, vEr))
        p('v_add_u32 v%d, %d, v%d' % (vEr + 1, HS, vEr))
        p('v_add_u32 v%d, %d, v%d' % (vEr + 2, WS, vEr))
        p('v_add_u32 v%d, %d, v%d' % (vEr + 3, WS + HS, vEr))
        p('v_lshlrev_b32 v%d, 4, v%d' % (vEl, vT1))
        p('v_add_u32 v%d, %d, v%d' % (vEl, ML, vEl))
        p('v_lshlrev_b32 v%d, 8, v%d' % (vEo, vT1))
        p('v_lshl_add_u32 v%d, v%d, 4, v%d' % (vEo, vT0, vEo))
        p('v_and_b32 v%d, 7, v0' % vT0)
        p('s_lshl_b32 s3, s%d, 3' % sW)
        p('s_add_u32 s3, s3, %d' % ML)
        p('v_lshl_add_u32 v%d, v%d, 4, s3' % (vEm, vT0))
    if stamp == 2:
        p('s_waitcnt vmcnt(%d)' % (N - 1))
        mark(1)
        p('s_waitcnt lgkmcnt(0)')

    if qpos:
        p('s_waitcnt vmcnt(%d)' % (n0 - qpos))
    if n0 != N:
        p('s_branch L_K%d' % n0)

    def ab(i):
        d, t = vD + 8 * (i & 1), vAB + 2 * (i & 1)
        p('v_add_f32 v%d, v%d, v%d' % (t, d + 0, d + 6))
        p('v_add_f32 v%d, v%d, v%d' % (t + 1, d + 1, d + 7))

    def dpp(i):
        t = vAB + 2 * (i & 1)
        if i < 8:
            p('v_add_f32_dpp v%d, v%d, v%d row_ror:8 row_mask:0xf bank_mask:0x3' % (vS + i, t + 1, t))
        else:
            p('v_add_f32_dpp v%d, v%d, v%d row_ror:8 row_mask:0xf bank_mask:0xc' % (vS + i - 8, t, t + 1))

    def cross(ph):
        p('s_cmp_eq_u32 s%d, 1' % sCnt)
        if ph == 'K':
            p('s_cselect_b32 s%d, s%d, s%d' % (sX, sVb, sX))
            p('s_cselect_b32 s%d, s%d, s%d' % (sX + 1, sVb + 1, sX + 1))
            p('s_cselect_b64 vcc, -1, 0')
            p('v_cndmask_b32 v%d, v%d, v%d, vcc' % (vLn, vLn, vLv))
        else:
            p('s_cselect_b32 s%d, 0, s%d' % (sX + 2, sX + 2))
        p('v_xor_b32 v%d, s%d, v%d' % (vBase, sNx, vLn))

    def nextoff(sreg):
        p('s_mov_b32 s%d, s%d' % (sNx, sFix))
        for k, m in enumerate(mT):
            p('s_bitcmp1_b32 s%d, %d' % (sreg, k))
            p('s_cselect_b32 s3, 0x%x, 0' % m)
            p('s_xor_b32 s%d, s%d, s3' % (sNx, sNx))

    def ahead():
        if bal and not rt:
            p('s_add_u32 s%d, s%d, 1' % (sTmp, sBi))
            nextoff(sTmp)

    def head(ph, n, i):
        f = fk if ph == 'K' else fv
        if i == 0:
            addr(n)
            p('s_waitcnt vmcnt(%d)' % (n - 1))
            load(n)
            p.label('L_%s%d_a' % (ph, n))
            if f:
                issue(n + 1)
            p('s_add_u32 s%d, s%d, 1' % (sBi, sBi))
            if rt:
                p('s_xor_b32 s%d, s%d, s80' % (sNx, sFix))
                p('s_lshl_b32 s3, s%d, 2' % sBi)
                p('s_add_u32 s3, s3, 0x1104')
                p('s_load_dword s80, s[46:47], s3')
            elif not bal:
                nextoff(sBi)
            return
        if f and i == f:
            p('s_waitcnt vmcnt(%d)' % n)
            return
        wide = 1 if i < f else 0
        j = i + n + wide
        if j == 16:
            cross(ph)
        addr(j)
        p('s_waitcnt vmcnt(%d)' % (n - 1 + wide))
        load(j)

    def decide(n):
        p('s_sub_u32 s%d, s%d, 1' % (sCnt, sCnt))
        if dyn:
            p('s_cmp_lt_u32 s%d, s%d' % (sBi, sTill))
            p('s_cselect_b32 s%d, s%d, %d' % (sGo, sMod, N))
            p('s_xor_b32 s%d, s%d, %d' % (sGo, sGo, n))
            p('s_cmp_eq_u32 s%d, 0' % sCnt)
            p('s_cselect_b32 s%d, 1, s%d' % (sGo, sGo))
            p('s_cmp_eq_u32 s%d, s%d' % (sBi, sEvt))
            p('s_cselect_b32 s%d, 1, s%d' % (sGo, sGo))

    def tail(ph, n, exit_label):
        if stamp == 3:
            p('s_memrealtime s[42:43]')
            p('s_waitcnt lgkmcnt(0)')
            p('s_sub_u32 s3, s%d, 1' % sBi)
            p('s_mov_b32 m0, s3')
            p('s_lshl_b32 s42, s42, 4')
            p('s_or_b32 s42, s42, %d' % n)
            p('v_writelane_b32 v190, s42, m0')
        if not dyn:
            p('s_cmp_lg_u32 s%d, 0' % sCnt)
            p('s_cbranch_scc1 L_%s%d' % (ph, n))
            p('s_branch %s' % exit_label)
            return
        p('s_cmp_eq_u32 s%d, 0' % sGo)
        p('s_cbranch_scc1 L_%s%d' % (ph, n))
        p('s_cmp_eq_u32 s%d, 0' % sCnt)
        if ph == 'V':
            p('s_cbranch_scc1 %s' % exit_label)
        p('s_cmp_lg_u32 s%d, s%d' % (sBi, sEvt))
        p('s_cbranch_scc1 L_%s%d_c' % (ph, n))
        p('s_call_b64 s[%d:%d], L_ctl' % (sRet, sRet + 1))
        p.label('L_%s%d_c' % (ph, n))
        if ph == 'K':
            p('s_cmp_eq_u32 s%d, 0' % sCnt)
            p('s_cbranch_scc1 %s' % exit_label)
        p('s_cmp_lt_u32 s%d, s%d' % (sBi, sTill))
        p('s_cselect_b32 s%d, s%d, %d' % (sTgt, sMod, N))
        if n < nhi:
            p('s_cmp_gt_u32 s%d, %d' % (sTgt, n))
            p('s_cbranch_scc1 L_%s%d_up' % (ph, n))
        if n > nlo:
            p('s_cmp_ge_u32 s%d, %d' % (sTgt, n))
            p('s_cbranch_scc1 L_%s%d' % (ph, n))
            p('s_waitcnt vmcnt(%d)' % (n - 1))
            p('s_branch L_%s%d_a' % (ph, n - 1))
        else:
            p('s_branch L_%s%d' % (ph, n))
        if n < nhi:
            p.label('L_%s%d_up' % (ph, n))
            issue(n)
            p('s_branch L_%s%d' % (ph, n + 1))

    def kbody(n):
        p('.p2align %d' % al)
        for _ in range(pad):
            p('s_nop 0')
        p.label('L_K%d' % n)
        p('; K tile, %d loads in flight' % n)
        for i in range(16):
            head('K', n, i)
            d = vD + 8 * (i & 1)
            p('v_mfma_f32_16x16x32_bf16 %s, %s, %s, 0' % (r4(d), r4(vR + 4 * i), r4(vQ)))
            p('v_mfma_f32_16x16x32_bf16 %s, %s, %s, 0' % (r4(d + 4), r4(vR + 4 * i), r4(vQ + 4)))
            if i >= 2:
                dpp(i - 2)
            if i >= 1:
                ab(i - 1)
            if i == 11:
                ahead()
            if i == 12:
                decide(n)
            if i == 14 and rt:
                p('s_waitcnt lgkmcnt(0)')
        dpp(14)
        ab(15)
        p('v_max3_f32 v%d, v%d, v%d, v%d' % (vM, vM, vS, vS + 1))
        p('v_max3_f32 v%d, v%d, v%d, v%d' % (vM, vM, vS + 2, vS + 3))
        dpp(15)
        p('ds_write_b128 v%d, %s' % (vSa, r4(vS)))
        p('v_max3_f32 v%d, v%d, v%d, v%d' % (vM, vM, vS + 4, vS + 5))
        p('v_max3_f32 v%d, v%d, v%d, v%d' % (vM, vM, vS + 6, vS + 7))
        p('ds_write_b128 v%d, %s offset:1024' % (vSa, r4(vS + 4)))
        p('v_add_u32 v%d, 2048, v%d' % (vSa, vSa))
        tail('K', n, 'L_T%d' % n)

    lw = 0 if rt else 1 + lw2

    def trans(n):
        p.label('L_T%d' % n)
        p('v_subrev_u32 v%d, %d, v%d' % (vSa, IT * 2048, vSa))
        mark(2)
        p('ds_read_b128 %s, v%d' % (r4(vS), vSa))
        p('ds_read_b128 %s, v%d offset:1024' % (r4(vS + 4), vSa))
        p('ds_read_b32 v%d, v%d' % (vDum, vSa))
        if lw2:
            p('ds_read_b32 v%d, v%d' % (vDum, vSa))
        p('v_max_f32_dpp v%d, v%d, v%d row_ror:8 row_mask:0xf bank_mask:0xf' % (vM, vM, vM))
        p('s_mov_b32 s%d, %d' % (sCnt, IT))
        p('v_mov_b32 v%d, v%d' % (vT1, vM))
        p('v_permlane32_swap_b32 v%d, v%d' % (vM, vT1))
        p('v_max_f32 v%d, v%d, v%d' % (vM, vM, vT1))
        p('v_mov_b32 v%d, v%d' % (vT1, vM))
        p('v_permlane16_swap_b32 v%d, v%d' % (vM, vT1))
        p('v_max_f32 v%d, v%d, v%d' % (vM, vM, vT1))
        p('s_waitcnt lgkmcnt(%d)' % (0 if stamp > 1 else lw))
        if bal:
            for x in scale():
                p(x)

    def scale():
        return (['v_sub_f32 v%d, v%d, v%d' % (vS + e, vS + e, vM) for e in range(8)] +
                ['v_mul_f32 v%d, s%d, v%d' % (vS + e, sC, vS + e) for e in range(8)])

    def vbody(n):
        extra = {i: [] for i in range(16)}
        if bal:
            extra[0] += ['v_exp_f32 v%d, v%d' % (vS + e, vS + e) for e in range(5)]
            extra[2] += ['v_exp_f32 v%d, v%d' % (vS + e, vS + e) for e in range(5, 8)]
        else:
            extra[0] += scale()
            extra[2] += ['v_exp_f32 v%d, v%d' % (vS + e, vS + e) for e in range(8)]
        extra[2] += ['v_add_f32 v%d, v%d, v%d' % (vT0, vS, vS + 1), 'v_add_f32 v%d, v%d, v%d' % (vT1, vS + 2, vS + 3)]
        if epi == 2:
            extra[4] += ['v_cvt_pk_bf16_f32 v%d, v%d, v%d' % (vQ + w, vS + 2 * w, vS + 2 * w + 1) for w in range(4)]
            extra[4] += ['v_cvt_pk_bf16_f32 v%d, v%d, v%d' % (vP + w, vS + 2 * w, vS + 2 * w + 1) for w in range(4)]
        else:
            extra[4] += ['v_cvt_pk_bf16_f32 v%d, v%d, v%d' % (vP + w, vS + 2 * w, vS + 2 * w + 1) for w in range(4)]
        extra[4] += ['v_add_f32 v%d, v%d, v%d' % (vT0, vT0, vS + 4), 'v_add_f32 v%d, v%d, v%d' % (vT1, vT1, vS + 5),
                     'v_add_f32 v%d, v%d, v%d' % (vT0, vT0, vS + 6), 'v_add_f32 v%d, v%d, v%d' % (vT1, vT1, vS + 7),
                     'v_add_f32 v%d, v%d, v%d' % (vL, vL, vT0), 'v_add_f32 v%d, v%d, v%d' % (vL, vL, vT1)]
        extra[6] += ['v_add_u32 v%d, 2048, v%d' % (vSa, vSa),
                     'ds_read_b128 %s, v%d' % (r4(vS), vSa),
                     'ds_read_b128 %s, v%d offset:1024' % (r4(vS + 4), vSa),
                     'ds_read_b32 v%d, v%d' % (vDum, vSa)] + ['ds_read_b32 v%d, v%d' % (vDum, vSa)] * lw2
        if epi == 2:
            extra[6] += ['v_mov_b32_dpp v%d, v%d row_ror:8 row_mask:0xf bank_mask:0xc' % (vQ + w, vQ + w) for w in range(4)]
            extra[10] += ['v_mov_b32_dpp v%d, v%d row_ror:8 row_mask:0xf bank_mask:0x3' % (vP + w, vP + w) for w in range(4)]
        else:
            extra[6] += ['v_and_b32 v%d, v%d, v%d' % (vQ + w, vMA, vP + w) for w in range(4)]
            extra[10] += ['v_and_b32 v%d, v%d, v%d' % (vQ + 4 + w, vMB, vP + w) for w in range(4)]
        extra[12] += ['s_cmp_lg_u32 s%d, 1' % sCnt, 's_cbranch_scc1 L_V%d_l' % n,
                      's_call_b64 s[%d:%d], L_sum' % (sRet, sRet + 1), 'L_V%d_l:' % n]
        extra[14] += ['s_waitcnt lgkmcnt(%d)' % lw] + (scale() if bal else [])

        def mf(pb, ms):
            return ['v_mfma_f32_16x16x32_bf16 %s, %s, %s, %s' % (r4(vO + 4 * m), r4(vVt + 4 * m), r4(pb), r4(vO + 4 * m))
                    for m in ms]
        extra[7] += mf(vQ, range(0, 4))
        extra[8] += mf(vQ, range(4, 8))
        extra[15] += mf(vP if epi == 2 else vQ + 4, range(0, 8))
        p('.p2align %d' % al)
        for _ in range(pad):
            p('s_nop 0')
        p.label('L_V%d' % n)
        p('; V tile, %d loads in flight' % n)
        for i in range(16):
            head('V', n, i)
            if i & 1:
                w = (i & 7) >> 1
                a = vR + 4 * (i - 1)
                for u in range(4):
                    p('v_perm_b32 v%d, v%d, v%d, s%d' % (vVt + 8 * u + w, a + 4 + u, a + u, sSelLo))
                    p('v_perm_b32 v%d, v%d, v%d, s%d' % (vVt + 8 * u + 4 + w, a + 4 + u, a + u, sSelHi))
            for x in extra[i]:
                p(x)
            if i == 10:
                ahead()
            if i == 12:
                decide(n)
        tail('V', n, 'L_epi')

    assert nhi + (1 if fk or fv else 0) <= 14 and nlo >= 7
    order = [N] + [n for n in range(nlo, nhi + 1) if n != N]
    for n in order:
        kbody(n)
    for n in order[::-1]:
        trans(n)
        vbody(n)

    def lsum():
        p.label('L_sum')
        if inv:
            p('v_add_f32 v%d, v%d, v%d' % (vL, vL, vLs))
        p('s_nop 1')
        p('v_add_f32_dpp v%d, v%d, v%d row_ror:8 row_mask:0xf bank_mask:0xf' % (vL, vL, vL))
        p('v_mov_b32 v%d, v%d' % (vAB, vM))
        p('v_mov_b32 v%d, v%d' % (vT1, vL))
        p('v_permlane32_swap_b32 v%d, v%d' % (vL, vT1))
        p('v_add_f32 v%d, v%d, v%d' % (vL, vL, vT1))
        p('v_mov_b32 v%d, v%d' % (vT1, vL))
        p('v_permlane16_swap_b32 v%d, v%d' % (vL, vT1))
        p('v_add_f32 v%d, v%d, v%d' % (vAB + 1, vL, vT1))
        p('ds_write_b64 v%d, v[%d:%d]' % (vEm, vAB, vAB + 1))
        p('s_setpc_b64 s[%d:%d]' % (sRet, sRet + 1))

    if sumfirst:
        lsum()
    p.label('L_epi')
    mark(3)
    if epi == 2:
        vSn, vKp, vRc, vA = vVt, vVt + 8, vVt + 16, vVt + 24
        p('; wave w keeps rows r = 2w + h of every 4-row group and hands the other pair to its partner')
        p('s_cmp_lg_u32 s%d, 0' % sW)
        p('s_cbranch_scc1 L_epi1')
        for w in range(2):
            if w:
                p.label('L_epi1')
            o, k = 2 * (1 - w), 2 * w
            for hb in range(2):
                for m in range(4 * hb, 4 * hb + 4):
                    p('v_cndmask_b32 v%d, v%d, v%d, s[%d:%d]' % (vSn + m, vO + 4 * m + o, vO + 4 * m + o + 1, sH, sH + 1))
                for m in range(4 * hb, 4 * hb + 4):
                    if inv:
                        p('v_add_f32 v%d, v%d, v%d' % (vSn + m, vSn + m, vSs + m))
                p('ds_write_b128 v%d, %s offset:%d' % (vEw, r4(vSn + 4 * hb), 1024 * hb))
            for m in range(8):
                p('v_cndmask_b32 v%d, v%d, v%d, s[%d:%d]' % (vKp + m, vO + 4 * m + k, vO + 4 * m + k + 1, sH, sH + 1))
            if not w:
                p('s_branch L_epi2')
        p.label('L_epi2')
        if inv:
            for m in range(8):
                p('v_add_f32 v%d, v%d, v%d' % (vKp + m, vKp + m, vKs + m))
        p('s_waitcnt lgkmcnt(0)')
        p('s_barrier')
        mark(4)
        p('ds_read_b64 v[%d:%d], v%d' % (vA, vA + 1, vEl))
        p('ds_read_b128 %s, v%d' % (r4(vRc), vEr))
        p('ds_read_b128 %s, v%d offset:1024' % (r4(vRc + 4), vEr))
        p('s_waitcnt lgkmcnt(%d)' % (0 if stamp == 2 else 2))
        p('v_max_f32 v%d, v%d, v%d' % (vT1, vA, vAB))
        p('v_sub_f32 v%d, v%d, v%d' % (vA, vA, vT1))
        p('v_sub_f32 v%d, v%d, v%d' % (vAB, vAB, vT1))
        p('v_mul_f32 v%d, s%d, v%d' % (vA, sC, vA))
        p('v_mul_f32 v%d, s%d, v%d' % (vAB, sC, vAB))
        p('v_exp_f32 v%d, v%d' % (vA, vA))
        p('v_exp_f32 v%d, v%d' % (vAB, vAB))
        p('v_mul_f32 v%d, v%d, v%d' % (vL, vA, vA + 1))
        p('v_fmac_f32 v%d, v%d, v%d' % (vL, vAB, vAB + 1))
        p('v_rcp_f32 v%d, v%d' % (vL, vL))
        p('v_mul_f32 v%d, v%d, v%d' % (vAB, vAB, vL))
        p('v_mul_f32 v%d, v%d, v%d' % (vA, vA, vL))
        for m in range(8):
            p('v_mul_f32 v%d, v%d, v%d' % (vKp + m, vAB, vKp + m))
        p('s_waitcnt lgkmcnt(0)')
        for m in range(8):
            p('v_fmac_f32 v%d, v%d, v%d' % (vKp + m, vA, vRc + m))
        for k in range(4):
            p('v_cvt_pk_bf16_f32 v%d, v%d, v%d' % (vS + k, vKp + 2 * k, vKp + 2 * k + 1))
        p('buffer_store_dwordx4 %s, v%d, s[%d:%d], 0 offen%s' % (r4(vS), vEo, sO, sO + 3, ofl))
    else:
        for m in range(8):
            p('ds_write_b128 v%d, %s offset:%d' % (vEw, r4(vO + 4 * m), m * MS))
        p('s_waitcnt lgkmcnt(0)')
        p('s_barrier')
        mark(4)
        vA, vRd = vVt, vO
        p('ds_read_b128 %s, v%d' % (r4(vA), vEl))
        for pp in range(4):
            for k in range(4):
                dst = vRd + pp * 8 + 2 * k
                p('ds_read2_b32 v[%d:%d], v%d offset0:%d offset1:%d' %
                  (dst, dst + 1, vEr + pp, 2 * k * MS // 4, (2 * k + 1) * MS // 4))
        p('s_waitcnt lgkmcnt(%d)' % (0 if stamp > 1 else 15))
        p('v_max_f32 v%d, v%d, v%d' % (vT1, vA, vA + 2))
        p('v_sub_f32 v%d, v%d, v%d' % (vA, vA, vT1))
        p('v_sub_f32 v%d, v%d, v%d' % (vA + 2, vA + 2, vT1))
        p('v_mul_f32 v%d, s%d, v%d' % (vA, sC, vA))
        p('v_mul_f32 v%d, s%d, v%d' % (vA + 2, sC, vA + 2))
        p('v_exp_f32 v%d, v%d' % (vA, vA))
        p('v_exp_f32 v%d, v%d' % (vA + 2, vA + 2))
        p('v_mul_f32 v%d, v%d, v%d' % (vL, vA, vA + 1))
        p('v_fmac_f32 v%d, v%d, v%d' % (vL, vA + 2, vA + 3))
        p('v_rcp_f32 v%d, v%d' % (vL, vL))
        p('s_waitcnt lgkmcnt(%d)' % (0 if stamp > 1 else 8))
        for k in range(8):
            p('v_add_f32 v%d, v%d, v%d' % (vRd + k, vRd + k, vRd + 8 + k))
        p('v_mul_f32 v%d, v%d, v%d' % (vA, vA, vL))
        p('v_mul_f32 v%d, v%d, v%d' % (vA + 2, vA + 2, vL))
        for k in range(8):
            p('v_mul_f32 v%d, v%d, v%d' % (vS + k, vA, vRd + k))
        p('s_waitcnt lgkmcnt(0)')
        for k in range(8):
            p('v_add_f32 v%d, v%d, v%d' % (vRd + 16 + k, vRd + 16 + k, vRd + 24 + k))
        for k in range(8):
            p('v_fmac_f32 v%d, v%d, v%d' % (vS + k, vA + 2, vRd + 16 + k))
        for k in range(4):
            p('v_cvt_pk_bf16_f32 v%d, v%d, v%d' % (vP + k, vS + 2 * k, vS + 2 * k + 1))
        p('buffer_store_dwordx4 %s, v%d, s[%d:%d], 0 offen%s' % (r4(vP), vEo, sO, sO + 3, ofl))
    if diag_map:
        p('s_mov_b32 s47, 0')
        p('s_atomic_or s47, s[44:45], 0x0 glc')
        p('s_waitcnt lgkmcnt(0)')
        p('s_bcnt1_i32_b32 s47, s47')
        p('s_cmp_le_u32 s47, 1')
        p('s_cbranch_scc1 L_end')
    if diag_min:
        p('s_mov_b32 s47, 0')
        p('s_atomic_or s47, s[44:45], 0x0 glc')
        p('s_waitcnt lgkmcnt(0)')
        if diag_min == 1:
            p('s_not_b32 s40, s47')
    if diag_hold:
        p.label('L_hold')
        p('s_sleep 1')
        p('s_memrealtime s[42:43]')
        p('s_waitcnt lgkmcnt(0)')
        p('s_sub_u32 s42, s42, s40')
        p('s_cmp_lt_u32 s42, %d' % (diag_hold * 100))
        p('s_cbranch_scc1 L_hold')
    if stamp:
        p('s_memrealtime s[42:43]')
        p('s_waitcnt lgkmcnt(0)')
        p('s_getreg_b32 s46, hwreg(HW_REG_XCC_ID)')
        p('s_lshl_b32 s%d, s2, 1' % sTmp)
        p('s_add_u32 s%d, s%d, s%d' % (sTmp, sTmp, sW))
        p('s_lshl_b32 s%d, s%d, 5' % (sTmp, sTmp))
        p('v_mov_b32 v%d, s%d' % (vT0, sTmp))
        for i, s in enumerate((40, 41, 42, 43)):
            p('v_mov_b32 v%d, s%d' % (vVt + i, s))
        p('v_mov_b32 v%d, s46' % (vVt + 4))
        p('v_mov_b32 v%d, %d' % (vVt + 5, W))
        if stamp == 3:
            p('s_lshl_b32 s3, s%d, 3' % sTmp)
            p('s_add_u32 s3, s3, 0x100000')
            p('v_lshl_add_u32 v%d, v0, 2, s3' % vT1)
            p('global_store_dword v%d, v190, s[%d:%d]' % (vT1, sWs, sWs + 1))
        p('s_mov_b64 exec, 1')
        p('global_store_dwordx4 v%d, %s, s[%d:%d]' % (vT0, r4(vVt), sWs, sWs + 1))
        p('global_store_dwordx2 v%d, v[%d:%d], s[%d:%d] offset:16' % (vT0, vVt + 4, vVt + 5, sWs, sWs + 1))
        if stamp == 2:
            p('v_lshlrev_b32 v%d, 2, v%d' % (vT0, vT0))
            p('v_add_u32 v%d, 0x100000, v%d' % (vT0, vT0))
            for k in range(5):
                p('v_mov_b32 v%d, s%d' % (vD + k, 90 + 2 * k))
            p('global_store_dwordx4 v%d, %s, s[%d:%d]' % (vT0, r4(vD), sWs, sWs + 1))
            p('global_store_dword v%d, v%d, s[%d:%d] offset:16' % (vT0, vD + 4, sWs, sWs + 1))
    p.label('L_end')
    p('s_endpgm')

    if not sumfirst:
        lsum()

    if cps:
        p.label('L_ctl')
        p('; event chain: take a ticket / turn the rank into a depth (s52) held until tile s51 / mid-phase hand-over')
        p('s_add_u32 s%d, s%d, 1' % (sSt, sSt))
        if twarm > 0:
            p('s_cmp_lg_u32 s%d, 0' % sSt)
            p('s_cbranch_scc1 L_ctl_w')
            touch()
            p('s_mov_b32 s%d, %d' % (sEvt, cps[0][0]))
            p('s_setpc_b64 s[%d:%d]' % (sRet, sRet + 1))
            p.label('L_ctl_w')
        ev = [(kb, 'take', ci) for ci, (kb, sc, cdn, cR) in enumerate(cps)]
        ev += [(kb + lag, 'set', ci) for ci, (kb, sc, cdn, cR) in enumerate(cps)]
        if inv:
            ev.append((HALF, 'half', 0))
        ev.sort()
        assert len({e[0] for e in ev}) == len(ev) and ev[0][1] == 'take'
        for k, (body, kind, ci) in enumerate(ev):
            nxt = ev[k + 1][0] if k + 1 < len(ev) else 255
            p('s_cmp_lg_u32 s%d, %d' % (sSt, k + 1))
            p('s_cbranch_scc1 L_ctl_%d' % k)
            p('s_mov_b32 s%d, %d' % (sEvt, nxt))
            if kind == 'take':
                p('s_mov_b32 s%d, 1' % sRk)
                if not noat:
                    p('s_atomic_add s%d, s[%d:%d], s%d glc' % (sRk, sWs, sWs + 1, sCw + 2 * ci))
                p('s_setpc_b64 s[%d:%d]' % (sRet, sRet + 1))
            elif kind == 'set':
                kb, sc, cdn, cR = cps[ci]
                end = (cps[ci + 1][0] if ci + 1 < len(cps) else TB - 1)
                p('s_waitcnt lgkmcnt(0)')
                p('s_sub_u32 s%d, s%d, s%d' % (sRk, sRk, sCw + 2 * ci + 1))
                p('s_and_b32 s%d, s%d, 0xff' % (sRk, sRk))
                p('s_cmp_ge_u32 s%d, %d' % (sRk, G // 2))
                p('s_cselect_b32 s%d, %d, %d' % (sX3, 4 * sc, cdn * sc))
                p('s_mov_b32 s%d, %d' % (sRr, cR))
                p('s_mov_b32 s%d, %d' % (sTill, end))
                p('s_branch L_ctl_set')
            else:
                p('s_branch L_half')
            p.label('L_ctl_%d' % k)
        p('s_setpc_b64 s[%d:%d]' % (sRet, sRet + 1))
        p.label('L_ctl_set')
        zs = (0.165, 0.51, 0.93, 1.78) if G == 8 else (0.09, 0.26, 0.44, 0.64, 0.85, 1.11, 1.45, 2.05)
        wt = sum(int(round(16 * z)) << (8 * i) for i, z in enumerate(zs))
        p('s_min_u32 s%d, s%d, %d' % (sRk, sRk, G - 1))
        p('s_sub_i32 s%d, %d, s%d' % (sX1, G // 2 - 1, sRk))
        p('s_sub_i32 s%d, s%d, %d' % (sU, sRk, G // 2))
        p('s_max_i32 s%d, s%d, s%d' % (sU, sU, sX1))
        p('s_lshl_b32 s%d, s%d, 3' % (sU, sU))
        if G == 8:
            p('s_mov_b32 s%d, 0x%08x' % (sTmp, wt))
            p('s_lshr_b32 s%d, s%d, s%d' % (sU, sTmp, sU))
        else:
            p('s_mov_b32 s62, 0x%08x' % (wt & 0xffffffff))
            p('s_mov_b32 s63, 0x%08x' % (wt >> 32))
            p('s_lshr_b64 s[62:63], s[62:63], s%d' % sU)
            p('s_mov_b32 s%d, s62' % sU)
        p('s_and_b32 s%d, s%d, 0xff' % (sU, sU))
        p('s_mul_i32 s%d, s%d, s%d' % (sU, sU, sX3))
        p('s_cmp_ge_u32 s%d, %d' % (sRk, G // 2))
        p('s_cselect_b32 s%d, %d, %d' % (sX1, act, -act))
        p('s_add_u32 s%d, s%d, 32' % (sU, sU))
        p('s_lshr_b32 s%d, s%d, 6' % (sU, sU))
        if amp > 1:
            p('s_cmp_gt_u32 s%d, s%d' % (sU, sRr))
            p('s_cselect_b32 s%d, 1, 0' % sTmp)
            p('s_lshr_b32 s%d, s%d, s%d' % (sU, sU, sTmp))
            p('s_lshl_b32 s%d, s%d, s%d' % (sX1, sX1, sTmp))
        p('s_add_i32 s%d, s%d, %d' % (sMod, sX1, N))
        p('s_add_u32 s%d, s%d, s%d' % (sU, sU, sBi))
        p('s_min_u32 s%d, s%d, s%d' % (sTill, sTill, sU))
        p('s_setpc_b64 s[%d:%d]' % (sRet, sRet + 1))
    if inv:
        p.label('L_half')
        p('; middle of phase V: set the first half aside so that the result does not depend on which half came first')
        p('s_cmp_lg_u32 s%d, 0' % sW)
        p('s_cbranch_scc1 L_half1')
        for w in range(2):
            if w:
                p.label('L_half1')
            for m in range(8):
                for dst, r in ((vSs, 2 * (1 - w)), (vKs, 2 * w)):
                    p('v_cndmask_b32 v%d, v%d, v%d, s[%d:%d]' % (dst + m, vO + 4 * m + r, vO + 4 * m + r + 1, sH, sH + 1))
            if not w:
                p('s_branch L_half2')
        p.label('L_half2')
        p('v_mov_b32 v%d, v%d' % (vLs, vL))
        p('v_mov_b32 v%d, 0' % vL)
        for i in range(32):
            p('v_mov_b32 v%d, 0' % (vO + i))
        p('s_setpc_b64 s[%d:%d]' % (sRet, sRet + 1))
    p.label('L_last')
    p('s_endpgm')
    p.fix_hazards()
    mv, ma, ms = p.max_regs()
    nvg = mv + 1
    acc = min(256, (nvg + 3) // 4 * 4)
    txt = HEADER + '; @launch grid=(256,1,1) block=(128,1,1) lds=%d\n' % lds
    txt += '.amdgcn_target "amdgcn-amd-amdhsa--gfx950"\n.text\n.globl %s\n.p2align 8\n.type %s,@function\n%s:\n' % (
        KNAME, KNAME, KNAME)
    txt += p.text()
    txt += """.section .rodata,"a"
.p2align 6
.amdhsa_kernel %s
  .amdhsa_next_free_vgpr %d
  .amdhsa_next_free_sgpr %d
  .amdhsa_accum_offset %d
  .amdhsa_group_segment_fixed_size 0
  .amdhsa_kernarg_size 48
  .amdhsa_user_sgpr_count 2
  .amdhsa_user_sgpr_kernarg_segment_ptr 1
  .amdhsa_system_sgpr_workgroup_id_x 1
.end_amdhsa_kernel
""" % (KNAME, nvg, ms + 1, acc)
    return txt


if __name__ == '__main__':
    kw = {}
    for a in sys.argv[2:]:
        k, v = a.split('=')
        try:
            v = int(v, 0)
        except ValueError:
            pass
        kw[k] = v
    open(sys.argv[1], 'w').write(gen(**kw))
```
